```python
import torch

def _softmax(x, axis=-1):
    return torch.softmax(x, dim=axis)

def _gelu(x):
    return torch.nn.functional.gelu(x, approximate='tanh')

def _silu(x):
    return torch.nn.functional.silu(x)

def _sigmoid(x):
    return torch.sigmoid(x)

def _layernorm(x, axis=-1, eps=1e-05):
    m = x.mean(dim=axis, keepdim=True)
    v = x.var(dim=axis, keepdim=True, unbiased=False)
    return (x - m) / torch.sqrt(v + eps)

def _scatter_add(tgt, idx, src, axis=0):
    return tgt.clone().index_add_(axis, idx, src)

def _segment_sum(src, seg, n):
    out = torch.zeros((n,) + src.shape[1:], dtype=src.dtype)
    return out.index_add_(0, seg, src)

def _pad(x, pw):
    flat = tuple((v for pair in reversed(pw) for v in pair))
    return torch.nn.functional.pad(x, flat)
kernel_name = 'gated_mix__spectral_fnet__mixer_gmlp__prompt'

def setup_inputs():

    _w = lambda a: (lambda t: t.to(torch.bfloat16) if t.is_floating_point() else t)(torch.as_tensor(a))

    def _A_setup():
        B, S, D = (1, 2048, 640)
        ns = torch.arange(S)[:, None] * torch.arange(S)[None, :]
        nd = torch.arange(D)[:, None] * torch.arange(D)[None, :]
        Ws_re = torch.cos(-2.0 * torch.pi * ns / S).to(float)
        Ws_im = torch.sin(-2.0 * torch.pi * ns / S).to(float)
        Wd_re = torch.cos(-2.0 * torch.pi * nd / D).to(float)
        Wd_im = torch.sin(-2.0 * torch.pi * nd / D).to(float)
        return {'x': _w((lambda *s: torch.randn(*s, dtype=torch.bfloat16) * 0.05)(B, S, D)), 'dft_seq_re': _w(Ws_re), 'dft_seq_im': _w(Ws_im), 'dft_hid_re': _w(Wd_re), 'dft_hid_im': _w(Wd_im)}
    _A_in = _A_setup()

    def _B_setup():
        B, S, D, F = (1, 2048, 640, 1536)
        Fh = F // 2
        return {'x': _w((lambda *s: torch.randn(*s, dtype=torch.bfloat16) * 0.05)(B, S, D)), 'w_in': _w((lambda *s: torch.randn(*s, dtype=torch.bfloat16) * 0.8)(D, 2 * Fh)), 'w_sp': _w(0.01 * (lambda *s: torch.randn(*s, dtype=torch.bfloat16) * 0.8)(S, S)), 'b_sp': _w(1.0 + 0.01 * (lambda *s: torch.randn(*s, dtype=torch.bfloat16) * 0.8)(S)), 'w_out': _w((lambda *s: torch.randn(*s, dtype=torch.bfloat16) * 0.8)(Fh, D))}
    _B_in = _B_setup()
    return {'A_x': _A_in['x'], 'A_dft_seq_re': _A_in['dft_seq_re'], 'A_dft_seq_im': _A_in['dft_seq_im'], 'A_dft_hid_re': _A_in['dft_hid_re'], 'A_dft_hid_im': _A_in['dft_hid_im'], 'B_x': _B_in['x'], 'B_w_in': _B_in['w_in'], 'B_w_sp': _B_in['w_sp'], 'B_b_sp': _B_in['b_sp'], 'B_w_out': _B_in['w_out'], 'gate_w': _w((lambda *s: torch.randn(*s, dtype=torch.bfloat16) * 0.05)(640) * 16.0)}

def reference(A_x, A_dft_seq_re, A_dft_seq_im, A_dft_hid_re, A_dft_hid_im, B_x, B_w_in, B_w_sp, B_b_sp, B_w_out, gate_w):

    def _A_ref(x, dft_seq_re, dft_seq_im, dft_hid_re, dft_hid_im):
        a = torch.einsum('bsd,ed->bse', x, dft_hid_re)
        b = torch.einsum('bsd,ed->bse', x, dft_hid_im)
        y = torch.einsum('ts,bse->bte', dft_seq_re, a) - torch.einsum('ts,bse->bte', dft_seq_im, b)
        return y

    def _B_ref(x, w_in, w_sp, b_sp, w_out):
        B, S, D = x.shape
        F = w_in.shape[-1]
        Fh = F // 2
        z = _gelu(torch.einsum('bsd,df->bsf', x, w_in))
        z1 = z[..., :Fh].clone()
        z2 = _layernorm(z[..., Fh:], axis=-1)
        g = torch.einsum('ts,bsf->btf', w_sp, z2) + b_sp[None, :, None]
        return torch.einsum('bsf,fd->bsd', z1 * g, w_out)
    x = A_x
    g = _sigmoid((x * gate_w).sum(-1, keepdims=True))
    a = _A_ref(x, A_dft_seq_re, A_dft_seq_im, A_dft_hid_re, A_dft_hid_im)
    b = _B_ref(x, B_w_in, B_w_sp, B_b_sp, B_w_out)
    return g * a + (1 - g) * b
```

```python
import re

_REG = re.compile(r'^(-|abs\(|\|)?([vas])(\d+)\)?\|?$')
_RNG = re.compile(r'^(-)?([vas])\[(\d+):(\d+)\]$')


def regs_of(op):
    op = op.strip()
    m = _RNG.match(op)
    if m:
        return [f'{m.group(2)}{i}' for i in range(int(m.group(3)), int(m.group(4)) + 1)]
    m = _REG.match(op)
    if m:
        return [f'{m.group(2)}{m.group(3)}']
    if op in ('vcc', 'exec', 'm0'):
        return [op]
    if op in ('vcc_lo', 'vcc_hi'):
        return ['vcc']
    if op in ('exec_lo', 'exec_hi'):
        return ['exec']
    return []


TRANS = ('v_exp_f32', 'v_log_f32', 'v_rcp_f32', 'v_rsq_f32', 'v_sqrt_f32', 'v_sin_f32', 'v_cos_f32')


class Ins:
    __slots__ = ('text', 'op', 'w', 'r', 'kind', 'tok', 'srcC', 'sdata', 'raw')

    def __init__(self, text, tok=None):
        self.text = text
        self.tok = tok
        self.srcC = []
        self.sdata = []
        t = text.split(';')[0].strip()
        if t.endswith(':'):
            self.op, self.w, self.r, self.kind = 'label', [], [], 'label'
            return
        parts = t.split(None, 1)
        op = parts[0]
        self.op = op
        ops = []
        if len(parts) > 1:
            ops = [x.strip() for x in parts[1].split(',')]
            last = ops[-1].split()
            mods = last[1:]
            ops[-1] = last[0] if last else ''
        else:
            mods = []
        R = [regs_of(o) for o in ops]
        flat = lambda l: [x for y in l for x in y]
        w, r = [], []
        if op.startswith('v_mfma'):
            kind = 'mfma'; w = R[0]; r = flat(R[1:]); self.srcC = R[3]
        elif op.startswith('ds_read'):
            kind = 'ds'; w = R[0]; r = flat(R[1:])
        elif op.startswith('ds_write'):
            kind = 'ds'; r = flat(R)
        elif op.startswith('buffer_load'):
            kind = 'vm'
            if 'lds' in mods:
                r = flat(R) + ['m0']
            else:
                w = R[0]; r = flat(R[1:])
                if 'd16' in op: r = r + R[0]
        elif op.startswith('buffer_store'):
            kind = 'vm'; r = flat(R)
            if 'x4' in op or 'x3' in op: self.sdata = R[0]
        elif op.startswith('v_cmp'):
            kind = 'valu'; w = R[0]; r = flat(R[1:])
        elif op.startswith('v_permlane'):
            kind = 'valu'; w = flat(R); r = flat(R)
        elif op.startswith('v_fmac') or op.startswith('v_dot2c'):
            kind = 'valu'; w = R[0]; r = flat(R)
        elif op.startswith('v_'):
            kind = 'valu'; w = R[0]; r = flat(R[1:])
        elif op in ('s_waitcnt', 's_nop', 's_barrier', 's_endpgm', 's_setprio', 's_sleep'):
            kind = op
        elif op.startswith('s_cbranch') or op == 's_branch':
            kind = 'branch'
        elif op.startswith('s_cmp') or op.startswith('s_bitcmp'):
            kind = 'salu'; r = flat(R)
        elif op.startswith('s_load') or op in ('s_memrealtime', 's_memtime'):
            kind = 'smem'; w = R[0]; r = flat(R[1:])
        elif op.startswith('s_'):
            kind = 'salu'; w = R[0]; r = flat(R[1:])
        else:
            raise ValueError('unknown instr ' + text)
        self.w, self.r, self.kind = w, r, kind

    def cost(self):
        if self.kind in ('label',):
            return 0
        if self.op in TRANS:
            return 8
        if self.op == 's_nop':
            return 4 * (int(self.text.split()[1]) + 1)
        return 4


class Mark:
    def __init__(self, kind, arg=None):
        self.kind, self.arg = kind, arg


def I(text, tok=None):
    return Ins(text, tok)


def G(*items):
    out = []
    for it in items:
        if isinstance(it, (list, tuple)):
            out.extend(it)
        else:
            out.append(it)
    return Mark('group', [x if not isinstance(x, str) else Ins(x) for x in out])


def norm(seq):
    out = []
    for x in seq:
        if isinstance(x, str):
            out.append(Ins(x))
        elif isinstance(x, (list, tuple)):
            out.extend(norm(x))
        else:
            out.append(x)
    return out


class Bundle:
    def __init__(self, items, cost=68, need=(), tok=None, delay=0):
        self.items = norm(items); self.cost = cost; self.need = set(need); self.tok = tok; self.delay = delay


def merge(compute, stream, window=450, lat=600, log=None):
    compute = norm(compute)
    out = []
    now = 0; mf_free = 0; pipe = 0
    events = set(); pos = 0; land = {}
    last_of = {}
    for n, b in enumerate(stream):
        if b.tok is not None: last_of[b.tok] = n

    def adv(ins):
        nonlocal now, mf_free
        if isinstance(ins, Ins):
            if ins.kind == 'mfma':
                now = max(now, mf_free); mf_free = now + 16; now += 4
            else:
                now += ins.cost()

    def emit_bundle():
        nonlocal pos, pipe, now
        b = stream[pos]
        missing = b.need - events
        assert not missing, f'bundle {b.tok} needs {missing}'
        for it in b.items:
            if isinstance(it, Mark) and it.kind == 'need':
                for t in it.arg:
                    now = max(now, land.get(t, 0))
            if isinstance(it, Mark) and it.kind == 'free':
                events.add(it.arg)
            out.append(it); adv(it)
        if b.cost:
            pipe = max(pipe, now) + b.cost
        if b.tok is not None: land[b.tok] = pipe + lat
        pos += 1

    def ready():
        if pos >= len(stream): return False
        b = stream[pos]
        if b.need - events: return False
        for it in b.items:
            if isinstance(it, Mark) and it.kind == 'need':
                if any(land.get(t, 0) > now for t in it.arg): return False
        return pipe - now < window

    def walk(item, ingroup=False):
        nonlocal now
        if isinstance(item, Mark):
            if item.kind == 'need':
                tgt = 0
                for t in item.arg:
                    if t in last_of:
                        while pos <= last_of[t]: emit_bundle()
                        tgt = max(tgt, land.get(t, 0))
                while not ingroup and pos < len(stream) and tgt > now and pipe < tgt and not (stream[pos].need - events) and \
                        not any(isinstance(it, Mark) and it.kind == 'need' and any(land.get(t, 0) > tgt for t in it.arg) for it in stream[pos].items):
                    emit_bundle()
                now = max(now, tgt)
                out.append(item)
                if log is not None: log.append((now, 'need', item.arg))
            elif item.kind == 'flush':
                while pos <= last_of[item.arg]: emit_bundle()
            elif item.kind == 'free':
                events.add(item.arg)
            elif item.kind == 'time':
                now += item.arg
            elif item.kind == 'group':
                for x in item.arg: walk(x, True)
            else:
                out.append(item)
        else:
            out.append(item); adv(item)

    for item in compute:
        walk(item)
        k = 0
        while ready() and k < 2:
            emit_bundle(); k += 1
    assert pos == len(stream), f'stream not drained: {pos}/{len(stream)} next {stream[pos].tok} needs {stream[pos].need - events}'
    if log is not None: log.append((now, 'end', None))
    return out


def finalize(items):
    lines = []
    vmq = []
    dsq = []
    smem_out = set()
    hist = []

    def push(ins):
        lines.append(ins.text)
        if ins.kind == 'label':
            return
        wgt = int(ins.text.split()[1]) + 1 if ins.op == 's_nop' else 1
        hist.append((ins, wgt))
        if len(hist) > 24: hist.pop(0)

    def emit_wait(vm=None, lg=None):
        parts = []
        if vm is not None:
            vm = min(vm, 63); parts.append(f'vmcnt({vm})'); del vmq[:max(0, len(vmq) - vm)]
        if lg is not None:
            lg = min(lg, 15); parts.append(f'lgkmcnt({lg})'); del dsq[:max(0, len(dsq) - lg)]
            if lg == 0: smem_out.clear()
        if parts: push(Ins('s_waitcnt ' + ' '.join(parts)))

    def need_count(q, pred):
        idx = -1
        for n, e in enumerate(q):
            if pred(e): idx = n
        return None if idx < 0 else len(q) - 1 - idx

    def hazard(ins):
        need = 0; dist = 0
        R, W = set(ins.r), set(ins.w)
        for p, wgt in reversed(hist):
            pw = set(p.w); req = 0
            if p.kind == 'valu':
                vw = {x for x in pw if x[0] in 'va' and x != 'vcc'}
                sw = pw - vw
                if ins.kind == 'mfma' and vw & R: req = max(req, 2)
                if ins.op.startswith('v_permlane') and vw & R: req = max(req, 2)
                if 'dpp' in ins.text and vw & R: req = max(req, 2)
                if ins.op in ('v_readfirstlane_b32', 'v_readlane_b32') and vw & R: req = max(req, 1)
                if p.op in TRANS and ins.kind in ('valu', 'mfma') and ins.op not in TRANS and vw & R: req = max(req, 1)
                if p.op in TRANS and ins.kind in ('ds', 'vm') and vw & R: req = max(req, 1)
                if ins.kind == 'vm' and sw & R: req = max(req, 5)
                if ins.kind == 'valu' and sw & R: req = max(req, 2)
                if ins.kind in ('salu', 'branch') and sw & (R | {'vcc'} if ins.kind == 'branch' else R): req = max(req, 1)
            elif p.kind == 'mfma':
                if ins.kind == 'mfma':
                    ab = R - set(ins.srcC) if ins.srcC else R
                    if pw & ab: req = max(req, 8)
                    if pw & set(ins.srcC) and list(p.w) != list(ins.srcC): req = max(req, 6)
                    if pw & W and list(p.w) != list(ins.srcC): req = max(req, 6)
                elif ins.kind in ('valu', 'ds', 'vm'):
                    if pw & (R | W): req = max(req, 8)
                    if ins.kind == 'valu' and set(p.srcC) & W: req = max(req, 3)
            elif p.kind == 'salu':
                if 'm0' in pw and 'm0' in R and ins.kind == 'vm': req = max(req, 1)
            elif p.kind == 'vm':
                if set(p.sdata) & W: req = max(req, 2)
            if req > dist: need = max(need, req - dist)
            dist += wgt
            if dist >= 10: break
        return need

    for it in items:
        if isinstance(it, Mark):
            if it.kind == 'need':
                toks = set(it.arg)
                emit_wait(vm=need_count(vmq, lambda e: e[1] in toks))
            elif it.kind == 'waitregs':
                rs = set(it.arg)
                emit_wait(vm=need_count(vmq, lambda e: e[0] & rs), lg=need_count(dsq, lambda e: e[0] & rs))
            elif it.kind == 'waitds':
                if it.arg is None:
                    emit_wait(lg=0 if (dsq or smem_out) else None)
                else:
                    toks = set(it.arg)
                    emit_wait(lg=need_count(dsq, lambda e: e[1] in toks))
            elif it.kind == 'sync':
                vt, dt = it.arg
                vt = set(vt)
                lg = (0 if dsq else None) if dt is None else need_count(dsq, lambda e: e[1] in set(dt))
                emit_wait(vm=need_count(vmq, lambda e: e[1] in vt), lg=lg)
            elif it.kind == 'raw':
                for t in it.arg: push(Ins(t))
            elif it.kind in ('free', 'time', 'flush'):
                pass
            else:
                raise ValueError(it.kind)
            continue
        ins = it
        if ins.kind == 's_waitcnt':
            m = re.search(r'vmcnt\((\d+)\)', ins.text); n = re.search(r'lgkmcnt\((\d+)\)', ins.text)
            emit_wait(vm=int(m.group(1)) if m else None, lg=int(n.group(1)) if n else None)
            continue
        touch = set(ins.r) | set(ins.w)
        vm = need_count(vmq, lambda e: e[0] & touch)
        lg = need_count(dsq, lambda e: e[0] & touch)
        if smem_out & touch: lg = 0
        if lg is not None and smem_out: lg = 0
        if vm is not None or lg is not None: emit_wait(vm, lg)
        h = hazard(ins)
        if h: push(Ins(f's_nop {h - 1}'))
        push(ins)
        if ins.kind == 'vm': vmq.append((set(ins.w), ins.tok))
        elif ins.kind == 'ds': dsq.append((set(ins.w), ins.tok))
        elif ins.kind == 'smem': smem_out |= set(ins.w)
    return lines


def interleave(main, fill, per=2, start=0):
    main = norm(main); fill = norm(fill)
    out = []; k = 0
    for n, m in enumerate(main):
        out.append(m)
        if n >= start:
            c = 0
            while k < len(fill) and c < per:
                out.append(fill[k])
                if isinstance(fill[k], Ins) or fill[k].kind == 'group': c += 1
                k += 1
    out.extend(fill[k:])
    return out
```

```python
import sys, struct, math
from dsl import *

KNAME = 'gated_mix__spectral_fnet__mixer_gmlp__prompt_kernel'

DEFAULT = dict(stamps=False, rot=True, window=450, lat=600, codepf=True, dbg=None, pk=True)


def f2u(x):
    return struct.unpack('<I', struct.pack('<f', x))[0]


def hx(x):
    return hex(x & 0xffffffff)


EPOCH = 0
FLAGB = 0x1000
FLAGT = 0x2000
FLAGC = 0x4000
STAT = 0x10000
STAMP = 0x80000
WBUF = 0x100000
Z2B = 0x200000
HBUF = 0x500000
T1B = 0x800000
DBGB = 0xE00000
WS_SIZE = 0x2000000
OOB = 0x40000000

LA = 0
LB = 73728
LC = 139264
L_REL = LB + 49152
L_GATE = LB + 61440
L_GX = LB + 63488
LDS_BYTES = 163840
L_W = [LB, None, None]

SX, SWIN, SWSP, SH, SWS, SOUT, SWO, SGATE, SBSP, SCODE = 4, 8, 12, 16, 20, 24, 28, 32, 36, 40
sW, sI, sJ, sKH, sTAG, sTO = 64, 65, 66, 67, 68, 69
sKX = [70, 71, 72, 73, 74]
sWB2, sWB1, sT0, sT1, sT2 = 75, 76, 77, 78, 79
sLX, sLW, sLH, sLS = 80, 81, 82, 83
sXB = [84, 85]
sSP = [86, 87, 88, 89]
sZB, sHB = 90, 91
sC1 = 92
sWH = 94
sT3, sT4 = 95, 96
sFC = 97
sWBUF = 98
sT1S = 99
sREL = 101
sLW3 = 100
STAMP0 = 44


def srd(b): return f's[{b}:{b+3}]'


vT = 0; vL = 1
vX = [2, 3]; vW = [4, 5, 6]; vH = [7, 8, 9]; vS = [10, 11]
vLin = 12; vRb = [13, 14]; vRx = [15, 16]; vRs = [17, 18]; vTe, vTo = 19, 20
vGa, vGt = 21, 22; vExW, vExR = 23, 24; vRd = [25, 26, 27]
vBias, vGate, vZs, vTag = 28, 29, 30, 31
vZ = list(range(32, 40))
TMP = 40
POLL = 48
CF = 56
ACC = 64
FR = [128, 160]
Z2 = 192; Z1 = 216
CB = 240
vC0 = 248
vSgn = 250
vQ, vC = 251, 252
vAl, vBe = 253, 254
vL4 = 255
AX = 176


def v(n, k=1): return f'v{n}' if k == 1 else f'v[{n}:{n+k-1}]'
def a(n, k=1): return f'a{n}' if k == 1 else f'a[{n}:{n+k-1}]'
def vr(n, k): return [f'v{x}' for x in range(n, n + k)]


def mfma(d, A, B, c=None):
    return f'v_mfma_f32_16x16x32_bf16 {d}, {A}, {B}, {d if c is None else c}'


class Gen:
    def __init__(self, **kw):
        self.o = dict(DEFAULT); self.o.update(kw)
        self.nlab = 0; self.nstamp = 0; self.stamp_names = []

    def lab(self, s):
        self.nlab += 1
        return f'L_{s}_{self.nlab}'

    def stamp(self, name):
        if not self.o['stamps']: return []
        n = self.nstamp; self.nstamp += 1; self.stamp_names.append(name)
        assert n < 18
        return [G('s_memrealtime s[62:63]', 's_waitcnt lgkmcnt(0)', f's_mov_b32 s{STAMP0+n}, s62')]

    def setup1(self):
        o = self.o
        p = []
        A = p.append
        A('s_cmp_ge_u32 s2, 256'); A('s_cbranch_scc1 L_end')
        A(f's_load_dwordx2 s[{SX}:{SX+1}], s[0:1], 0')
        A('s_load_dwordx16 s[48:63], s[0:1], 48')
        A('s_load_dwordx4 s[44:47], s[0:1], 24')
        A(f'v_lshrrev_b32 v{vT}, 6, v0'.replace(f'v{vT},', 'v2,', 1))
        A(f'v_and_b32 v{vL}, 63, v0')
        A(f'v_readfirstlane_b32 s{sW}, v2')
        A(f's_and_b32 s{sT1}, s2, 7')
        A(f's_lshr_b32 s{sT2}, s2, 3')
        A(f's_lshr_b32 s{sI}, s{sT1}, 1'); A(f's_lshl_b32 s{sI}, s{sI}, 3')
        A(f's_and_b32 s{sT3}, s{sT2}, 7'); A(f's_add_u32 s{sI}, s{sI}, s{sT3}')
        A(f's_and_b32 s{sJ}, s{sT1}, 1'); A(f's_lshl_b32 s{sJ}, s{sJ}, 2')
        A(f's_lshr_b32 s{sT4}, s{sT2}, 3'); A(f's_add_u32 s{sJ}, s{sJ}, s{sT4}')
        A(f's_and_b32 s{sKH}, s{sW}, 1'); A(f's_lshr_b32 s{sWH}, s{sW}, 1')
        if o['rot']:
            A(f's_lshl_b32 s{sT4}, s{sT4}, 1'); A(f's_add_u32 s{sT3}, s{sT3}, s{sT4}')
            A(f's_mul_i32 s{sT4}, s{sT3}, 52'); A(f's_lshr_b32 s{sT4}, s{sT4}, 8'); A(f's_mul_i32 s{sT4}, s{sT4}, 5')
            A(f's_sub_u32 s{sT3}, s{sT3}, s{sT4}')
        else:
            A(f's_mov_b32 s{sT3}, 0')
        A(f's_lshl_b32 s{sKX[0]}, s{sT3}, 7')
        for n in range(1, 5):
            A(f's_add_u32 s{sKX[n]}, s{sKX[n-1]}, 128'); A(f's_cmp_ge_u32 s{sKX[n]}, 640'); A(f's_cselect_b32 s{sKX[n]}, 0, s{sKX[n]}')
        A(f'v_lshrrev_b32 v{vQ}, 4, v{vL}'); A(f'v_and_b32 v{vC}, 15, v{vL}')
        A(f'v_lshlrev_b32 v{vLin}, 4, v{vL}')
        t0, t1, t2 = TMP, TMP + 1, TMP + 2
        A(f'v_and_b32 v{t0}, 7, v{vL}'); A(f'v_xor_b32 v{t0}, v{t0}, v{vQ}'); A(f'v_lshlrev_b32 v{t0}, 4, v{t0}')
        A(f'v_lshrrev_b32 v{t1}, 3, v{vL}')
        A(f's_mov_b32 s{sT1}, 81920')
        A(f'v_mad_u32_u24 v{vX[0]}, v{t1}, s{sT1}, v{t0}')
        A(f'v_xor_b32 v{vX[1]}, 64, v{vX[0]}'); A(f'v_add_u32 v{vX[1]}, {8*81920-1024}, v{vX[1]}')
        A(f'v_lshl_add_u32 v{vS[0]}, v{t1}, 18, v{t0}')
        A(f'v_xor_b32 v{vS[1]}, 64, v{vS[0]}'); A(f'v_add_u32 v{vS[1]}, {8*262144-1024}, v{vS[1]}')
        for x in range(3):
            A(f'v_add_u32 v{t0}, {64*x}, v{vL}')
            A(f'v_mul_u32_u24 v{t1}, 5462, v{t0}'); A(f'v_lshrrev_b32 v{t1}, 16, v{t1}')
            A(f'v_mul_u32_u24 v{t2}, 12, v{t1}'); A(f'v_sub_u32 v{t0}, v{t0}, v{t2}')
            A(f'v_lshrrev_b32 v{t2}, 2, v{t1}'); A(f'v_and_b32 v{t2}, 2, v{t2}'); A(f'v_xor_b32 v{t0}, v{t0}, v{t2}')
            A(f'v_mul_u32_u24 v{t1}, 3072, v{t1}'); A(f'v_lshl_add_u32 v{vW[x]}, v{t0}, 4, v{t1}')
            if x: A(f'v_subrev_u32 v{vW[x]}, {1024*x}, v{vW[x]}')
        A(f's_mul_i32 s{sT1}, s{sI}, 1280'); A(f's_mul_i32 s{sT2}, s{sKH}, 640'); A(f's_add_u32 s{sT1}, s{sT1}, s{sT2}')
        A(f's_mul_i32 s{sT2}, s{sWH}, {32*40960}'); A(f's_add_u32 s{sT1}, s{sT1}, s{sT2}')
        A(f's_mul_i32 s{sT2}, s{sKH}, 40960'); A(f's_add_u32 s{sXB[0]}, s{sT1}, s{sT2}')
        A(f's_sub_u32 s{sT2}, 40960, s{sT2}'); A(f's_add_u32 s{sXB[1]}, s{sT1}, s{sT2}')
        A(f's_mul_i32 s{sT1}, s{sKH}, {320*3072}'); A(f's_mul_i32 s{sT2}, s{sWH}, {32*3072}'); A(f's_add_u32 s{sT1}, s{sT1}, s{sT2}')
        A(f's_mul_i32 s{sT2}, s{sJ}, 192'); A(f's_add_u32 s{sWB1}, s{sT1}, s{sT2}'); A(f's_add_u32 s{sWB2}, s{sWB1}, 1536')
        A(f's_lshl_b32 s{sLX}, s{sW}, 12'); A(f's_add_u32 s{sLX}, s{sLX}, {LB}')
        A(f's_mul_i32 s{sT1}, s{sKH}, 12288'); A(f's_mul_i32 s{sT2}, s{sWH}, 6144'); A(f's_add_u32 s{sLW}, s{sT1}, s{sT2}')
        A(f's_mul_i32 s{sLH}, s{sW}, 3072'); A(f's_add_u32 s{sLH}, s{sLH}, {LB}')
        A(f's_lshl_b32 s{sLS}, s{sW}, 14')
        A(f's_lshl_b32 s{sLW3}, s{sW}, 10')
        A('s_waitcnt lgkmcnt(0)')
        A(f's_mov_b32 s{SX+2}, {2048*1280}'); A(f's_mov_b32 s{SX+3}, 0x20000')
        A(f's_mov_b64 s[{SWIN}:{SWIN+1}], s[48:49]'); A(f's_mov_b32 s{SWIN+2}, {640*3072}'); A(f's_mov_b32 s{SWIN+3}, 0x20000')
        return [G(p), Mark('free', 'go')]

    def setup2(self):
        o = self.o
        p = []
        A = p.append
        for b, src, n in ((SWSP, 50, 2048*4096), (SBSP, 52, 4096), (SWO, 54, 768*1280), (SGATE, 56, 1280), (SOUT, 58, 2048*1280), (SWS, 62, WS_SIZE)):
            A(f's_mov_b64 s[{b}:{b+1}], s[{src}:{src+1}]'); A(f's_mov_b32 s{b+2}, {n}'); A(f's_mov_b32 s{b+3}, 0x20000')
        A(G(f's_cmp_eq_u32 s{sWH}, 0', f's_cselect_b64 s[{SH}:{SH+1}], s[44:45], s[46:47]'))
        A(f's_mov_b32 s{SH+2}, {640*1280}'); A(f's_mov_b32 s{SH+3}, 0x20000')
        p += self.stamp('start')
        t0, t1, t2, t3 = TMP, TMP + 1, TMP + 2, TMP + 3
        A(f'v_mov_b32 v{t3}, 0')
        A(I(f'buffer_load_dword v{vTag}, v{t3}, {srd(SWS)}, 0 offen sc1'))
        if o['codepf']:
            A(G(f's_getpc_b64 s[{SCODE}:{SCODE+1}]', 'L_pc:')); A(f's_mov_b32 s{SCODE+2}, CODE_BYTES'); A(f's_mov_b32 s{SCODE+3}, 0x20000')
            A(f's_lshr_b32 s{sT1}, s2, 3'); A(f's_lshl_b32 s{sT1}, s{sT1}, 2'); A(f's_add_u32 s{sT1}, s{sT1}, s{sW}'); A(f's_lshl_b32 s{sT1}, s{sT1}, 9')
            A(f'v_and_b32 v{t2}, 3, v{vL}'); A(f'v_lshlrev_b32 v{t2}, 7, v{t2}')
            A(I(f'buffer_load_dword v{POLL}, v{t2}, {srd(SCODE)}, s{sT1} offen'))
        A(f's_lshl_b32 s{sT1}, s{sWH}, 5'); A(f's_add_u32 s{sT1}, s{sT1}, s{sKH}'); A(f's_lshl_b32 s{sT1}, s{sT1}, 5'); A(f's_add_u32 s{sT1}, s{sT1}, s{sI}')
        A(f's_lshl_b32 s{sT1}, s{sT1}, 1')
        A(f'v_lshlrev_b32 v{t2}, 7, v{vC}')
        A(I(f'buffer_load_ushort v{vBias}, v{t2}, {srd(SBSP)}, s{sT1} offen'))
        A(f's_mul_i32 s{sT1}, s2, 6554'); A(f's_lshr_b32 s{sT1}, s{sT1}, 16')
        A(f's_mul_i32 s{sT2}, s{sT1}, 10'); A(f's_sub_u32 s{sT2}, s2, s{sT2}')
        A(f's_mul_i32 s{sT3}, s{sT1}, {32*1280}'); A(f's_lshl_b32 s{sT4}, s{sT2}, 7'); A(f's_add_u32 s{sT3}, s{sT3}, s{sT4}')
        A(f's_mul_i32 s{sT4}, s{sW}, {8*1280}'); A(f's_add_u32 s{sT3}, s{sT3}, s{sT4}')
        A(G('s_cmp_lt_u32 s2, 240', f's_cselect_b32 s{sREL}, s{sT3}, {hx(OOB)}'))
        A(f'v_lshrrev_b32 v{t0}, 3, v{vL}'); A(f'v_mul_u32_u24 v{t0}, 1280, v{t0}'); A(f'v_and_b32 v{t1}, 7, v{vL}'); A(f'v_lshl_add_u32 v{vGt}, v{t1}, 4, v{t0}')
        A(Mark('free', 'go2'))
        A(f's_lshl_b32 s{sT2}, s{sT2}, 2'); A(f's_add_u32 s{sT2}, s{sT2}, s{sW}')
        A(f's_mul_i32 s{sT3}, s{sT2}, 52'); A(f's_lshr_b32 s{sT3}, s{sT3}, 8')
        A(f's_mul_i32 s{sT4}, s{sT3}, 5'); A(f's_sub_u32 s{sT2}, s{sT2}, s{sT4}')
        A(f's_mul_i32 s{sT3}, s{sT3}, 120'); A(f's_add_u32 s{sT2}, s{sT2}, s{sT3}')
        A(f's_mul_i32 s{sT3}, s{sT1}, 86'); A(f's_lshr_b32 s{sT3}, s{sT3}, 8')
        A(f's_mul_i32 s{sT4}, s{sT3}, 3'); A(f's_sub_u32 s{sT1}, s{sT1}, s{sT4}')
        A(f's_lshl_b32 s{sT1}, s{sT1}, 3'); A(f's_add_u32 s{sT1}, s{sT1}, s{sT3}'); A(f's_mul_i32 s{sT1}, s{sT1}, 5')
        A(f's_add_u32 s{sT1}, s{sT1}, s{sT2}'); A(f's_lshl_b32 s{sT1}, s{sT1}, 10'); A(f's_add_u32 s{sT1}, s{sT1}, {hx(WBUF)}')
        A(G('s_cmp_lt_u32 s2, 240', f's_cselect_b32 s{sFC}, s{sT1}, {hx(OOB)}'))
        A(f'v_lshrrev_b32 v{t0}, 1, v{vC}'); A(f'v_xor_b32 v{t0}, v{t0}, v{vQ}'); A(f'v_lshlrev_b32 v{t0}, 4, v{t0}')
        A(f'v_lshl_add_u32 v{vRb[0]}, v{vC}, 7, v{t0}'); A(f'v_xor_b32 v{vRb[1]}, 64, v{vRb[0]}')
        for k in range(2):
            A(f'v_add_u32 v{vRx[k]}, s{sLX}, v{vRb[k]}'); A(f'v_add_u32 v{vRs[k]}, s{sLS}, v{vRb[k]}')
        A(f'v_bfe_u32 v{t0}, v{vL}, 2, 2'); A(f'v_lshl_add_u32 v{t0}, v{vQ}, 3, v{t0}'); A(f'v_mul_u32_u24 v{t0}, 192, v{t0}')
        A(f'v_and_b32 v{t1}, 3, v{vL}'); A(f'v_lshl_add_u32 v{t0}, v{t1}, 3, v{t0}')
        A(f's_mul_i32 s{sT1}, s{sKH}, 12288'); A(f'v_add_u32 v{t0}, s{sT1}, v{t0}')
        A(f'v_and_b32 v{t1}, 1, v{vQ}'); A(f'v_lshlrev_b32 v{t1}, 5, v{t1}')
        A(f'v_add_u32 v{vTe}, v{t0}, v{t1}'); A(f'v_sub_u32 v{vTo}, v{t0}, v{t1}')
        A(f's_mul_i32 s{sT1}, s{sKH}, 640'); A(f's_add_u32 s{sT1}, s{sT1}, {L_GATE}'); A(f'v_lshl_add_u32 v{vGa}, v{vQ}, 4, s{sT1}')
        A(f's_mul_i32 s{sT1}, s{sW}, 6144'); A(f's_add_u32 s{sT1}, s{sT1}, {LC}'); A(f'v_add_u32 v{vExR}, s{sT1}, v{vLin}')
        A(f's_xor_b32 s{sT1}, s{sW}, 1'); A(f's_mul_i32 s{sT1}, s{sT1}, 6144'); A(f's_add_u32 s{sT1}, s{sT1}, {LC}'); A(f'v_add_u32 v{vExW}, s{sT1}, v{vLin}')
        for u in range(1, 4):
            A(f's_add_u32 s{sT1}, s{sW}, {u}'); A(f's_and_b32 s{sT1}, s{sT1}, 3'); A(f's_mul_i32 s{sT1}, s{sT1}, 6144')
            A(f's_add_u32 s{sT1}, s{sT1}, {LC + (u-1)*2048}'); A(f'v_add_u32 v{vRd[u-1]}, s{sT1}, v{vLin}')
        A(f's_mul_i32 s{sT1}, s{sKH}, 24'); A(f's_mul_i32 s{sT2}, s{sJ}, {40*1280}')
        for y in range(3):
            A(f'v_lshrrev_b32 v{t0}, 3, v{vL}'); A(f'v_add_u32 v{t0}, s{sT1}, v{t0}')
            if y: A(f'v_add_u32 v{t0}, {8*y}, v{t0}')
            A(f'v_lshrrev_b32 v{t1}, 1, v{t0}'); A(f'v_xor_b32 v{t1}, v{t1}, v{vL}'); A(f'v_and_b32 v{t1}, 7, v{t1}')
            A(f'v_min_u32 v{t0}, 40, v{t0}'); A(f'v_mul_u32_u24 v{t0}, 1280, v{t0}'); A(f'v_lshl_add_u32 v{t0}, v{t1}, 4, v{t0}')
            A(f'v_add_u32 v{vH[y]}, s{sT2}, v{t0}')
            if y: A(f'v_subrev_u32 v{vH[y]}, {1024*y}, v{vH[y]}')
        for u in range(4):
            A(f's_add_u32 s{sT1}, s{sW}, {u}'); A(f's_and_b32 s{sT2}, s{sT1}, 1'); A(f's_bfe_u32 s{sT1}, s{sT1}, 0x10001')
            A(f's_lshl_b32 s{sT1}, s{sT1}, 5'); A(f's_add_u32 s{sT1}, s{sT1}, s{sT2}'); A(f's_lshl_b32 s{sT1}, s{sT1}, 5'); A(f's_add_u32 s{sT1}, s{sT1}, s{sI}')
            A(f's_lshl_b32 s{sT1}, s{sT1}, 12'); A(f's_add_u32 s{sSP[u]}, s{sT1}, s{sLW3}')
        A(f's_mul_i32 s{sT1}, s{sJ}, 12'); A(f's_lshl_b32 s{sT2}, s{sWH}, 1'); A(f's_add_u32 s{sT1}, s{sT1}, s{sT2}'); A(f's_lshl_b32 s{sT1}, s{sT1}, 15')
        A(f's_lshl_b32 s{sT2}, s{sKH}, 14'); A(f's_add_u32 s{sT1}, s{sT1}, s{sT2}'); A(f's_add_u32 s{sZB}, s{sT1}, {hx(Z2B)}')
        A(f's_lshl_b32 s{sT1}, s{sI}, 2'); A(f's_add_u32 s{sT1}, s{sT1}, s{sW}'); A(f's_mul_i32 s{sT1}, s{sT1}, 24576'); A(f's_add_u32 s{sHB}, s{sT1}, {hx(HBUF)}')
        A(f's_mul_i32 s{sT1}, s{sJ}, 122880'); A(f's_add_u32 s{sT1}, s{sT1}, s{sLW3}'); A(f's_add_u32 s{sWBUF}, s{sT1}, {hx(WBUF)}')
        A(f's_lshl_b32 s{sT1}, s{sWH}, 5'); A(f's_add_u32 s{sT1}, s{sT1}, s{sI}'); A(f's_lshl_b32 s{sT1}, s{sT1}, 3'); A(f's_add_u32 s{sT1}, s{sT1}, s{sJ}')
        A(f's_mul_i32 s{sT1}, s{sT1}, 10240'); A(f's_mul_i32 s{sT2}, s{sKH}, 5120'); A(f's_add_u32 s{sT1}, s{sT1}, s{sT2}'); A(f's_add_u32 s{sT1S}, s{sT1}, {hx(T1B)}')
        A(f'v_and_b32 v{t0}, 1, v{vQ}'); A(f'v_lshlrev_b32 v{t0}, 3, v{t0}'); A(f'v_lshrrev_b32 v{t1}, 1, v{vQ}'); A(f'v_lshl_add_u32 v{t0}, v{t1}, 2, v{t0}')
        A(f'v_and_b32 v{t1}, 3, v{vL}'); A(f'v_or_b32 v{t0}, v{t0}, v{t1}')
        A(f's_and_b32 s{sT1}, s{sI}, 11'); A(f'v_xor_b32 v{t0}, s{sT1}, v{t0}'); A(f'v_lshlrev_b32 v{t0}, 4, v{t0}')
        A(f'v_lshrrev_b32 v{t1}, 2, v{vC}'); A(f'v_lshl_add_u32 v{t0}, v{t1}, 13, v{t0}')
        A(f's_lshl_b32 s{sT1}, s{sI}, 8'); A(f'v_add_u32 v{vZs}, s{sT1}, v{t0}')
        A(f'v_lshlrev_b32 v{vL4}, 2, v{vL}')
        c0 = -2.0 * math.sqrt(2.0 / math.pi) * math.log2(math.e)
        A(f's_mov_b32 s{sC1}, {hx(f2u(c0*0.044715))}'); A(f's_mov_b32 s{sC1+1}, s{sC1}')
        A(f'v_mov_b32 v{vC0}, {hx(f2u(c0))}'); A(f'v_mov_b32 v{vC0+1}, v{vC0}')
        A(f's_mov_b32 s{sTO}, 200000')
        A(f'v_and_b32 v{t0}, 1, v{vC}'); A(f'v_lshlrev_b32 v{t0}, 31, v{t0}'); A(f'v_or_b32 v{t0}, 1.0, v{t0}')
        A(G(f's_cmp_eq_u32 s{sKH}, 0', 's_cselect_b64 vcc, -1, 0',
            f'v_cndmask_b32 v{vAl}, v{t0}, 1.0, vcc', f'v_cndmask_b32 v{vBe}, 1.0, v{t0}, vcc'))
        A(f's_lshl_b32 s{sT1}, s{sW}, 4'); A(f'v_add_u32 v{t0}, s{sT1}, v{vC}')
        A(f'v_and_b32 v{t1}, 1, v{vQ}'); A(f'v_lshlrev_b32 v{t1}, 4, v{t1}'); A(f'v_lshrrev_b32 v{t2}, 1, v{vQ}'); A(f'v_add_u32 v{t1}, v{t1}, v{t2}')
        A(f'v_lshlrev_b32 v{t1}, 5, v{t1}'); A(f'v_add_u32 v{t1}, s{sI}, v{t1}')
        A(f'v_mul_u32_u24 v{t1}, v{t0}, v{t1}'); A(f'v_lshlrev_b32 v{t2}, 6, v{t0}')
        A(f'v_and_b32 v{vSgn}, 1, v{t0}'); A(f'v_mul_u32_u24 v{vSgn}, 0x8000, v{vSgn}'); A(f'v_lshl_or_b32 v{vSgn}, v{vSgn}, 16, v{vSgn}')
        cs, sn = ACC, ACC + 8
        for x in range(8):
            A(f'v_and_b32 v{t3}, 0x7ff, v{t1}'); A(f'v_cvt_f32_u32 v{t3}, v{t3}'); A(f'v_mul_f32 v{t3}, {hx(f2u(1/2048))}, v{t3}')
            A(f'v_cos_f32 v{cs+x}, v{t3}'); A(f'v_sin_f32 v{sn+x}, v{t3}')
            if x < 7: A(f'v_add_u32 v{t1}, v{t1}, v{t2}')
        for x in range(4):
            A(f'v_cvt_pk_bf16_f32 v{CB+x}, v{cs+2*x}, v{cs+2*x+1}'); A(f'v_cvt_pk_bf16_f32 v{CB+4+x}, v{sn+2*x}, v{sn+2*x+1}')
        A(f's_lshl_b32 s{sT1}, s{sWH}, 4'); A(f'v_add_u32 v{t0}, s{sT1}, v{vC}')
        A(f'v_lshrrev_b32 v{t1}, 1, v{vQ}'); A(f'v_lshlrev_b32 v{t1}, 3, v{t1}'); A(f'v_mul_u32_u24 v{t1}, v{t0}, v{t1}')
        A(f'v_and_b32 v{t2}, 1, v{vQ}'); A(f'v_mul_u32_u24 v{t2}, 24, v{t2}'); A(f'v_add_u32 v{t1}, v{t1}, v{t2}')
        for x in range(8):
            A(f'v_and_b32 v{t3}, 31, v{t1}'); A(f'v_cvt_f32_u32 v{t3}, v{t3}'); A(f'v_mul_f32 v{t3}, {hx(f2u(1/32))}, v{t3}')
            A(f'v_cos_f32 v{cs+x}, v{t3}')
            if x < 7: A(f'v_add_u32 v{t1}, v{t1}, v{t0}')
        A(f'v_and_b32 v{t0}, 1, v{t0}'); A(f'v_mul_u32_u24 v{t0}, 0x8000, v{t0}'); A(f'v_lshl_or_b32 v{t0}, v{t0}, 16, v{t0}')
        for x in range(4):
            A(f'v_cvt_pk_bf16_f32 v{CF+x}, v{cs+2*x}, v{cs+2*x+1}')
        for x in range(4):
            A(f'v_xor_b32 v{CF+4+x}, v{CF+x}, v{t0}')
        return p

    def tag(self):
        return [f'v_readfirstlane_b32 s{sTAG}, v{vTag}', f's_mul_i32 s{sTAG}, s{sTAG}, 0x9e3779b1', f's_add_u32 s{sTAG}, s{sTAG}, 0x7f4a7c15',
                f'v_mov_b32 v{vTag}, s{sTAG}', f'v_lshlrev_b32 v{vBias}, 16, v{vBias}', Mark('waitregs', [f'v{POLL}'])]

    def stream(self):
        S = []
        for n in range(10):
            slot = n % 3; kp = n % 5; tok = f'S{n}'
            need = ['go'] if n < 3 else [f'W{n-3}']
            base = sWB2 if n < 5 else sWB1
            xs, ws = [], []
            if n < 5:
                for u in range(2):
                    xs.append(Bundle([f's_add_u32 s{sT0}, s{sXB[u]}, s{sKX[kp]}', f's_add_u32 m0, s{sLX}, {slot*16384 + u*2048}', 's_nop 0',
                                      I(f'buffer_load_dwordx4 v{vX[0]}, {srd(SX)}, s{sT0} offen lds', tok=tok)], 68, need, tok))
                    xs.append(Bundle([I(f'buffer_load_dwordx4 v{vX[1]}, {srd(SX)}, s{sT0} offen offset:1024 lds', tok=tok)], 68, need, tok))
            for g in range(2):
                for x in range(3):
                    pre = []
                    if x == 0:
                        pre = [f's_mul_i32 s{sT0}, s{sKX[kp]}, 1536', f's_add_u32 m0, s{sLW}, {slot*24576 + g*3072}', f's_add_u32 s{sT0}, s{sT0}, s{base}']
                        if g: pre.append(f's_add_u32 s{sT0}, s{sT0}, {16*3072}')
                    ws.append(Bundle(pre + [I(f'buffer_load_dwordx4 v{vW[x]}, {srd(SWIN)}, s{sT0} offen offset:{1024*x} lds', tok=tok)], 90, need, tok))
            S += xs + ws
            if n == 0:
                S.append(Bundle([f's_mul_i32 s{sT0}, s{sW}, 320', f's_add_u32 m0, s{sT0}, {L_GATE}', 's_mov_b64 exec, 0xfffff',
                                 I(f'buffer_load_dwordx4 v{vLin}, {srd(SGATE)}, s{sT0} offen lds', tok='gate'), 's_mov_b64 exec, -1'], 30, ['go2'], 'gate'))
                S.append(Bundle([f's_add_u32 m0, s{sLW3}, {L_REL}', 's_nop 0',
                                 I(f'buffer_load_dwordx4 v{vGt}, {srd(SWO)}, s{sREL} offen lds', tok='rel')], 68, ['go2'], 'rel'))
        for n in range(5):
            for y in range(3):
                pre = [f's_add_u32 m0, s{sLH}, {n*12288}', 's_nop 0'] if y == 0 else []
                S.append(Bundle(pre + [I(f'buffer_load_dwordx4 v{vH[y]}, {srd(SH)}, s{sKX[n]} offen offset:{1024*y} lds', tok=f'H{n}')], 62, ['Xdead'], f'H{n}'))
        NB = 5
        def consume(n):
            kp, u = n >> 2, n & 3; slot = n % 8
            need = ['XregsDead'] if 32*kp + 8*u + 8 > AX else []
            return Bundle([Mark('need', [f'P{n}'])] +
                          [I(f'ds_read_b128 {a(32*kp + 8*u + 4*k, 4)}, v{vRs[k]} offset:{slot*2048}', tok=f'Pr{n}') for k in range(2)], 0, need, f'Pc{n}')
        for n in range(32):
            kp, u = n >> 2, n & 3; slot = n % 8; tok = f'P{n}'
            pre = [Mark('waitds', [f'Pr{n-8}'])] if n >= 8 else []
            S.append(Bundle(pre + [f's_add_u32 s{sT0}, s{sSP[u]}, {128*kp}', f's_add_u32 m0, s{sLS}, {slot*2048}', 's_nop 0',
                                   I(f'buffer_load_dwordx4 v{vS[0]}, {srd(SWSP)}, s{sT0} offen lds', tok=tok)], 68, ['Wdead'], tok))
            S.append(Bundle([I(f'buffer_load_dwordx4 v{vS[1]}, {srd(SWSP)}, s{sT0} offen offset:1024 lds', tok=tok)], 68, ['Wdead'], tok))
            if n >= NB: S.append(consume(n - NB))
        for n in range(32 - NB, 32): S.append(consume(n))
        for sg in range(12):
            p, ga, pi = sg >> 2, (sg >> 1) & 1, sg & 1; slot = sg & 1; tok = f'Z{sg}'
            need = ['flagB'] + ([f'Zf{sg-2}'] if sg >= 2 else [])
            for x in range(8):
                pre = []
                if x == 0 and sg < 2: pre.append(Mark('waitds', [f'Pr{n}' for n in range(32)]))
                if x % 4 == 0:
                    pre += [f's_add_u32 s{sT0}, s{sZB}, {p*131072 + pi*32768 + ga*8192 + x*1024}', f's_add_u32 m0, s{sLS}, {slot*8192 + x*1024}', 's_nop 0']
                S.append(Bundle(pre + [I(f'buffer_load_dwordx4 v{vLin}, {srd(SWS)}, s{sT0} offen offset:{(x%4)*1024} sc1 lds', tok=tok)], 68, need, tok))
        for n in range(3):
            for x in range(10):
                unit = x * 4096
                la = self.l_w(n, unit)
                need = ['Bfree'] if la >= 65536 else ['Afree']
                S.append(Bundle([f's_add_u32 s{sT0}, s{sWBUF}, {n*40960 + unit}', f's_add_u32 m0, s{sLW3}, {la}', 's_nop 0',
                                 I(f'buffer_load_dwordx4 v{vLin}, {srd(SWS)}, s{sT0} offen sc1 lds', tok=f'O{n}')], 68, need, f'O{n}'))
        for n in range(2):
            for k in range(8):
                kk = 8*n + k
                pre = [f's_add_u32 s{sT0}, s{sHB}, {kk*1024}'] if k % 4 == 0 else []
                S.append(Bundle(pre + [I(f'buffer_load_dwordx4 {a(4*kk, 4)}, v{vLin}, {srd(SWS)}, s{sT0} offen offset:{(k%4)*1024} sc1', tok=f'h{n}')], 68, [f'flagC{n}'], f'h{n}'))
        for x in range(5):
            pre = []
            if x in (0, 4):
                pre = [f's_mul_i32 s{sT0}, s{sW}, 5120', f's_add_u32 m0, s{sT0}, {LC + x*1024}', f's_add_u32 s{sT0}, s{sT1S}, {x*1024}']
            S.append(Bundle(pre + [I(f'buffer_load_dwordx4 v{vLin}, {srd(SWS)}, s{sT0} offen offset:{(x%4)*1024} sc1 lds', tok='T')], 68, ['flagT', 'Cfree'], 'T'))
        for k in range(8):
            kk = 16 + k
            pre = [f's_add_u32 s{sT0}, s{sHB}, {kk*1024}'] if k % 4 == 0 else []
            S.append(Bundle(pre + [I(f'buffer_load_dwordx4 {a(4*kk, 4)}, v{vLin}, {srd(SWS)}, s{sT0} offen offset:{(k%4)*1024} sc1', tok='h2')], 68, ['flagC2'], 'h2'))
        return S

    def l_w(self, n, off):
        x = n * 40960 + off
        return 65536 + x if x < LC - 65536 else x - (LC - 65536)

    def poll(self, load, regs, mask=None):
        chk, ok = self.lab('chk'), self.lab('ok')
        p = [Mark('waitregs', regs), f'{chk}:']
        p.append(f'v_cmp_ne_u32 vcc, s{sTAG}, {regs[0]}')
        for r in regs[1:]:
            p += [f'v_cmp_ne_u32 s[{sT3+1}:{sT3+2}], s{sTAG}, {r}'.replace(f's[{sT3+1}:{sT3+2}]', 's[2:3]'), 's_or_b64 vcc, vcc, s[2:3]']
        if mask is not None: p.append(f's_and_b64 vcc, vcc, {mask}')
        p.append(f's_cbranch_vccz {ok}')
        p.append(Mark('raw', [f's_cmp_eq_u32 s{sTO}, 0', f's_cbranch_scc1 {ok}', f's_sub_u32 s{sTO}, s{sTO}, 1'] + load +
                      ['s_waitcnt vmcnt(0)', f's_branch {chk}']))
        p.append(f'{ok}:')
        return G(p)

    def flag_store(self, toks, soff):
        return G(Mark('need', toks), f'v_mov_b32 v{vT}, 0', 's_mov_b64 exec, 1',
                 f'buffer_store_dword v{vTag}, v{vT}, {srd(SWS)}, s{soff} offen sc1', 's_mov_b64 exec, -1')

    def gemm(self, kind):
        def acc(u, T):
            if kind == 'z2': b = Z2 if u == 0 else ACC
            elif kind == 'z1': b = Z1 if u == 0 else ACC
            else: b = ACC + 24 if u == 0 else ACC
            return v(b + 4*T, 4)
        st0 = {'z2': 0, 'z1': 5, 'A': 0}[kind]
        def tok(n): return f'H{n}' if kind == 'A' else f'S{st0+n}'
        def reads(ks):
            n, k = ks >> 1, ks & 1; fr = FR[ks & 1]; out = []
            if kind == 'A':
                for T in range(6):
                    out.append(f'ds_read_b128 {v(fr+4*T, 4)}, v{vRx[k]} offset:{n*12288 + T*2048}')
                return out
            slot = (st0 + n) % 3
            if kind == 'z2':
                for u in range(2):
                    out.append(f'ds_read_b128 {a(AX + (2*ks+u)*4, 4)}, v{vRx[k]} offset:{slot*16384 + u*2048}')
            for T in range(6):
                for hf in range(2):
                    out.append(f'ds_read_b64_tr_b16 {v(fr+4*T+2*hf, 2)}, v{vTo if T & 1 else vTe} offset:{slot*24576 + k*6144 + hf*768 + 32*T}')
            if kind == 'z1':
                if k == 0: out.insert(0, f'v_add_u32 v{vGt}, s{sKX[n]}, v{vGa}')
                out.append(f'ds_read_b128 {v(fr+24, 4)}, v{vGt} offset:{64*k}')
            return out
        def mf(ks):
            fr = FR[ks & 1]; out = []
            c = '0' if ks == 0 else None
            for T in range(6):
                for u in range(2):
                    x = a(AX + (2*ks+u)*4, 4)
                    out.append(mfma(acc(u, T), x, v(fr+4*T, 4), c) if kind == 'A' else mfma(acc(u, T), v(fr+4*T, 4), x, c))
            if kind == 'z1':
                for u in range(2):
                    out.append(mfma(v(ACC+48+4*u, 4), v(fr+24, 4), a(AX + (2*ks+u)*4, 4), c))
            return out
        p = []
        if kind == 'A':
            p += [Mark('need', [f'H{n}' for n in range(5)]), 's_barrier']
        else:
            p += [Mark('need', [tok(0)] + (['gate', 'rel'] if kind == 'z2' else [])), 's_barrier']
        if kind == 'z2': p += self.stamp('S0 landed')
        p += reads(0)
        for ks in range(10):
            n, k = ks >> 1, ks & 1
            p.append(Mark('waitds', None))
            if k == 1 and kind != 'A':
                if n < 4: p += [Mark('need', [tok(n+1)])]
                if n < 4 or True:
                    p += ['s_barrier', Mark('free', f'W{st0+n}')]
                if n == 4 and kind == 'z2': p.append(Mark('free', 'Xdead'))
                if n == 4 and kind == 'z1': p.append(Mark('free', 'Wdead'))
            fill = reads(ks+1) if ks < 9 else []
            if kind == 'z2' and ks == 1: fill = fill + self.relayout1()
            if kind == 'z2' and ks == 3: fill = fill + self.relayout2()
            if kind == 'z1' and ks == 8: fill = fill + self.stats_load()
            p += interleave(mf(ks), fill, per=2)
        if kind == 'A': p.append(Mark('free', 'XregsDead'))
        return p

    def relayout1(self):
        t0, t1 = TMP, TMP + 1
        return [f'v_bfe_u32 v{t0}, v{vL}, 2, 2', f'v_lshl_add_u32 v{t0}, v{vQ}, 2, v{t0}', f'v_lshlrev_b32 v{t0}, 7, v{t0}',
                f'v_and_b32 v{t1}, 3, v{vL}', f'v_lshl_add_u32 v{t0}, v{t1}, 3, v{t0}',
                f's_lshl_b32 s{sT1}, s{sW}, 5', f's_add_u32 s{sT1}, s{sT1}, {L_REL}', f'v_add_u32 v{t0}, s{sT1}, v{t0}',
                f'ds_read_b64_tr_b16 {v(TMP+4, 2)}, v{t0}', f'ds_read_b64_tr_b16 {v(TMP+6, 2)}, v{t0} offset:2048']

    def relayout2(self):
        return [I(f'buffer_store_dwordx4 {v(TMP+4, 4)}, v{vLin}, {srd(SWS)}, s{sFC} offen sc1', tok='relst'),
                f's_lshl_b32 s{sT1}, s{sI}, 2', f's_add_u32 s{sT1}, s{sT1}, s{sW}', f's_lshl_b32 s{sT1}, s{sT1}, 7', f's_add_u32 s{sFC}, s{sT1}, {FLAGC}']

    def exchange(self, src, recv, extra=False):
        p = [f'ds_write_b128 v{vExW}, {v(src+4*T, 4)} offset:{T*1024}' for T in range(6)]
        if extra:
            p += [f's_xor_b32 s{sT1}, s{sW}, 1', f's_lshl_b32 s{sT1}, s{sT1}, 8', f's_add_u32 s{sT1}, s{sT1}, {L_GX}', f'v_add_u32 v{vT}, s{sT1}, v{vL4}',
                  f'ds_write_b32 v{vT}, v{ACC+52}', f'v_xor_b32 v{vT}, 256, v{vT}']
        p += [Mark('waitds', None), 's_barrier']
        p += [f'ds_read_b128 {v(recv+4*T, 4)}, v{vExR} offset:{T*1024}' for T in range(6)]
        if extra: p.append(f'ds_read_b32 v{ACC+53}, v{vT}')
        return p

    def gelu(self, z, recv, tmp):
        p = []
        if self.o['pk']:
            for T in range(0, 24, 4):
                for x in (T, T + 2): p.append(f'v_pk_add_f32 {v(z+x, 2)}, {v(z+x, 2)}, {v(recv+x, 2)}')
                for x in (T, T + 2): p.append(f'v_pk_mul_f32 {v(tmp+x, 2)}, {v(z+x, 2)}, {v(z+x, 2)}')
                for x in (T, T + 2): p.append(f'v_pk_fma_f32 {v(tmp+x, 2)}, {v(tmp+x, 2)}, s[{sC1}:{sC1+1}], {v(vC0, 2)}')
                for x in (T, T + 2): p.append(f'v_pk_mul_f32 {v(tmp+x, 2)}, {v(tmp+x, 2)}, {v(z+x, 2)}')
                for x in range(T, T + 4): p.append(f'v_exp_f32 v{tmp+x}, v{tmp+x}')
                for x in (T, T + 2): p.append(f'v_pk_add_f32 {v(tmp+x, 2)}, {v(tmp+x, 2)}, 1.0 op_sel_hi:[1,0]')
                for x in range(T, T + 4): p.append(f'v_rcp_f32 v{tmp+x}, v{tmp+x}')
                for x in (T, T + 2): p.append(f'v_pk_mul_f32 {v(z+x, 2)}, {v(z+x, 2)}, {v(tmp+x, 2)}')
        else:
            for T in range(0, 24, 4):
                R = range(T, T + 4)
                for x in R: p.append(f'v_add_f32 v{z+x}, v{z+x}, v{recv+x}')
                for x in R: p.append(f'v_mul_f32 v{tmp+x}, v{z+x}, v{z+x}')
                for x in R: p.append(f'v_fma_f32 v{tmp+x}, v{tmp+x}, s{sC1}, v{vC0}')
                for x in R: p.append(f'v_mul_f32 v{tmp+x}, v{tmp+x}, v{z+x}')
                for x in R: p.append(f'v_exp_f32 v{tmp+x}, v{tmp+x}')
                for x in R: p.append(f'v_add_f32 v{tmp+x}, 1.0, v{tmp+x}')
                for x in R: p.append(f'v_rcp_f32 v{tmp+x}, v{tmp+x}')
                for x in R: p.append(f'v_mul_f32 v{z+x}, v{z+x}, v{tmp+x}')
        return p

    def allred_q(self, x, t):
        return [f'v_mov_b32 v{t}, v{x}', f'v_permlane32_swap_b32 v{t}, v{x}', f'v_add_f32 v{x}, v{x}, v{t}',
                f'v_mov_b32 v{t}, v{x}', f'v_permlane16_swap_b32 v{t}, v{x}', f'v_add_f32 v{x}, v{x}, v{t}']

    def stats_publish(self):
        s, q = TMP, TMP + 2
        p = [f'v_pk_add_f32 {v(s, 2)}, {v(Z2, 2)}, {v(Z2+2, 2)}', f'v_pk_mul_f32 {v(q, 2)}, {v(Z2, 2)}, {v(Z2, 2)}',
             f'v_pk_fma_f32 {v(q, 2)}, {v(Z2+2, 2)}, {v(Z2+2, 2)}, {v(q, 2)}']
        for x in range(4, 24, 2):
            p += [f'v_pk_add_f32 {v(s, 2)}, {v(s, 2)}, {v(Z2+x, 2)}', f'v_pk_fma_f32 {v(q, 2)}, {v(Z2+x, 2)}, {v(Z2+x, 2)}, {v(q, 2)}']
        p += [f'v_add_f32 v{s}, v{s}, v{s+1}', f'v_add_f32 v{q}, v{q}, v{q+1}']
        r1, r2 = self.allred_q(s, TMP + 4), self.allred_q(q, TMP + 5)
        for x, y in zip(r1, r2): p += [x, y]
        p += [f'v_mov_b32 v{s+1}, s{sTAG}', f'v_mov_b32 v{q+1}, s{sTAG}']
        p += [f's_lshl_b32 s{sT1}, s{sI}, 2', f's_add_u32 s{sT1}, s{sT1}, s{sW}', f's_lshl_b32 s{sT1}, s{sT1}, 11', f's_add_u32 s{sT3}, s{sT1}, {STAT}',
              f's_lshl_b32 s{sT1}, s{sJ}, 8', f's_add_u32 s{sT1}, s{sT1}, s{sT3}']
        p.append(G(Mark('need', ['relst']), 's_mov_b64 exec, 0xffff', f'buffer_store_dwordx4 {v(TMP, 4)}, v{vLin}, {srd(SWS)}, s{sT1} offen sc1', 's_mov_b64 exec, -1'))
        return p

    def stat_loads(self):
        return [f'buffer_load_dwordx4 {v(POLL, 4)}, v{vLin}, {srd(SWS)}, s{sT3} offen sc1',
                f'buffer_load_dwordx4 {v(POLL+4, 4)}, v{vLin}, {srd(SWS)}, s{sT3} offen offset:1024 sc1']

    def stats_load(self):
        return self.stat_loads()

    def normalize_publish(self):
        p = [self.poll(self.stat_loads(), [f'v{POLL+1}', f'v{POLL+3}', f'v{POLL+5}', f'v{POLL+7}'])]
        p += self.stamp('stats ok')
        s, q = TMP, TMP + 2
        p += [f'v_add_f32 v{s}, v{POLL}, v{POLL+4}', f'v_add_f32 v{q}, v{POLL+2}, v{POLL+6}']
        r1, r2 = self.allred_q(s, TMP + 4), self.allred_q(q, TMP + 5)
        for x, y in zip(r1, r2): p += [x, y]
        inv = hx(f2u(1 / 768))
        p += [f'v_mul_f32 v{s}, {inv}, v{s}', f'v_mul_f32 v{q}, {inv}, v{q}',
              f'v_fma_f32 v{q}, -v{s}, v{s}, v{q}', f'v_max_f32 v{q}, 0, v{q}', f'v_add_f32 v{q}, {hx(f2u(1e-5))}, v{q}', f'v_rsq_f32 v{q}, v{q}',
              f'v_mul_f32 v{s}, v{s}, v{q}', f'v_xor_b32 v{s}, 0x80000000, v{s}']
        p += [f's_mul_i32 s{sT1}, s{sJ}, 12', f's_add_u32 s{sT1}, s{sT1}, s{sW}', f's_lshl_b32 s{sT1}, s{sT1}, 15', f's_add_u32 s{sT1}, s{sT1}, {hx(Z2B)}']
        for pp in range(3):
            b = Z2 + 8*pp; d = FR[1] + 4*pp
            for x in range(0, 8, 2):
                p.append(f'v_pk_fma_f32 {v(b+x, 2)}, {v(b+x, 2)}, {v(q, 2)}, {v(s, 2)} op_sel_hi:[1,0,0]')
            for x in range(4): p.append(f'v_cvt_pk_bf16_f32 v{d+x}, v{b+2*x}, v{b+2*x+1}')
            p += [f'v_permlane16_swap_b32 v{d}, v{d+2}', f'v_permlane16_swap_b32 v{d+1}, v{d+3}']
            p.append(I(f'buffer_store_dwordx4 {v(d, 4)}, v{vZs}, {srd(SWS)}, s{sT1} offen sc1', tok='z2st'))
            if pp < 2: p.append(f's_add_u32 s{sT1}, s{sT1}, 131072')
        return p

    def flagB_addr(self):
        return [f's_lshl_b32 s{sT3}, s{sJ}, 1', f's_add_u32 s{sT3}, s{sT3}, s{sWH}', f's_lshl_b32 s{sT3}, s{sT3}, 8', f's_add_u32 s{sT3}, s{sT3}, {FLAGB}',
                f's_lshl_b32 s{sT1}, s{sKH}, 5', f's_add_u32 s{sT1}, s{sT1}, s{sI}', f's_lshl_b32 s{sT1}, s{sT1}, 2', f's_add_u32 s{sT1}, s{sT1}, s{sT3}']

    def gate(self):
        return [f'v_add_f32 v{vGate}, v{ACC+48}, v{ACC+53}', f'v_mul_f32 v{vGate}, {hx(f2u(-math.log2(math.e)))}, v{vGate}', f'v_exp_f32 v{vGate}, v{vGate}',
                f'v_add_f32 v{vGate}, 1.0, v{vGate}', f'v_rcp_f32 v{vGate}, v{vGate}']

    def stepB(self):
        own, recv = ACC + 24, Z2
        t0, t1, t2 = TMP, TMP + 1, TMP + 2
        p = []
        ad = []
        A = ad.append
        wr = vGa
        A(f's_lshl_b32 s{sT1}, s{sW}, 1'); A(f'v_lshrrev_b32 v{t0}, 1, v{vQ}'); A(f'v_add_u32 v{t0}, s{sT1}, v{t0}')
        A(f'v_lshrrev_b32 v{t1}, 1, v{vC}'); A(f'v_xor_b32 v{t0}, v{t0}, v{t1}'); A(f'v_lshlrev_b32 v{t0}, 4, v{t0}')
        A(f'v_lshl_add_u32 v{t0}, v{vC}, 7, v{t0}'); A(f'v_and_b32 v{t1}, 1, v{vQ}'); A(f'v_lshl_add_u32 v{t0}, v{t1}, 3, v{t0}'); A(f'v_add_u32 v{wr}, {LB}, v{t0}')
        def pat(dst, Rreg):
            A(f'v_lshrrev_b32 v{t1}, 1, v{Rreg}'); A(f'v_xor_b32 v{t1}, v{t1}, v{vQ}'); A(f'v_and_b32 v{t1}, 7, v{t1}'); A(f'v_lshlrev_b32 v{t1}, 4, v{t1}')
            A(f'v_lshl_add_u32 v{t1}, v{Rreg}, 7, v{t1}'); A(f'v_add_u32 v{dst}, {LB}, v{t1}'); A(f'v_xor_b32 v{dst+1}, 64, v{dst}')
        A(f'v_sub_u32 v{t0}, 16, v{vC}'); pat(vZ[0], t0)
        A(f'v_add_u32 v{t0}, 32, v{vC}'); A(f'v_sub_u32 v{t2}, 48, v{vC}')
        A(G(f'v_cmp_gt_u32 vcc, 8, v{vC}', f'v_cndmask_b32 v{t0}, v{t2}, v{t0}, vcc', f'v_mov_b32 v{t2}, {96*128}', f'v_mov_b32 v{t1}, {48*128}',
            f'v_cndmask_b32 v{t2}, v{t2}, v{t1}, vcc'))
        pat(vZ[2], t0)
        A(f'v_add_u32 v{vZ[4]}, v{vZ[2]}, v{t2}'); A(f'v_add_u32 v{vZ[5]}, v{vZ[3]}, v{t2}')
        ex = self.exchange(ACC, recv)
        p += ex[:6] + ad + ex[6:]
        for T in range(6):
            for x in range(4):
                p.append(f'v_mul_f32 v{own+4*T+x}, v{vAl}, v{own+4*T+x}')
            for x in range(4):
                p.append(f'v_fmac_f32 v{own+4*T+x}, v{vBe}, v{recv+4*T+x}')
            d = ACC + 4*T
            p += [f'v_cvt_pk_bf16_f32 v{d}, v{own+4*T}, v{own+4*T+1}', f'v_cvt_pk_bf16_f32 v{d+1}, v{own+4*T+2}, v{own+4*T+3}']
            p.append(f'ds_write_b64 v{wr}, {v(d, 2)} offset:{T*2048}')
            if T >= 3:
                p += [f'v_xor_b32 v{d+2}, 0x80008000, v{d}', f'v_xor_b32 v{d+3}, 0x80008000, v{d+1}', f'ds_write_b64 v{wr}, {v(d+2, 2)} offset:{(T+3)*2048}']
        cos = [CB, Z2]; sin = [CB + 4, Z2 + 4]; nsin = [Z2 + 8, Z2 + 12]
        for x in range(4):
            p += [f'v_xor_b32 v{cos[1]+x}, v{vSgn}, v{cos[0]+x}', f'v_xor_b32 v{sin[1]+x}, v{vSgn}, v{sin[0]+x}', f'v_xor_b32 v{nsin[0]+x}, 0x80008000, v{sin[0]+x}']
        for x in range(4): p.append(f'v_xor_b32 v{nsin[1]+x}, 0x80008000, v{sin[1]+x}')
        p += [Mark('waitds', None), 's_barrier']
        def rd(t):
            fr = FR[t & 1]; out = []
            for k in range(2):
                if t < 2: ar, ai, orr, oi = vRx[k], vRx[k], t*2048, t*2048 + 48*128
                elif t == 2: ar, ai, orr, oi = vZ[2+k], vZ[4+k], 0, 0
                else: ar, ai, orr, oi = vZ[k], vZ[k], (4-t)*2048, (4-t)*2048 + 96*128
                out += [f'ds_read_b128 {v(fr+8*k, 4)}, v{ar} offset:{orr}', f'ds_read_b128 {v(fr+8*k+4, 4)}, v{ai} offset:{oi}']
            return out
        def mf(t):
            fr = FR[t & 1]; re, im = v(ACC+8*t, 4), v(ACC+8*t+4, 4); out = []
            for k in range(2):
                zr, zi = v(fr+8*k, 4), v(fr+8*k+4, 4)
                out += [mfma(re, zr, v(cos[k], 4), '0' if k == 0 else None), mfma(im, zi, v(cos[k], 4), '0' if k == 0 else None),
                        mfma(re, zi, v(sin[k], 4)), mfma(im, zr, v(nsin[k], 4))]
            return out
        st = []
        A = st.append
        sw, sr = vGa, vGt
        A(f's_mul_i32 s{sT1}, s{sW}, 5120'); A(f's_add_u32 s{sT1}, s{sT1}, {LC}'); A(f'v_add_u32 v{sr}, s{sT1}, v{vLin}')
        A(f'v_mul_u32_u24 v{t0}, 320, v{vC}'); A(f'v_lshl_add_u32 v{t0}, v{vQ}, 4, v{t0}'); A(f'v_add_u32 v{sw}, s{sT1}, v{t0}')
        A(f's_lshr_b32 s{sT1}, s{sJ}, 1'); A(f's_mul_i32 s{sT1}, s{sT1}, 10240'); A(f's_and_b32 s{sT2}, s{sJ}, 1'); A(f's_mul_i32 s{sT2}, s{sT2}, 160'); A(f's_add_u32 s{sT1}, s{sT1}, s{sT2}')
        A(f's_sub_u32 s{sT2}, {7*10240}, s{sT1}')
        A(f'v_mov_b32 v{TMP+3}, s{sT1}'); A(f'v_mov_b32 v{TMP+4}, s{sT2}')
        go = [vX[0], vX[1], vW[0], vW[1], vW[2]]
        A(f's_mov_b32 s{sT2}, 81920')
        for n in range(5):
            A(f'v_add_u32 v{t0}, {64*n}, v{vL}'); A(f'v_mul_u32_u24 v{t1}, 3277, v{t0}'); A(f'v_lshrrev_b32 v{t1}, 16, v{t1}')
            A(f'v_mul_u32_u24 v{t2}, 20, v{t1}'); A(f'v_sub_u32 v{t0}, v{t0}, v{t2}')
            A(G(f'v_cmp_gt_u32 vcc, 10, v{t0}', f'v_cndmask_b32 v{t2}, v{TMP+4}, v{TMP+3}, vcc'))
            A(f'v_lshl_add_u32 v{t0}, v{t0}, 4, v{t2}'); A(f'v_mad_u32_u24 v{go[n]}, v{t1}, s{sT2}, v{t0}')
        A(f's_mul_i32 s{sT1}, s{sW}, {16*81920}'); A(f's_mul_i32 s{sT2}, s{sI}, 320'); A(f's_add_u32 s{sT1}, s{sT1}, s{sT2}'); A(f's_add_u32 s{sT4}, s{sT1}, {hx(T1B)}')
        p += rd(0)
        k0 = 0
        for t in range(5):
            p.append(Mark('waitds', None))
            fill = rd(t+1) if t < 4 else []
            take = st[k0:k0+12]; k0 += 12
            p += interleave(mf(t), fill + take, per=2)
        p += st[k0:]
        for t in range(5):
            b = ACC + 8*t; d = FR[0] + 4*t
            for x in range(4): p.append(f'v_cvt_pk_bf16_f32 v{d+x}, v{b+2*x}, v{b+2*x+1}')
            p.append(f'ds_write_b128 v{sw}, {v(d, 4)} offset:{64*t}')
        p.append(Mark('waitds', None))
        for n in range(5): p.append(f'ds_read_b128 {v(FR[1]+4*n, 4)}, v{sr} offset:{1024*n}')
        for n in range(5): p.append(I(f'buffer_store_dwordx4 {v(FR[1]+4*n, 4)}, v{go[n]}, {srd(SWS)}, s{sT4} offen sc1', tok='t1st'))
        return p

    def z_addr(self):
        t0, t1, t2 = TMP, TMP + 1, TMP + 2
        p = [f'v_bfe_u32 v{t2}, v{vL}, 2, 2', f'v_lshl_add_u32 v{t0}, v{vQ}, 3, v{t2}', f'v_lshlrev_b32 v{t0}, 8, v{t0}',
             f'v_and_b32 v{t1}, 1, v{vQ}', f'v_lshl_add_u32 v{t0}, v{t1}, 7, v{t0}',
             f'v_bfe_u32 v{t1}, v{vL}, 1, 1', f'v_lshl_add_u32 v{t0}, v{t1}, 6, v{t0}',
             f'v_lshl_add_u32 v{t0}, v{t2}, 4, v{t0}', f'v_and_b32 v{t1}, 1, v{vL}', f'v_lshl_add_u32 v{t0}, v{t1}, 3, v{t0}',
             f'v_add_u32 v{vZ[0]}, s{sLS}, v{t0}']
        for n in range(1, 8):
            T, c = n >> 2, n & 3
            p.append(f'v_xor_b32 v{vZ[n]}, {T*128 + c*16}, v{vZ[0]}')
        return p

    def phase2(self):
        RECV = Z2
        def reads(sg):
            fr = FR[sg & 1]; slot = sg & 1; out = [Mark('need', [f'Z{sg}'])]
            for c in range(4):
                for T in range(2):
                    for hf in range(2):
                        out.append(f'ds_read_b64_tr_b16 {v(fr + 8*c + 4*T + 2*hf, 2)}, v{vZ[4*T+c]} offset:{slot*8192 + hf*1024}')
            return out
        def acc(pp, T, u): return ACC + 32*(pp & 1) + 4*(2*u + T)
        def mf(sg):
            pp, ga, pi = sg >> 2, (sg >> 1) & 1, sg & 1; fr = FR[sg & 1]; out = []
            for c in range(4):
                kp = 4*ga + c
                for T in range(2):
                    for u in range(4):
                        out.append(mfma(v(acc(pp, T, u), 4), v(fr + 8*c + 4*T, 4), a(32*kp + 8*u + 4*pi, 4), '0' if (sg & 3) == 0 and c == 0 else None))
            return out
        def red_write(pp):
            return [f'ds_write_b128 v{vRd[u-1]}, {v(acc(pp, T, u), 4)} offset:{T*1024}' for u in range(1, 4) for T in range(2)]
        def red_read():
            return [f'ds_read_b128 {v(RECV + 8*y + 4*T, 4)}, v{vExR} offset:{y*2048 + T*1024}' for y in range(3) for T in range(2)]
        def epi(pp):
            own = acc(pp, 0, 0); out = []
            for x in range(8): out.append(f'v_add_f32 v{own+x}, v{own+x}, v{vBias}')
            for y in range(3):
                for x in range(8): out.append(f'v_add_f32 v{own+x}, v{own+x}, v{RECV+8*y+x}')
            for x in range(8): out.append(f'v_mul_f32 v{own+x}, v{own+x}, v{Z1+8*pp+x}')
            for x in range(4): out.append(f'v_cvt_pk_bf16_f32 v{TMP+4+x}, v{own+2*x}, v{own+2*x+1}')
            out += [f's_lshl_b32 s{sT1}, s{sJ}, 10', f's_add_u32 s{sT1}, s{sT1}, {pp*8192}', f's_add_u32 s{sT1}, s{sT1}, s{sHB}',
                    I(f'buffer_store_dwordx4 {v(TMP+4, 4)}, v{vLin}, {srd(SWS)}, s{sT1} offen sc1', tok=f'hst{pp}')]
            return out
        def flagc(pp):
            return [f's_lshl_b32 s{sT1}, s{sJ}, 2', f's_add_u32 s{sT1}, s{sT1}, {pp*32}', f's_add_u32 s{sT1}, s{sT1}, s{sFC}', self.flag_store([f'hst{pp}'], sT1)]
        p = []
        p += reads(0)
        for sg in range(12):
            pp = sg >> 2
            p += [Mark('waitds', None), Mark('free', f'Zf{sg}')]
            m = mf(sg)
            first, second = m[:20], m[20:]
            f1 = []
            if sg in (4, 8):
                f1 = [G('s_barrier')] + red_write(pp - 1)
            elif sg in (5, 9):
                f1 = [G('s_barrier')] + red_read()
            elif sg in (6, 10):
                f1 = epi(pp - 1)
            elif sg in (7, 11):
                f1 = flagc(pp - 1)
            if sg == 4: f1 = f1 + [Mark('free', 'Bfree')]
            p += interleave(first, f1, per=2 if sg not in (6, 10) else 3, start=2)
            p += interleave(second, reads(sg+1) if sg < 11 else [], per=2)
        p += self.stamp('p2 mfma done')
        p += ['s_barrier', Mark('free', 'Afree')] + red_write(2) + [Mark('waitds', None), 's_barrier'] + red_read() + epi(2)
        p += self.stamp('h2 stored')
        return p, flagc(2)

    def phase3(self, flagc2):
        accB, accA = ACC, ACC + 20
        t0, t1, t2 = TMP, TMP + 1, TMP + 2
        p = []
        ldC = [f'buffer_load_dword v{POLL}, v{vL4}, {srd(SWS)}, s{sFC} offen sc1']
        ldT = [f'buffer_load_dwordx2 {v(POLL+2, 2)}, v{vX[0]}, {srd(SWS)}, s{sT3} offen sc1']
        p += [f's_sub_u32 s{sT2}, 7, s{sJ}', f's_min_u32 s{sT2}, s{sT2}, s{sJ}', f's_lshl_b32 s{sT2}, s{sT2}, 1', f's_lshr_b32 s{sT3}, s{sI}, 4', f's_lshl_b32 s{sT3}, s{sT3}, 3',
              f's_add_u32 s{sT3}, s{sT3}, s{sT2}', f's_lshl_b32 s{sT3}, s{sT3}, 8', f's_add_u32 s{sT3}, s{sT3}, {FLAGT}', f'v_lshlrev_b32 v{vX[0]}, 3, v{vL}']
        p += ldC + ldT
        lo, hi = vLin, vX[1]
        p.append(f'v_add_u32 v{hi}, 65536, v{vLin}')
        hi2 = vW[0]
        p.append(f'v_add_u32 v{hi2}, 131072, v{vLin}')
        def wread(dst, kk, t):
            la = self.l_w(kk >> 3, ((kk & 7)*5 + t)*1024)
            reg = (lo, hi, hi2)[la >> 16]
            return f'ds_read_b128 {dst}, v{reg} offset:{la & 65535}'
        p += flagc2
        p.append(self.poll(ldC, [f'v{POLL}'], '0xffff'))
        p += [Mark('free', 'flagC0'), Mark('free', 'flagC1')]
        p.append(self.poll(ldT, [f'v{POLL+2}', f'v{POLL+3}']))
        p.append(Mark('free', 'flagT'))
        p += self.stamp('flagC01,T ok')
        def rd(kk): return [wread(v(FR[kk & 1] + 4*t, 4), kk, t) for t in range(5)]
        def mf(kk):
            src = (lambda t: v(FR[kk & 1] + 4*t, 4)) if kk < 16 else (lambda t: a(96 + ((kk-16)*5 + t)*4, 4))
            return [mfma(v(accB + 4*t, 4), src(t), a(4*kk, 4), '0' if kk == 0 else None) for t in range(5)]
        p += [Mark('need', ['O0']), Mark('waitds', None), 's_barrier', Mark('free', 'Cfree')]
        p += rd(0)
        for kk in range(16):
            if kk == 7:
                p += [Mark('need', ['O1']), Mark('waitds', None), 's_barrier']
            else:
                p.append(Mark('waitds', None))
            if kk == 0: p.append(Mark('flush', 'h0'))
            if kk == 8: p.append(Mark('flush', 'h1'))
            p += interleave(mf(kk), rd(kk+1) if kk < 15 else [], per=1)
        p += [Mark('need', ['O2', 'T']), 's_barrier']
        p += ldC
        ta = vW[1]
        p += [f'v_lshrrev_b32 v{t0}, 1, v{vQ}', f'v_bfe_u32 v{t1}, v{vL}, 2, 2', f'v_lshl_add_u32 v{t0}, v{t0}, 3, v{t1}', f'v_mul_u32_u24 v{t0}, 320, v{t0}',
              f'v_and_b32 v{t1}, 3, v{vL}', f'v_lshl_add_u32 v{t0}, v{t1}, 4, v{t0}', f'v_and_b32 v{t1}, 1, v{vQ}', f'v_lshl_add_u32 v{t0}, v{t1}, 3, v{t0}',
              f's_mul_i32 s{sT1}, s{sKH}, 10240', f's_add_u32 s{sT1}, s{sT1}, {LC}', f'v_add_u32 v{ta}, s{sT1}, v{t0}']
        for k in range(2):
            for t in range(5):
                for hf in range(2):
                    p.append(f'ds_read_b64_tr_b16 {v(FR[k] + 4*t + 2*hf, 2)}, v{ta} offset:{k*5120 + hf*1280 + t*64}')
        pre = [wread(a(96 + ((kk-16)*5 + t)*4, 4), kk, t) for kk in range(16, 24) for t in range(5)]
        mA = [mfma(v(accA + 4*t, 4), v(FR[k] + 4*t, 4), v(CF + 4*k, 4), '0' if k == 0 else None) for k in range(2) for t in range(5)]
        p += interleave(mA, pre, per=2)
        sw, sr = vGa, vGt
        go = [vH[0], vH[1], vH[2]]
        p += [f's_mul_i32 s{sT1}, s{sW}, 2560', f's_add_u32 s{sT1}, s{sT1}, {LB}', f'v_add_u32 v{sr}, s{sT1}, v{vLin}',
              f'v_mul_u32_u24 v{t0}, 160, v{vC}', f'v_lshl_add_u32 v{t0}, v{vQ}, 3, v{t0}', f'v_add_u32 v{sw}, s{sT1}, v{t0}', f's_mov_b32 s{sT2}, 81920']
        for n in range(3):
            p += [f'v_add_u32 v{t0}, {64*n}, v{vL}', f'v_mul_u32_u24 v{t1}, 6554, v{t0}', f'v_lshrrev_b32 v{t1}, 16, v{t1}',
                  f'v_mul_u32_u24 v{t2}, 10, v{t1}', f'v_sub_u32 v{t0}, v{t0}, v{t2}', f'v_lshlrev_b32 v{t0}, 4, v{t0}', f'v_mad_u32_u24 v{go[n]}, v{t1}, s{sT2}, v{t0}']
        p += [f's_lshl_b32 s{sT1}, s{sWH}, 5', f's_add_u32 s{sT1}, s{sT1}, s{sKH}', f's_lshl_b32 s{sT1}, s{sT1}, 5', f's_add_u32 s{sT1}, s{sT1}, s{sI}',
              f's_mul_i32 s{sT1}, s{sT1}, 1280', f's_mul_i32 s{sT2}, s{sJ}, 160', f's_add_u32 s{sT4}, s{sT1}, s{sT2}']
        for x in range(20): p.append(f'v_mul_f32 v{accA+x}, v{vGate}, v{accA+x}')
        p.append(f'v_sub_f32 v{vBias}, 1.0, v{vGate}')
        p.append(self.poll(ldC, [f'v{POLL}'], '0xff0000'))
        p += [Mark('free', 'flagC2'), Mark('flush', 'h2')]
        p += self.stamp('flagC2 ok')
        for kk in range(16, 24): p += mf(kk)
        for t in range(5):
            for x in range(4): p.append(f'v_fmac_f32 v{accA+4*t+x}, v{vBias}, v{accB+4*t+x}')
            p += [f'v_cvt_pk_bf16_f32 v{FR[0]+2*t}, v{accA+4*t}, v{accA+4*t+1}', f'v_cvt_pk_bf16_f32 v{FR[0]+2*t+1}, v{accA+4*t+2}, v{accA+4*t+3}',
                  f'ds_write_b64 v{sw}, {v(FR[0]+2*t, 2)} offset:{32*t}']
        p.append(Mark('waitds', None))
        for n in range(3): p.append(f'ds_read_b128 {v(FR[1]+4*n, 4)}, v{sr} offset:{1024*n}')
        for n in range(2): p.append(f'buffer_store_dwordx4 {v(FR[1]+4*n, 4)}, v{go[n]}, {srd(SOUT)}, s{sT4} offen')
        p.append(G('s_mov_b32 exec_hi, 0', f'buffer_store_dwordx4 {v(FR[1]+8, 4)}, v{go[2]}, {srd(SOUT)}, s{sT4} offen', 's_mov_b64 exec, -1'))
        return p

    def dump(self, name, reg, n):
        if self.o['dbg'] != name: return []
        p = [f's_lshl_b32 s{sT1}, s{sI}, 3', f's_add_u32 s{sT1}, s{sT1}, s{sJ}', f's_lshl_b32 s{sT1}, s{sT1}, 2', f's_add_u32 s{sT1}, s{sT1}, s{sW}',
             f's_mul_i32 s{sT1}, s{sT1}, {n*256}', f's_add_u32 s{sT1}, s{sT1}, {hx(DBGB)}']
        for x in range(0, n, 4):
            p += [f'buffer_store_dwordx4 {v(reg+x, 4)}, v{vLin}, {srd(SWS)}, s{sT1} offen', f's_add_u32 s{sT1}, s{sT1}, 1024']
        return [G(p)]

    def build(self):
        o = self.o
        c = []
        c += self.setup1()
        c += self.setup2()
        c += self.tag()
        c += self.gemm('z2')
        c += self.stamp('z2 gemm done')
        c += self.exchange(ACC, ACC + 24)
        c += self.gelu(Z2, ACC + 24, ACC)
        c += self.dump('z2', Z2, 24)
        c += self.stats_publish()
        c += self.stamp('stats published')
        c += self.gemm('z1')
        c += self.stamp('z1 gemm done')
        c += self.normalize_publish()
        c += self.dump('z2n', Z2, 24)
        for k in range(2): c.append(f'v_add_u32 v{vRx[k]}, {LB}, v{vRb[k]}')
        c += self.exchange(ACC, ACC + 24, extra=True)
        c += self.flagB_addr()
        g = self.gelu(Z1, ACC + 24, ACC)
        c += g[:len(g)//2] + [self.flag_store(['z2st'], sT1)] + self.stamp('flagB stored') + g[len(g)//2:]
        c += self.gate()
        c += self.dump('z1', Z1, 24)
        c += self.gemm('A')
        c += self.stamp('stepA done')
        c += self.stepB()
        c += self.stamp('T1 stored')
        c += self.z_addr()
        ldB = [f'buffer_load_dword v{POLL}, v{vL4}, {srd(SWS)}, s{sT3} offen sc1']
        c += ldB
        c += [f's_lshl_b32 s{sT1}, s{sKH}, 3', f's_add_u32 s{sT1}, s{sT1}, s{sJ}', f's_lshl_b32 s{sT1}, s{sT1}, 1', f's_add_u32 s{sT1}, s{sT1}, s{sWH}',
              f's_lshl_b32 s{sT1}, s{sT1}, 5', f's_add_u32 s{sT1}, s{sT1}, s{sI}', f's_lshl_b32 s{sT1}, s{sT1}, 2', f's_add_u32 s{sT1}, s{sT1}, {FLAGT}']
        c.append(self.flag_store(['t1st'], sT1))
        c.append(self.poll(ldB, [f'v{POLL}']))
        c += [Mark('free', 'flagB'), Mark('flush', 'Pc31')]
        c += self.stamp('flagB ok')
        p2, flagc2 = self.phase2()
        c += p2
        c += self.phase3(flagc2)
        e = self.lab('ep')
        c.append(G(f's_or_b32 s{sT1}, s{sI}, s{sJ}', f's_or_b32 s{sT1}, s{sT1}, s{sW}', f's_cmp_eq_u32 s{sT1}, 0', f's_cbranch_scc0 {e}',
                   Mark('raw', [f'v_mov_b32 v{vT}, 0', 's_mov_b64 exec, 1', f'buffer_store_dword v{vTag}, v{vT}, {srd(SWS)}, 0 offen sc1', 's_mov_b64 exec, -1']), f'{e}:'))
        if o['stamps']:
            c += [G('s_waitcnt vmcnt(0)')] + self.stamp('end')
            st = [f's_lshl_b32 s{sT1}, s{sI}, 3', f's_add_u32 s{sT1}, s{sT1}, s{sJ}', f's_lshl_b32 s{sT1}, s{sT1}, 2', f's_add_u32 s{sT1}, s{sT1}, s{sW}',
                  f's_lshl_b32 s{sT1}, s{sT1}, 7', f's_add_u32 s{sT1}, s{sT1}, {hx(STAMP)}', f'v_mov_b32 v{vT}, 0', 's_mov_b64 exec, 1']
            for n in range(0, 20, 4):
                for x in range(4): st.append(f'v_mov_b32 v{TMP+x}, s{STAMP0+n+x}' if n + x < self.nstamp else f'v_mov_b32 v{TMP+x}, 0')
                st += [f'buffer_store_dwordx4 {v(TMP, 4)}, v{vT}, {srd(SWS)}, s{sT1} offen offset:{4*n}', 's_nop 1']
            c.append(G(st))
        self.log = []
        items = merge(c, self.stream(), window=o['window'], lat=o['lat'], log=self.log)
        lines = finalize(items)
        return lines

    def text(self):
        lines = self.build()
        head = open('gated_mix__spectral_fnet__mixer_gmlp__prompt.s.ref').read().split('; Override launch geometry')[0]
        body = '\n'.join(('' if l.endswith(':') else '    ') + l for l in lines)
        return f'''{head}; One persistent launch: 256 workgroups (one per CU) of 4 waves; generated by a script.
; @launch grid=(256,1,1) block=(256,1,1) lds={LDS_BYTES}
.amdgcn_target "amdgcn-amd-amdhsa--gfx950"
.text
.globl {KNAME}
.p2align 8
.type {KNAME},@function
{KNAME}:
{body}
L_end:
    s_endpgm
L_code_end:
{'.set CODE_BYTES, L_code_end - L_pc' if self.o['codepf'] else ''}
.section .rodata,"a"
.p2align 6
.amdhsa_kernel {KNAME}
  .amdhsa_next_free_vgpr 512
  .amdhsa_next_free_sgpr 102
  .amdhsa_accum_offset 256
  .amdhsa_group_segment_fixed_size 0
  .amdhsa_kernarg_size 112
  .amdhsa_user_sgpr_count 2
  .amdhsa_user_sgpr_kernarg_segment_ptr 1
  .amdhsa_system_sgpr_workgroup_id_x 1
  .amdhsa_float_denorm_mode_32 3
.end_amdhsa_kernel
'''


if __name__ == '__main__':
    kw = {}
    out = 'gated_mix__spectral_fnet__mixer_gmlp__prompt.s'
    for x in sys.argv[1:]:
        k, val = x.split('=')
        if k == 'out': out = val
        else: kw[k] = eval(val)
    g = Gen(**kw)
    open(out, 'w').write(g.text())
    for e in g.log: print(e)
```

```python
import re

_REG = re.compile(r'^(-|abs\(|\|)?([vas])(\d+)\)?\|?$')
_RNG = re.compile(r'^(-)?([vas])\[(\d+):(\d+)\]$')


def regs_of(op):
    op = op.strip()
    m = _RNG.match(op)
    if m:
        return [f'{m.group(2)}{i}' for i in range(int(m.group(3)), int(m.group(4)) + 1)]
    m = _REG.match(op)
    if m:
        return [f'{m.group(2)}{m.group(3)}']
    if op in ('vcc', 'exec', 'm0'):
        return [op]
    if op in ('vcc_lo', 'vcc_hi'):
        return ['vcc']
    if op in ('exec_lo', 'exec_hi'):
        return ['exec']
    return []


TRANS = ('v_exp_f32', 'v_log_f32', 'v_rcp_f32', 'v_rsq_f32', 'v_sqrt_f32', 'v_sin_f32', 'v_cos_f32')


class Ins:
    __slots__ = ('text', 'op', 'w', 'r', 'kind', 'tok', 'srcC', 'sdata', 'raw')

    def __init__(self, text, tok=None):
        self.text = text
        self.tok = tok
        self.srcC = []
        self.sdata = []
        t = text.split(';')[0].strip()
        if t.endswith(':'):
            self.op, self.w, self.r, self.kind = 'label', [], [], 'label'
            return
        parts = t.split(None, 1)
        op = parts[0]
        self.op = op
        ops = []
        if len(parts) > 1:
            ops = [x.strip() for x in parts[1].split(',')]
            last = ops[-1].split()
            mods = last[1:]
            ops[-1] = last[0] if last else ''
        else:
            mods = []
        R = [regs_of(o) for o in ops]
        flat = lambda l: [x for y in l for x in y]
        w, r = [], []
        if op.startswith('v_mfma'):
            kind = 'mfma'; w = R[0]; r = flat(R[1:]); self.srcC = R[3]
        elif op.startswith('ds_read'):
            kind = 'ds'; w = R[0]; r = flat(R[1:])
        elif op.startswith('ds_write'):
            kind = 'ds'; r = flat(R)
        elif op.startswith('buffer_load'):
            kind = 'vm'
            if 'lds' in mods:
                r = flat(R) + ['m0']
            else:
                w = R[0]; r = flat(R[1:])
                if 'd16' in op: r = r + R[0]
        elif op.startswith('buffer_store'):
            kind = 'vm'; r = flat(R)
            if 'x4' in op or 'x3' in op: self.sdata = R[0]
        elif op.startswith('v_cmp'):
            kind = 'valu'; w = R[0]; r = flat(R[1:])
        elif op.startswith('v_permlane'):
            kind = 'valu'; w = flat(R); r = flat(R)
        elif op.startswith('v_fmac') or op.startswith('v_dot2c'):
            kind = 'valu'; w = R[0]; r = flat(R)
        elif op.startswith('v_'):
            kind = 'valu'; w = R[0]; r = flat(R[1:])
        elif op in ('s_waitcnt', 's_nop', 's_barrier', 's_endpgm', 's_setprio', 's_sleep'):
            kind = op
        elif op.startswith('s_cbranch') or op == 's_branch':
            kind = 'branch'
        elif op.startswith('s_cmp') or op.startswith('s_bitcmp'):
            kind = 'salu'; r = flat(R)
        elif op.startswith('s_load') or op in ('s_memrealtime', 's_memtime'):
            kind = 'smem'; w = R[0]; r = flat(R[1:])
        elif op.startswith('s_'):
            kind = 'salu'; w = R[0]; r = flat(R[1:])
        else:
            raise ValueError('unknown instr ' + text)
        self.w, self.r, self.kind = w, r, kind

    def cost(self):
        if self.kind in ('label',):
            return 0
        if self.op in TRANS:
            return 8
        if self.op == 's_nop':
            return 4 * (int(self.text.split()[1]) + 1)
        if self.kind == 'valu':
            return 5
        if self.op == 's_barrier':
            return 40
        return 4


class Mark:
    def __init__(self, kind, arg=None):
        self.kind, self.arg = kind, arg


def I(text, tok=None):
    return Ins(text, tok)


def G(*items):
    out = []
    for it in items:
        if isinstance(it, (list, tuple)):
            out.extend(it)
        else:
            out.append(it)
    return Mark('group', [x if not isinstance(x, str) else Ins(x) for x in out])


def norm(seq):
    out = []
    for x in seq:
        if isinstance(x, str):
            out.append(Ins(x))
        elif isinstance(x, (list, tuple)):
            out.extend(norm(x))
        else:
            out.append(x)
    return out


class Bundle:
    def __init__(self, items, cost=68, need=(), tok=None, delay=0):
        self.items = norm(items); self.cost = cost; self.need = set(need); self.tok = tok; self.delay = delay


def merge(compute, stream, window=450, lat=600, log=None, overdue=60):
    compute = norm(compute)
    out = []
    now = 0; mf_free = 0; pipe = 0
    events = set(); pos = 0; land = {}
    last_of = {}
    for n, b in enumerate(stream):
        if b.tok is not None: last_of[b.tok] = n

    ds_free = 0; ds_dest = {}

    def adv(ins):
        nonlocal now, mf_free, ds_free, pipe
        if isinstance(ins, Ins):
            t = max([ds_dest.pop(x, 0) for x in ins.r] + [0])
            now = max(now, t)
            if ins.kind == 'mfma':
                now = max(now, mf_free); mf_free = now + 16; now += 8
            elif ins.kind == 'ds':
                if ins.op.startswith('ds_write'):
                    c = {'ds_write_b128': 54, 'ds_write_b64': 27}.get(ins.op, 16)
                    now += c; pipe = max(pipe, now - c) + c; ds_free = max(ds_free, now)
                else:
                    c = 16 if ins.op == 'ds_read_b128' else 9
                    now = max(now, ds_free - 40) + 4
                    ds_free = max(ds_free, now) + c
                    for x in ins.w: ds_dest[x] = ds_free + 64
            else:
                now += ins.cost()
        elif ins.kind in ('waitds',):
            now = max(now, ds_free + 64 if ins.arg is None else now)

    def emit_bundle():
        nonlocal pos, pipe, now
        b = stream[pos]
        missing = b.need - events
        assert not missing, f'bundle {b.tok} needs {missing}'
        for it in b.items:
            if isinstance(it, Mark) and it.kind == 'need':
                for t in it.arg:
                    now = max(now, land.get(t, 0))
            if isinstance(it, Mark) and it.kind == 'free':
                events.add(it.arg)
            out.append(it); adv(it)
        if b.cost:
            pipe = max(pipe, now) + b.cost
        if b.tok is not None: land[b.tok] = pipe + lat
        pos += 1

    def ready():
        if pos >= len(stream): return False
        b = stream[pos]
        if b.need - events: return False
        for it in b.items:
            if isinstance(it, Mark) and it.kind == 'need':
                if any(land.get(t, 0) > now for t in it.arg): return False
        return pipe - now < window

    def walk(item, ingroup=False):
        nonlocal now
        if isinstance(item, Mark):
            if item.kind == 'need':
                tgt = 0
                for t in item.arg:
                    if t in last_of:
                        while pos <= last_of[t]: emit_bundle()
                        tgt = max(tgt, land.get(t, 0))
                while not ingroup and pos < len(stream) and tgt > now and pipe < tgt and not (stream[pos].need - events) and \
                        not any(isinstance(it, Mark) and it.kind == 'need' and any(land.get(t, 0) > tgt for t in it.arg) for it in stream[pos].items):
                    emit_bundle()
                now = max(now, tgt)
                out.append(item)
                if log is not None: log.append((now, 'need', item.arg))
            elif item.kind == 'flush':
                while pos <= last_of[item.arg]: emit_bundle()
            elif item.kind == 'emit':
                for _ in range(item.arg): emit_bundle()
            elif item.kind == 'free':
                events.add(item.arg)
            elif item.kind == 'time':
                now += item.arg
            elif item.kind == 'group':
                for x in item.arg: walk(x, True)
            else:
                out.append(item); adv(item)
        else:
            out.append(item); adv(item)

    def isvec(x):
        if isinstance(x, Ins): return x.kind in ('valu', 'ds', 'vm')
        return x.kind == 'group'
    n = len(compute)
    for idx, item in enumerate(compute):
        walk(item)
        if not ready(): continue
        nxt = [k for k in range(idx + 1, min(n, idx + 7)) if isinstance(compute[k], Ins) and compute[k].kind == 'mfma']
        prv = [k for k in range(max(0, idx - 5), idx + 1) if isinstance(compute[k], Ins) and compute[k].kind == 'mfma']
        if nxt and prv:
            used = sum(isvec(compute[k]) for k in range(prv[-1] + 1, nxt[0]))
            need = sum(isinstance(x, Ins) and x.kind in ('valu', 'ds', 'vm') for x in stream[pos].items)
            if (idx != prv[-1] or used + need > 2) and now - pipe < overdue: continue
        emit_bundle()
    assert pos == len(stream), f'stream not drained: {pos}/{len(stream)} next {stream[pos].tok} needs {stream[pos].need - events}'
    if log is not None: log.append((now, 'end', None))
    return out


def finalize(items):
    lines = []
    vmq = []
    dsq = []
    smem_out = set()
    hist = []

    def push(ins):
        lines.append(ins.text)
        if ins.kind == 'label':
            return
        wgt = int(ins.text.split()[1]) + 1 if ins.op == 's_nop' else 1
        hist.append((ins, wgt))
        if len(hist) > 24: hist.pop(0)

    def emit_wait(vm=None, lg=None):
        parts = []
        if vm is not None:
            vm = min(vm, 63); parts.append(f'vmcnt({vm})'); del vmq[:max(0, len(vmq) - vm)]
        if lg is not None:
            lg = min(lg, 15); parts.append(f'lgkmcnt({lg})'); del dsq[:max(0, len(dsq) - lg)]
            if lg == 0: smem_out.clear()
        if parts: push(Ins('s_waitcnt ' + ' '.join(parts)))

    def need_count(q, pred):
        idx = -1
        for n, e in enumerate(q):
            if pred(e): idx = n
        return None if idx < 0 else len(q) - 1 - idx

    def hazard(ins):
        need = 0; dist = 0
        R, W = set(ins.r), set(ins.w)
        for p, wgt in reversed(hist):
            pw = set(p.w); req = 0
            if p.kind == 'valu':
                vw = {x for x in pw if x[0] in 'va' and x != 'vcc'}
                sw = pw - vw
                if ins.kind == 'mfma' and vw & R: req = max(req, 2)
                if ins.op.startswith('v_permlane') and vw & R: req = max(req, 2)
                if 'dpp' in ins.text and vw & R: req = max(req, 2)
                if ins.op in ('v_readfirstlane_b32', 'v_readlane_b32') and vw & R: req = max(req, 1)
                if p.op in TRANS and ins.kind in ('valu', 'mfma') and ins.op not in TRANS and vw & R: req = max(req, 1)
                if p.op in TRANS and ins.kind in ('ds', 'vm') and vw & R: req = max(req, 1)
                if ins.kind == 'vm' and sw & R: req = max(req, 5)
                if ins.kind == 'valu' and sw & R: req = max(req, 2)
                if ins.kind in ('salu', 'branch') and sw & (R | {'vcc'} if ins.kind == 'branch' else R): req = max(req, 1)
            elif p.kind == 'mfma':
                if ins.kind == 'mfma':
                    ab = R - set(ins.srcC) if ins.srcC else R
                    if pw & ab: req = max(req, 8)
                    if pw & set(ins.srcC) and list(p.w) != list(ins.srcC): req = max(req, 6)
                    if pw & W and list(p.w) != list(ins.srcC): req = max(req, 6)
                elif ins.kind in ('valu', 'ds', 'vm'):
                    if pw & (R | W): req = max(req, 8)
                    if ins.kind == 'valu' and set(p.srcC) & W: req = max(req, 3)
            elif p.kind == 'salu':
                if 'm0' in pw and 'm0' in R and ins.kind == 'vm': req = max(req, 1)
            elif p.kind == 'vm':
                if set(p.sdata) & W: req = max(req, 2)
            if req > dist: need = max(need, req - dist)
            dist += wgt
            if dist >= 10: break
        return need

    for it in items:
        if isinstance(it, Mark):
            if it.kind == 'need':
                toks = set(it.arg)
                emit_wait(vm=need_count(vmq, lambda e: e[1] in toks))
            elif it.kind == 'waitregs':
                rs = set(it.arg)
                emit_wait(vm=need_count(vmq, lambda e: e[0] & rs), lg=need_count(dsq, lambda e: e[0] & rs))
            elif it.kind == 'waitds':
                if it.arg is None:
                    emit_wait(lg=0 if (dsq or smem_out) else None)
                else:
                    toks = set(it.arg)
                    emit_wait(lg=need_count(dsq, lambda e: e[1] in toks))
            elif it.kind == 'sync':
                vt, dt = it.arg
                vt = set(vt)
                lg = (0 if dsq else None) if dt is None else need_count(dsq, lambda e: e[1] in set(dt))
                emit_wait(vm=need_count(vmq, lambda e: e[1] in vt), lg=lg)
            elif it.kind == 'raw':
                for t in it.arg: push(Ins(t))
            elif it.kind == 'anchor':
                lines.append(f'; @@ {it.arg}')
            elif it.kind in ('free', 'time', 'flush'):
                pass
            else:
                raise ValueError(it.kind)
            continue
        ins = it
        if ins.kind == 's_waitcnt':
            m = re.search(r'vmcnt\((\d+)\)', ins.text); n = re.search(r'lgkmcnt\((\d+)\)', ins.text)
            emit_wait(vm=int(m.group(1)) if m else None, lg=int(n.group(1)) if n else None)
            continue
        touch = set(ins.r) | set(ins.w)
        vm = need_count(vmq, lambda e: e[0] & touch)
        lg = need_count(dsq, lambda e: e[0] & touch)
        if smem_out & touch: lg = 0
        if lg is not None and smem_out: lg = 0
        if vm is not None or lg is not None: emit_wait(vm, lg)
        h = hazard(ins)
        if h: push(Ins(f's_nop {h - 1}'))
        push(ins)
        if ins.kind == 'vm': vmq.append((set() if ins.tok in ('touch', 'htouch') else set(ins.w), ins.tok))
        elif ins.kind == 'ds': dsq.append((set(ins.w), ins.tok))
        elif ins.kind == 'smem' and ins.tok != 'trace': smem_out |= set(ins.w)
    return lines


def interleave(main, fill, per=2, start=0):
    main = norm(main); fill = norm(fill)
    out = []; k = 0
    for n, m in enumerate(main):
        out.append(m)
        if n >= start:
            c = 0
            while k < len(fill) and c < per:
                out.append(fill[k])
                if isinstance(fill[k], Ins) or fill[k].kind == 'group': c += 1
                k += 1
    out.extend(fill[k:])
    return out


def sprinkle(blk, extra):
    blk = norm(blk); extra = norm(extra)
    if not extra: return blk
    pos = [n for n, x in enumerate(blk) if isinstance(x, Ins) and x.kind == 'mfma']
    per = -(-len(extra) // len(pos)); step = max(1, len(pos) // len(extra))
    out = []; k = 0; c = 0
    for n, x in enumerate(blk):
        out.append(x)
        if n in pos:
            if c % step == 0:
                out.extend(extra[k:k+per]); k += per
            c += 1
    out.extend(extra[k:])
    return out


def slot(m, *queues, cap=2, keep=4):
    m = norm(m); n = len(m)
    gaps = [[] for _ in range(n)]; load = [1 if keep and k % keep == 1 else 0 for k in range(n)]
    for items, first, per in queues:
        items = norm(items); g = min(first, n - 1); c = 0
        isv = lambda it: (isinstance(it, Ins) and it.kind in ('valu', 'ds', 'vm')) or (isinstance(it, Mark) and it.kind == 'group')
        left = sum(isv(it) for it in items)
        for it in items:
            if isv(it):
                while g < n - 1:
                    room = sum(max(0, min(per, cap - load[k])) for k in range(g + 1, n))
                    full = load[g] >= cap or c >= per
                    if full and (left <= room or c > per or load[g] > cap): g += 1; c = 0
                    else: break
                load[g] += 1; c += 1; left -= 1
            gaps[g].append(it)
    out = []
    for k in range(n):
        out.append(m[k]); out.extend(gaps[k])
    return out
```

```python
import sys, struct, math
from dsl import *

KNAME = 'gated_mix__spectral_fnet__mixer_gmlp__prompt_kernel'

DEFAULT = dict(stamps=False, rot=True, window=70, lat=600, codepf=True, dbg=None, pk=True, amp=None, gshadow=True, nocomp=(), codepf2=3072, o2pre=4, o0at=(), pre=450, drop=(), outfl='', cold=[30]*5 + [900] + [240]*6, tparts=((5, 500), (5, 500), (6, 500), (7, 500)), hpos=5, statat=7, trace=None, not1=False, nb=4, overdue=60, esplit=60, touch=1800, htouch=True, fbat=60, h2at=14, smask=(1, 0, 0), pcost=(60, 60, 60, 60), pcut=(0, 1, 3, 5, 8), wcost=90, sset=None, zcost=64, probe2=None, probe=None, clk='s_memrealtime', skew=None, dbgst=False)


def f2u(x):
    return struct.unpack('<I', struct.pack('<f', x))[0]


def hx(x):
    return hex(x & 0xffffffff)


EPOCH = 0
FLAGB = 0x8000
FLAGT = 0x10000
STAT = 0x20000
FLAGC = 0xC0000
STAMP = 0x60000
WBUF = 0x100000
Z2B = 0x200000
HBUF = 0x500000
T1B = 0x800000
DBGB = 0xE00000
WS_SIZE = 0x2000000
OOB = 0x40000000

LA = 0
LB = 73728
LC = 139264
NPS = 6
L_REL = LB + 57344
L_GATE = LB + 61440
L_ZT = 12288
L_W0 = 98304
LDS_BYTES = 163840
L_W = [LB, None, None]

SX, SWIN, SWSP, SH, SWS, SOUT, SWO, SGATE, SBSP, SCODE = 4, 8, 12, 16, 20, 24, 28, 32, 36, 40
sW, sI, sJ, sKH, sTAG, sTO = 64, 65, 66, 67, 68, 69
sKX = [70, 71, 72, 73, 74]
sWB2, sWB1, sT0, sT1, sT2 = 75, 76, 77, 78, 79
sLX, sLW, sLH, sLS = 80, 81, 82, 83
sXB = [84, 85]
sSP = [86, 87, 88, 89]
sZB, sHB = 90, 91
sC1 = 92
sWH = 94
sT3, sT4 = 95, 96
sFC = 97
sWBUF = 98
sT1S = 99
sREL = 101
sMK = 3
sTC = 43
sFB = 2
sLZ = sREL
sLW3 = 100
STAMP0 = 44


def srd(b): return f's[{b}:{b+3}]'


vT = 0; vL = 1
vX = [2, 3]; vW = [4, 5, 6]; vH = [7, 8, 9]; vS = [10, 11]
vLin = 12; vRb = [13, 14]; vRx = [15, 16]; vRs = [17, 18]; vTe, vTo = 19, 20
vGa, vGt = 21, 22; vExW, vExR = 23, 24; vRd = [25, 26, 27]
vBias, vGate, vZs, vTag = 28, 29, 30, 31
vZ = list(range(32, 40))
TMP = 40
POLL = 48
CF = 56
ACC = 64
FR = [128, 160]
Z2 = 192; Z1 = 216
CB = 240
vC0 = 248
vSgn = 250
vQ, vC = 251, 252
vAl, vBe = 253, 254
vL4 = 255
AX = 96
vRp = [ACC + 48, ACC + 49]
vGb, vGu = ACC + 50, ACC + 51
GACC = ACC + 52
vMx = ACC + 56
BQ = CB
vHt = ACC + 62
vGo = [ACC + 57 + x for x in range(5)]
vBias1 = vExW
vHs = vL4
H_BASE = [24576, 36864, 49152, 61440, 0]


def v(n, k=1): return f'v{n}' if k == 1 else f'v[{n}:{n+k-1}]'
def a(n, k=1): return f'a{n}' if k == 1 else f'a[{n}:{n+k-1}]'
def vr(n, k): return [f'v{x}' for x in range(n, n + k)]


def mfma(d, A, B, c=None):
    return f'v_mfma_f32_16x16x32_bf16 {d}, {A}, {B}, {d if c is None else c}'


class Gen:
    def __init__(self, **kw):
        self.o = dict(DEFAULT); self.o.update(kw)
        self.nlab = 0; self.nstamp = 0; self.stamp_names = []

    def lab(self, s):
        self.nlab += 1
        return f'L_{s}_{self.nlab}'

    def stamp(self, name):
        if self.o['trace']: return [Mark('anchor', name)]
        if not self.o['stamps']: return []
        ss = self.o['sset']
        if name != 'end' and ((ss is None and name.startswith('@')) or (ss is not None and not any(name.startswith(x) for x in ss))): return []
        n = self.nstamp; self.nstamp += 1; self.stamp_names.append(name)
        assert n < 18
        return [G(self.o['clk'] + ' s[62:63]', 's_waitcnt lgkmcnt(0)', f's_mov_b32 s{STAMP0+n}, s62')]

    def setup1(self):
        o = self.o
        p = []
        A = p.append
        if o['stamps']: A(f"{o['clk']} s[{sC1}:{sC1+1}]")
        A('s_cmp_ge_u32 s2, 256'); A('s_cbranch_scc1 L_end')
        if o['codepf']:
            A(f's_getpc_b64 s[{SCODE}:{SCODE+1}]'); A('L_pc:'); A(f's_mov_b32 s{SCODE+2}, CODE_BYTES'); A(f's_mov_b32 s{SCODE+3}, 0x20000')
            A('v_lshrrev_b32 v2, 3, v0'); A('v_lshlrev_b32 v2, 7, v2')
            A(I(f'buffer_load_dword v{POLL}, v2, {srd(SCODE)}, 0 offen offset:256'))
            A('v_lshrrev_b32 v3, 5, v0'); A('v_lshlrev_b32 v3, 7, v3'); A(f's_lshr_b32 s{sT1}, s2, 3'); A(f's_lshl_b32 s{sT1}, s{sT1}, 10'); A(f's_add_u32 s{sT1}, s{sT1}, {4096+256}')
            A(I(f'buffer_load_dword v{POLL+1}, v3, {srd(SCODE)}, s{sT1} offen'))
        A(f's_load_dwordx2 s[{SX}:{SX+1}], s[0:1], 0')
        A('s_load_dwordx16 s[48:63], s[0:1], 48')
        A('s_load_dwordx4 s[44:47], s[0:1], 24')
        t0, t1, t2 = TMP, TMP + 1, TMP + 2
        A('v_lshrrev_b32 v2, 6, v0')
        A(f'v_and_b32 v{vL}, 63, v0')
        A(f'v_readfirstlane_b32 s{sW}, v2')
        A(f's_bfe_u32 s{sI}, s2, 0x20001'); A(f's_lshl_b32 s{sI}, s{sI}, 3')
        A(f's_bfe_u32 s{sT3}, s2, 0x30003'); A(f's_add_u32 s{sI}, s{sI}, s{sT3}')
        A(f's_lshr_b32 s{sT4}, s2, 6')
        A(f's_and_b32 s{sKH}, s{sW}, 1'); A(f's_lshr_b32 s{sWH}, s{sW}, 1')
        A(f'v_lshrrev_b32 v{vQ}, 4, v{vL}')
        A(f'v_and_b32 v{t0}, 7, v{vL}'); A(f'v_xor_b32 v{t0}, v{t0}, v{vQ}'); A(f'v_lshlrev_b32 v{t0}, 4, v{t0}')
        A(f'v_lshrrev_b32 v{t1}, 3, v{vL}')
        A(f's_mov_b32 s{sT1}, 81920')
        A(f'v_mad_u32_u24 v{vX[0]}, v{t1}, s{sT1}, v{t0}')
        A(f'v_xor_b32 v{vX[1]}, 64, v{vX[0]}'); A(f'v_add_u32 v{vX[1]}, {8*81920-1024}, v{vX[1]}')
        if o['rot']:
            ri, mi, rj, mj = o['rot'] if isinstance(o['rot'], tuple) else (0, 1, 0, 2)
            if ri: A(f's_lshr_b32 s{sT3}, s{sT3}, {ri}')
            if mi != 1: A(f's_mul_i32 s{sT3}, s{sT3}, {mi}')
            A(f's_lshr_b32 s{sT2}, s{sT4}, {rj}'); A(f's_mul_i32 s{sT2}, s{sT2}, {mj}'); A(f's_add_u32 s{sT3}, s{sT3}, s{sT2}')
            A(f's_mul_i32 s{sT2}, s{sT3}, 52'); A(f's_lshr_b32 s{sT2}, s{sT2}, 8'); A(f's_mul_i32 s{sT2}, s{sT2}, 5')
            A(f's_sub_u32 s{sT3}, s{sT3}, s{sT2}'); A(f's_lshl_b32 s{sKX[0]}, s{sT3}, 7')
        else:
            A(f's_mov_b32 s{sKX[0]}, 0')
        A(f's_mul_i32 s{sT1}, s{sI}, 1280'); A(f's_mul_i32 s{sT2}, s{sWH}, {32*40960}'); A(f's_add_u32 s{sT1}, s{sT1}, s{sT2}')
        A(f's_mul_i32 s{sT2}, s{sKH}, {40960+640}'); A(f's_add_u32 s{sXB[0]}, s{sT1}, s{sT2}')
        A(f's_mul_i32 s{sT2}, s{sKH}, {40960-640}'); A(f's_sub_u32 s{sT1}, s{sT1}, s{sT2}'); A(f's_add_u32 s{sXB[1]}, s{sT1}, 40960')
        A(f's_lshl_b32 s{sLX}, s{sW}, 12'); A(f's_add_u32 s{sLX}, s{sLX}, {LB}')
        A(f's_mov_b32 s{SX+2}, {2048*1280}'); A(f's_mov_b32 s{SX+3}, 0x20000')
        A(f'v_lshl_add_u32 v{vS[0]}, v{t1}, 18, v{t0}')
        A(f's_and_b32 s{sJ}, s2, 1'); A(f's_lshl_b32 s{sJ}, s{sJ}, 2'); A(f's_add_u32 s{sJ}, s{sJ}, s{sT4}')
        A('s_waitcnt lgkmcnt(0)')
        head = [G(p), Mark('free', 'goX'), Mark('flush', 'X0')]
        p = []
        A = p.append
        for x in range(3):
            if x: A(f'v_add_u32 v{t0}, {64*x}, v{vL}')
            n = t0 if x else vL
            A(f'v_mul_u32_u24 v{t1}, 5462, v{n}'); A(f'v_lshrrev_b32 v{t1}, 16, v{t1}')
            A(f'v_mul_u32_u24 v{t2}, 12, v{t1}'); A(f'v_sub_u32 v{t0}, v{n}, v{t2}')
            A(f'v_lshrrev_b32 v{t2}, 2, v{t1}'); A(f'v_and_b32 v{t2}, 2, v{t2}'); A(f'v_xor_b32 v{t0}, v{t0}, v{t2}')
            A(f'v_mul_u32_u24 v{t1}, 3072, v{t1}'); A(f'v_lshl_add_u32 v{vW[x]}, v{t0}, 4, v{t1}')
            if x: A(f'v_subrev_u32 v{vW[x]}, {1024*x}, v{vW[x]}')
        A(f's_mul_i32 s{sT1}, s{sKH}, {320*3072}'); A(f's_mul_i32 s{sT2}, s{sWH}, {32*3072}'); A(f's_add_u32 s{sT1}, s{sT1}, s{sT2}')
        A(f's_mul_i32 s{sT2}, s{sJ}, 192'); A(f's_add_u32 s{sWB1}, s{sT1}, s{sT2}'); A(f's_add_u32 s{sWB2}, s{sWB1}, 1536')
        A(f's_mul_i32 s{sT1}, s{sKH}, 12288'); A(f's_mul_i32 s{sT2}, s{sWH}, 6144'); A(f's_add_u32 s{sLW}, s{sT1}, s{sT2}')
        A(f's_mov_b64 s[{SWIN}:{SWIN+1}], s[48:49]'); A(f's_mov_b32 s{SWIN+2}, {640*3072}'); A(f's_mov_b32 s{SWIN+3}, 0x20000')
        for n in range(1, 5):
            A(f's_add_u32 s{sKX[n]}, s{sKX[n-1]}, 128'); A(f's_cmp_ge_u32 s{sKX[n]}, 640'); A(f's_cselect_b32 s{sKX[n]}, 0, s{sKX[n]}')
        A(f'v_and_b32 v{vC}, 15, v{vL}'); A(f'v_lshlrev_b32 v{vLin}, 4, v{vL}')
        A(f'v_lshlrev_b32 v{t0}, 18, v{vC}'); A(f'v_lshl_add_u32 v{vZ[1]}, v{vQ}, 7, v{t0}')
        A(f's_lshl_b32 s{sT1}, s{sWH}, 5'); A(f's_add_u32 s{sT1}, s{sT1}, s{sKH}'); A(f's_lshl_b32 s{sT1}, s{sT1}, 5'); A(f's_add_u32 s{sT1}, s{sT1}, s{sI}')
        A(f's_lshl_b32 s{sT1}, s{sT1}, 2'); A(f's_and_b32 s{sT2}, s{sJ}, 3'); A(f's_add_u32 s{sT1}, s{sT1}, s{sT2}'); A(f's_lshl_b32 s{sT1}, s{sT1}, 1')
        A(f's_lshr_b32 s{sT2}, s{sJ}, 2'); A(f's_add_u32 s{sT1}, s{sT1}, s{sT2}'); A(f's_lshl_b32 s{sTC}, s{sT1}, 9')
        A(f's_mov_b64 s[{SWSP}:{SWSP+1}], s[50:51]'); A(f's_mov_b32 s{SWSP+2}, {2048*4096}'); A(f's_mov_b32 s{SWSP+3}, 0x20000')
        A(f'v_xor_b32 v{vS[1]}, 64, v{vS[0]}'); A(f'v_add_u32 v{vS[1]}, {8*262144-1024}, v{vS[1]}')
        A(f's_mul_i32 s{sLH}, s{sW}, 3072')
        A(f's_mul_i32 s{sLS}, s{sW}, {NPS*2048}'); A(f's_add_u32 s{sLS}, s{sLS}, {LB + 8192}')
        A(f's_lshl_b32 s{sLW3}, s{sW}, 10')
        if o['probe2']:
            fl, n = o['probe2']
            st = [f's_load_dwordx2 s[{SCODE}:{SCODE+1}], s[0:1], 8', 's_waitcnt lgkmcnt(0)', f's_mov_b32 s{SCODE+2}, {2048*4096}', f's_mov_b32 s{SCODE+3}, 0x20000',
                  f's_lshl_b32 s{sT1}, s2, 2', f's_add_u32 s{sT1}, s{sT1}, s{sW}', f's_lshl_b32 s{sT1}, s{sT1}, 13',
                  f's_memrealtime s[{sHB-1}:{sHB}]', 's_waitcnt lgkmcnt(0)', f's_mov_b32 s{sT2}, s{sHB-1}']
            for x in range(n):
                st += [f'buffer_load_dwordx4 {v(ACC+4*x,4)}, v{vLin}, {srd(SCODE)}, s{sT1} offen{fl}', f's_add_u32 s{sT1}, s{sT1}, 1024']
            st += ['s_waitcnt vmcnt(0)', 's_barrier', f's_memrealtime s[{sHB-1}:{sHB}]', 's_waitcnt lgkmcnt(0)', f's_sub_u32 s{sWBUF}, s{sHB-1}, s{sT2}']
            p.append(Mark('raw', st))
        if o['probe']:
            off, stride, first = o['probe']; e = self.lab('probe')
            st = [f's_mov_b32 s{sFC}, 0', f's_or_b32 s{sT1}, s{sI}, s{sJ}', f's_or_b32 s{sT1}, s{sT1}, s{sW}', f's_cmp_eq_u32 s{sT1}, 0', f's_cbranch_scc0 {e}',
                  f's_load_dwordx2 s[{SCODE}:{SCODE+1}], s[0:1], {off}', 's_waitcnt lgkmcnt(0)', f's_mov_b32 s{SCODE+2}, {17*stride+first+4096}', f's_mov_b32 s{SCODE+3}, 0x20000', f'v_mov_b32 v{TMP}, 0',
                  f's_mov_b32 s{sT1}, {first}', f'buffer_load_dword v{TMP+1}, v{TMP}, {srd(SCODE)}, s{sT1} offen', 's_waitcnt vmcnt(0)',
                  f's_memrealtime s[{sHB-1}:{sHB}]', 's_waitcnt lgkmcnt(0)', f's_mov_b32 s{sT2}, s{sHB-1}']
            for n in range(16):
                st += [f's_add_u32 s{sT1}, s{sT1}, {stride}', f'buffer_load_dword v{TMP+1}, v{TMP}, {srd(SCODE)}, s{sT1} offen', 's_waitcnt vmcnt(0)']
            st += [f's_memrealtime s[{sHB-1}:{sHB}]', 's_waitcnt lgkmcnt(0)', f's_sub_u32 s{sFC}, s{sHB-1}, s{sT2}']
            p.append(Mark('raw', st)); p.append(f'{e}:'); p.append(f's_mov_b32 s{sWBUF}, s{sFC}')
        return head + [G(p), Mark('free', 'go')]

    def setup2(self):
        o = self.o
        p = []
        A = p.append
        for b, src, n in ((SBSP, 52, 4096), (SWO, 54, 768*1280), (SGATE, 56, 1280), (SOUT, 58, 2048*1280), (SWS, 62, WS_SIZE)):
            A(f's_mov_b64 s[{b}:{b+1}], s[{src}:{src+1}]'); A(f's_mov_b32 s{b+2}, {n}'); A(f's_mov_b32 s{b+3}, 0x20000')
        A(G(f's_cmp_eq_u32 s{sWH}, 0', f's_cselect_b64 s[{SH}:{SH+1}], s[44:45], s[46:47]'))
        A(f's_mov_b32 s{SH+2}, {640*1280}'); A(f's_mov_b32 s{SH+3}, 0x20000')
        if o['stamps']:
            self.nstamp = 1; self.stamp_names = ['entry']
            A(f's_mov_b32 s{STAMP0}, s{sC1}')
            if o['probe'] or o['probe2']:
                self.nstamp = 2; self.stamp_names = ['entry', 'probe']
                A(f's_add_u32 s{STAMP0+1}, s{sC1}, s{sWBUF}')
            if o['skew']:
                A(f'v_mov_b32 v{TMP}, s{sC1}'); A(f's_lshl_b32 s{sT1}, s2, 2'); A(f's_add_u32 s{sT1}, s{sT1}, {hx(STAMP+0x30000)}'); A(f'v_mov_b32 v{TMP+1}, 0')
                A(f'buffer_store_dword v{TMP}, v{TMP+1}, {srd(SWS)}, s{sT1} offen sc1')
        p += self.stamp('start')
        t0, t1, t2, t3 = TMP, TMP + 1, TMP + 2, TMP + 3
        A(f'v_mov_b32 v{t3}, 0')
        A(I(f'buffer_load_dword v{vTag}, v{t3}, {srd(SWS)}, 0 offen sc1'))
        A(f's_lshl_b32 s{sT1}, s{sWH}, 5'); A(f's_add_u32 s{sT1}, s{sT1}, s{sKH}'); A(f's_lshl_b32 s{sT1}, s{sT1}, 5'); A(f's_add_u32 s{sT1}, s{sT1}, s{sI}')
        A(f's_lshl_b32 s{sT1}, s{sT1}, 1')
        A(f'v_lshlrev_b32 v{t2}, 7, v{vC}')
        A(I(f'buffer_load_ushort v{vBias}, v{t2}, {srd(SBSP)}, s{sT1} offen'))
        A(f's_xor_b32 s{sT1}, s{sT1}, 64')
        A(I(f'buffer_load_ushort v{vBias1}, v{t2}, {srd(SBSP)}, s{sT1} offen'))
        A(f'v_lshrrev_b32 v{t0}, 1, v{vC}'); A(f'v_xor_b32 v{t0}, v{t0}, v{vQ}'); A(f'v_lshlrev_b32 v{t0}, 4, v{t0}')
        A(f'v_lshl_add_u32 v{vRb[0]}, v{vC}, 7, v{t0}'); A(f'v_xor_b32 v{vRb[1]}, 64, v{vRb[0]}')
        A(f's_xor_b32 s{sT1}, s{sLX}, 4096')
        for k in range(2):
            A(f'v_add_u32 v{vRx[k]}, s{sLX}, v{vRb[k]}'); A(f'v_add_u32 v{vRp[k]}, s{sT1}, v{vRb[k]}'); A(f'v_add_u32 v{vRs[k]}, s{sLS}, v{vRb[k]}')
        A(f'v_bfe_u32 v{t0}, v{vL}, 2, 2'); A(f'v_lshl_add_u32 v{t0}, v{vQ}, 3, v{t0}'); A(f'v_mul_u32_u24 v{t0}, 192, v{t0}')
        A(f'v_and_b32 v{t1}, 3, v{vL}'); A(f'v_lshl_add_u32 v{t0}, v{t1}, 3, v{t0}')
        A(f'v_xor_b32 v{t1}, s{sKH}, v{vQ}'); A(f'v_and_b32 v{t1}, 1, v{t1}'); A(f'v_lshl_add_u32 v{t0}, v{t1}, 5, v{t0}')
        A(f's_mul_i32 s{sT1}, s{sKH}, 12288'); A(f'v_add_u32 v{vTe}, s{sT1}, v{t0}'); A(f's_sub_u32 s{sT1}, 12288, s{sT1}'); A(f'v_add_u32 v{vTo}, s{sT1}, v{t0}')
        A(f'v_and_b32 v{t0}, 1, v{vQ}'); A(f'v_xor_b32 v{t0}, s{sW}, v{t0}'); A(f'v_mul_u32_u24 v{t0}, 24576, v{t0}')
        A(f'v_lshrrev_b32 v{t1}, 1, v{vQ}'); A(f'v_lshl_add_u32 v{t0}, v{t1}, 8, v{t0}'); A(f'v_lshl_add_u32 v{t0}, v{vC}, 4, v{t0}')
        A(f's_lshl_b32 s{sT1}, s{sKH}, 9'); A(f'v_add_u32 v{vHs}, s{sT1}, v{t0}')
        A(f's_lshl_b32 s{sT1}, s{sI}, 2'); A(f's_add_u32 s{sT1}, s{sT1}, s{sW}')
        A(f's_mul_i32 s{sT2}, s{sT1}, 205'); A(f's_lshr_b32 s{sT2}, s{sT2}, 10')
        A(f's_mul_i32 s{sT3}, s{sT2}, 5'); A(f's_sub_u32 s{sT3}, s{sT1}, s{sT3}')
        A(f's_and_b32 s{sT4}, s{sT2}, 7'); A(f's_mul_i32 s{sT4}, s{sT4}, 3'); A(f's_lshr_b32 s{sT2}, s{sT2}, 3'); A(f's_add_u32 s{sT2}, s{sT2}, s{sT4}')
        A(f's_mul_i32 s{sT2}, s{sT2}, {32*1280}'); A(f's_lshl_b32 s{sT3}, s{sT3}, 5'); A(f's_add_u32 s{sT2}, s{sT2}, s{sT3}')
        A(f's_mul_i32 s{sT3}, s{sJ}, 160'); A(f's_add_u32 s{sT2}, s{sT2}, s{sT3}')
        A(f's_mul_i32 s{sT3}, s{sJ}, 120'); A(f's_add_u32 s{sT3}, s{sT3}, s{sT1}'); A(f's_lshl_b32 s{sT3}, s{sT3}, 10'); A(f's_add_u32 s{sT3}, s{sT3}, {hx(WBUF)}')
        A(G(f's_cmp_lt_u32 s{sT1}, 120', f's_cselect_b32 s{sREL}, s{sT2}, {hx(OOB)}', f's_cselect_b32 s{sFC}, s{sT3}, {hx(OOB)}'))
        A(f'v_lshrrev_b32 v{t0}, 1, v{vL}'); A(f'v_mul_u32_u24 v{t0}, 1280, v{t0}'); A(f'v_and_b32 v{t1}, 1, v{vL}'); A(f'v_lshl_add_u32 v{vZ[0]}, v{t1}, 4, v{t0}')
        A(Mark('free', 'go2'))
        A(f's_mul_i32 s{sT1}, s{sKH}, 640'); A(f's_add_u32 s{sT2}, s{sT1}, {L_GATE}'); A(f'v_lshl_add_u32 v{vGa}, v{vQ}, 4, s{sT2}')
        A(f's_sub_u32 s{sT2}, {L_GATE + 640}, s{sT1}'); A(f'v_lshl_add_u32 v{vGb}, v{vQ}, 4, s{sT2}')
        A(f's_mul_i32 s{sT1}, s{sW}, 6144'); A(f's_add_u32 s{sT1}, s{sT1}, {LC}'); A(f'v_add_u32 v{vExR}, s{sT1}, v{vLin}')
        for u in range(1, 4):
            A(f's_xor_b32 s{sT1}, s{sW}, {u}'); A(f's_mul_i32 s{sT1}, s{sT1}, 6144')
            A(f's_add_u32 s{sT1}, s{sT1}, {LC + (u-1)*2048}'); A(f'v_add_u32 v{vRd[u-1]}, s{sT1}, v{vLin}')
        A(f's_lshl_b32 s{sT1}, s{sW}, 9'); A(f's_add_u32 s{sT1}, s{sT1}, {LC}'); A(f'v_lshl_add_u32 v{vMx}, v{vL}, 3, s{sT1}')
        A(f's_mul_i32 s{sT1}, s{sKH}, 24'); A(f's_mul_i32 s{sT2}, s{sJ}, {40*1280}')
        for y in range(3):
            A(f'v_lshrrev_b32 v{t0}, 3, v{vL}'); A(f'v_add_u32 v{t0}, s{sT1}, v{t0}')
            if y: A(f'v_add_u32 v{t0}, {8*y}, v{t0}')
            A(f'v_lshrrev_b32 v{t1}, 1, v{t0}'); A(f'v_xor_b32 v{t1}, v{t1}, v{vL}'); A(f'v_and_b32 v{t1}, 7, v{t1}')
            A(f'v_min_u32 v{t0}, 40, v{t0}'); A(f'v_mul_u32_u24 v{t0}, 1280, v{t0}'); A(f'v_lshl_add_u32 v{t0}, v{t1}, 4, v{t0}')
            A(f'v_add_u32 v{vH[y]}, s{sT2}, v{t0}')
            if y: A(f'v_subrev_u32 v{vH[y]}, {1024*y}, v{vH[y]}')
        A(f'v_and_b32 v{t0}, 31, v{vL}'); A(f'v_min_u32 v{t0}, 20, v{t0}'); A(f's_mul_i32 s{sT1}, s{sKH}, 20'); A(f'v_add_u32 v{t0}, s{sT1}, v{t0}')
        A(f'v_mul_u32_u24 v{t0}, 1280, v{t0}'); A(f'v_add_u32 v{vHt}, s{sT2}, v{t0}')
        mg, mc, mp = o['smask']
        A(f's_mov_b32 s{sMK}, 0')
        if mg: A(f's_lshr_b32 s{sT1}, s{sJ}, 2'); A(f's_lshl_b32 s{sMK}, s{sT1}, 3')
        if mc == 1: A(f's_and_b32 s{sT1}, s{sJ}, 1'); A(f's_lshl_b32 s{sT1}, s{sT1}, 2'); A(f's_or_b32 s{sMK}, s{sMK}, s{sT1}')
        if mc == 2: A(f's_and_b32 s{sT1}, s{sJ}, 3'); A(f's_lshl_b32 s{sT1}, s{sT1}, 1'); A(f's_or_b32 s{sMK}, s{sMK}, s{sT1}')
        if mp: A(f's_and_b32 s{sT1}, s{sI}, 1'); A(f's_or_b32 s{sMK}, s{sMK}, s{sT1}')
        A(f's_and_b32 s{sT1}, s{sMK}, 1'); A(f's_lshl_b32 s{sT1}, s{sT1}, 6')
        for k in range(2): A(f'v_xor_b32 v{vRs[k]}, s{sT1}, v{vRs[k]}')
        A(f's_lshr_b32 s{sT3}, s{sMK}, 1'); A(f's_lshl_b32 s{sT3}, s{sT3}, 7')
        for u in range(4):
            A(f's_xor_b32 s{sT1}, s{sW}, {u}'); A(f's_and_b32 s{sT2}, s{sT1}, 1'); A(f's_bfe_u32 s{sT1}, s{sT1}, 0x10001')
            A(f's_lshl_b32 s{sT1}, s{sT1}, 5'); A(f's_add_u32 s{sT1}, s{sT1}, s{sT2}'); A(f's_lshl_b32 s{sT1}, s{sT1}, 5'); A(f's_add_u32 s{sT1}, s{sT1}, s{sI}')
            A(f's_lshl_b32 s{sT1}, s{sT1}, 12'); A(f's_add_u32 s{sT1}, s{sT1}, s{sLW3}'); A(f's_or_b32 s{sSP[u]}, s{sT1}, s{sT3}')
        A(Mark('free', 'go3'))
        A(f's_mul_i32 s{sT1}, s{sJ}, 12'); A(f's_lshl_b32 s{sT2}, s{sWH}, 1'); A(f's_add_u32 s{sT1}, s{sT1}, s{sT2}')
        A(f's_and_b32 s{sT2}, s{sMK}, 1'); A(f's_add_u32 s{sT1}, s{sT1}, s{sT2}'); A(f's_lshl_b32 s{sT1}, s{sT1}, 15')
        A(f's_lshl_b32 s{sT2}, s{sKH}, 14'); A(f's_add_u32 s{sT1}, s{sT1}, s{sT2}')
        A(f's_lshr_b32 s{sT2}, s{sMK}, 3'); A(f's_lshl_b32 s{sT2}, s{sT2}, 13'); A(f's_add_u32 s{sT1}, s{sT1}, s{sT2}'); A(f's_add_u32 s{sZB}, s{sT1}, {hx(Z2B)}')
        A(f's_lshl_b32 s{sT1}, s{sI}, 2'); A(f's_add_u32 s{sT1}, s{sT1}, s{sW}'); A(f's_mul_i32 s{sT1}, s{sT1}, 24576'); A(f's_add_u32 s{sHB}, s{sT1}, {hx(HBUF)}')
        A(f's_mul_i32 s{sT1}, s{sJ}, 122880'); A(f's_add_u32 s{sT1}, s{sT1}, s{sLW3}'); A(f's_add_u32 s{sWBUF}, s{sT1}, {hx(WBUF)}')
        A(f's_lshl_b32 s{sT1}, s{sI}, 3'); A(f's_add_u32 s{sT1}, s{sT1}, s{sJ}'); A(f's_mul_i32 s{sT1}, s{sT1}, 20480')
        A(f's_mul_i32 s{sT2}, s{sW}, 5120'); A(f's_add_u32 s{sT1}, s{sT1}, s{sT2}'); A(f's_add_u32 s{sT1S}, s{sT1}, {hx(T1B)}')
        A(f'v_lshrrev_b32 v{t1}, 1, v{vQ}'); A(f's_lshl_b32 s{sT1}, s{sKH}, 1'); A(f'v_add_u32 v{t3}, s{sT1}, v{t1}')
        A(f'v_and_b32 v{t1}, 3, v{vL}'); A(f'v_lshl_or_b32 v{t0}, v{t3}, 2, v{t1}')
        A(f's_and_b32 s{sT1}, s{sI}, 11'); A(f'v_xor_b32 v{t0}, s{sT1}, v{t0}'); A(f'v_lshlrev_b32 v{t0}, 4, v{t0}')
        A(f'v_lshrrev_b32 v{t1}, 2, v{vC}'); A(f'v_lshl_add_u32 v{t0}, v{t1}, 13, v{t0}')
        A(f'v_and_b32 v{t1}, 1, v{vQ}'); A(f'v_xor_b32 v{t1}, s{sW}, v{t1}'); A(f'v_lshl_add_u32 v{t0}, v{t1}, 15, v{t0}')
        A(f's_lshl_b32 s{sT1}, s{sI}, 8'); A(f'v_add_u32 v{vZs}, s{sT1}, v{t0}')
        c0 = -2.0 * math.sqrt(2.0 / math.pi) * math.log2(math.e)
        A(f's_mov_b32 s{sC1}, {hx(f2u(c0*0.044715))}'); A(f's_mov_b32 s{sC1+1}, s{sC1}')
        A(f'v_mov_b32 v{vC0}, {hx(f2u(c0))}'); A(f'v_mov_b32 v{vC0+1}, v{vC0}')
        A(f's_mov_b32 s{sTO}, 200000')
        A(f'v_and_b32 v{t0}, 1, v{vC}'); A(f'v_lshlrev_b32 v{t0}, 31, v{t0}'); A(f'v_or_b32 v{t0}, 1.0, v{t0}')
        A(G(f's_cmp_eq_u32 s{sKH}, 0', 's_cselect_b64 vcc, -1, 0',
            f'v_cndmask_b32 v{vAl}, v{t0}, 1.0, vcc', f'v_cndmask_b32 v{vBe}, 1.0, v{t0}, vcc'))
        def pat(dst, Rreg):
            A(f'v_lshrrev_b32 v{t1}, 1, v{Rreg}'); A(f'v_xor_b32 v{t1}, v{t1}, v{vQ}'); A(f'v_and_b32 v{t1}, 7, v{t1}'); A(f'v_lshlrev_b32 v{t1}, 4, v{t1}')
            A(f'v_lshl_add_u32 v{dst}, v{Rreg}, 7, v{t1}'); A(f'v_xor_b32 v{dst+1}, 64, v{dst}')
        A(f'v_sub_u32 v{t0}, 16, v{vC}'); pat(vZ[4], t0)
        A(f'v_add_u32 v{t0}, 32, v{vC}'); A(f'v_sub_u32 v{t2}, 48, v{vC}')
        A(f'v_cmp_gt_u32 vcc, 8, v{vC}'); A(f'v_mov_b32 v{t1}, 0x80008000'); A(f'v_cndmask_b32 v{t0}, v{t2}, v{t0}, vcc'); A(f'v_cndmask_b32 v{vZ[7]}, v{t1}, 0, vcc')
        pat(vZ[2], t0)
        A(f's_mul_i32 s{sT1}, s{sJ}, 20480'); A(f's_sub_u32 s{sT1}, {15*10240 - 81920}, s{sT1}')
        A(f's_mov_b32 s{sT2}, 81920')
        for n in range(5):
            A(f'v_add_u32 v{t0}, {64*n}, v{vL}'); A(f'v_mul_u32_u24 v{t1}, 3277, v{t0}'); A(f'v_lshrrev_b32 v{t1}, 16, v{t1}')
            A(f'v_mul_u32_u24 v{t2}, 20, v{t1}'); A(f'v_sub_u32 v{t0}, v{t0}, v{t2}'); A(f'v_lshlrev_b32 v{t0}, 4, v{t0}')
            A(f'v_mad_u32_u24 v{t0}, v{t1}, s{sT2}, v{t0}'); A(f'v_and_b32 v{t1}, 1, v{t1}'); A(f'v_mul_lo_u32 v{t1}, v{t1}, s{sT1}'); A(f'v_add_u32 v{vGo[n]}, v{t0}, v{t1}')
        A(f'v_lshrrev_b32 v{t1}, 3, v{vC}'); A(f'v_mul_u32_u24 v{t1}, 24, v{t1}'); A(f's_lshl_b32 s{sT1}, s{sW}, 3'); A(f'v_add3_u32 v{t0}, s{sT1}, v{vC}, v{t1}')
        A(f'v_and_b32 v{t1}, 1, v{vQ}'); A(f'v_lshlrev_b32 v{t1}, 4, v{t1}'); A(f'v_lshrrev_b32 v{t2}, 1, v{vQ}'); A(f'v_add_u32 v{t1}, v{t1}, v{t2}')
        A(f'v_lshlrev_b32 v{t1}, 5, v{t1}'); A(f'v_add_u32 v{t1}, s{sI}, v{t1}')
        A(f'v_mul_u32_u24 v{t1}, v{t0}, v{t1}'); A(f'v_lshlrev_b32 v{t2}, 6, v{t0}')
        A(f'v_and_b32 v{vSgn}, 1, v{t0}'); A(f'v_mul_u32_u24 v{vSgn}, 0x8000, v{vSgn}'); A(f'v_lshl_or_b32 v{vSgn}, v{vSgn}, 16, v{vSgn}')
        cs, sn = ACC, ACC + 8
        for x in range(8):
            A(f'v_and_b32 v{t3}, 0x7ff, v{t1}'); A(f'v_cvt_f32_u32 v{t3}, v{t3}'); A(f'v_mul_f32 v{t3}, {hx(f2u(1/2048))}, v{t3}')
            A(f'v_cos_f32 v{cs+x}, v{t3}'); A(f'v_sin_f32 v{sn+x}, v{t3}')
            if x < 7: A(f'v_add_u32 v{t1}, v{t1}, v{t2}')
        for x in range(4):
            A(f'v_cvt_pk_bf16_f32 v{CB+x}, v{cs+2*x}, v{cs+2*x+1}'); A(f'v_cvt_pk_bf16_f32 v{CB+4+x}, v{sn+2*x}, v{sn+2*x+1}')
        A(f's_lshl_b32 s{sT1}, s{sWH}, 4'); A(f'v_add_u32 v{t0}, s{sT1}, v{vC}')
        A(f'v_lshrrev_b32 v{t1}, 1, v{vQ}'); A(f'v_lshlrev_b32 v{t1}, 3, v{t1}'); A(f'v_mul_u32_u24 v{t1}, v{t0}, v{t1}')
        A(f'v_and_b32 v{t2}, 1, v{vQ}'); A(f'v_mul_u32_u24 v{t2}, 24, v{t2}'); A(f'v_add_u32 v{t1}, v{t1}, v{t2}')
        for x in range(8):
            A(f'v_and_b32 v{t3}, 31, v{t1}'); A(f'v_cvt_f32_u32 v{t3}, v{t3}'); A(f'v_mul_f32 v{t3}, {hx(f2u(1/32))}, v{t3}')
            A(f'v_cos_f32 v{cs+x}, v{t3}')
            if x < 7: A(f'v_add_u32 v{t1}, v{t1}, v{t0}')
        A(f'v_and_b32 v{t0}, 1, v{t0}'); A(f'v_mul_u32_u24 v{t0}, 0x8000, v{t0}'); A(f'v_lshl_or_b32 v{t0}, v{t0}, 16, v{t0}')
        for x in range(4):
            A(f'v_cvt_pk_bf16_f32 v{CF+x}, v{cs+2*x}, v{cs+2*x+1}')
        for x in range(4):
            A(f'v_xor_b32 v{CF+4+x}, v{CF+x}, v{t0}')
        return p

    def tag(self):
        return [f'v_readfirstlane_b32 s{sTAG}, v{vTag}', f's_mul_i32 s{sTAG}, s{sTAG}, 0x9e3779b1', f's_add_u32 s{sTAG}, s{sTAG}, 0x7f4a7c15',
                f'v_mov_b32 v{vTag}, s{sTAG}', f'v_lshlrev_b32 v{vBias}, 16, v{vBias}', f'v_lshlrev_b32 v{vBias1}, 16, v{vBias1}', Mark('waitregs', [f'v{POLL}', f'v{POLL+1}'])]

    def stream(self):
        o = self.o
        S = []
        def wstage(n):
            slot = n % 3; kp = n % 5; tok = f'S{n}'
            need = ['go'] if n < 3 else [f'W{n-3}']
            base = sWB2 if n < 5 else sWB1
            xs, ws = [], []
            if n < 5:
                xn, xt = (['goX'], 'X0') if n == 0 else (need, tok)
                for u in range(2):
                    xs.append(Bundle([f's_add_u32 m0, s{sLX}, {slot*16384 + u*2048}', f's_add_u32 s{sT0}, s{sXB[u]}, s{sKX[kp]}',
                                      I(f'buffer_load_dwordx4 v{vX[0]}, {srd(SX)}, s{sT0} offen lds', tok=xt)], 68, xn, xt))
                    xs.append(Bundle([I(f'buffer_load_dwordx4 v{vX[1]}, {srd(SX)}, s{sT0} offen offset:1024 lds', tok=xt)], 68, xn, xt))
            for g in range(2):
                for x in range(3):
                    pre = []
                    if x == 0:
                        pre = [f's_mul_i32 s{sT0}, s{sKX[kp]}, 1536', f's_add_u32 m0, s{sLW}, {slot*24576 + g*3072}', f's_add_u32 s{sT0}, s{sT0}, s{base}']
                        if g: pre.append(f's_add_u32 s{sT0}, s{sT0}, {16*3072}')
                    ws.append(Bundle(pre + [I(f'buffer_load_dwordx4 v{vW[x]}, {srd(SWIN)}, s{sT0} offen offset:{1024*x} lds', tok=tok)], o['wcost'], need, tok))
            return xs + ws
        def hstage(n):
            out = []
            for y in range(3):
                pre = [f's_add_u32 m0, s{sLH}, {H_BASE[n]}'] if y == 0 else []
                out.append(Bundle(pre + [I(f'buffer_load_dwordx4 v{vH[y]}, {srd(SH)}, s{sKX[n]} offen offset:{1024*y} lds', tok=f'H{n}')], 62, [f'W{7 + n//2}'], f'H{n}'))
            return out
        for n in range(8):
            S += wstage(n)
            if n == o['hpos']:
                if o['htouch']:
                    S.append(Bundle([I(f'buffer_load_dword v{POLL+3}, v{vHt}, {srd(SH)}, s{sKX[0]} offen', tok='htouch')], 100, ['go3'], 'htouch'))
            for part, (tp, tc) in enumerate(o['tparts']):
                if tp == n:
                    nl = 64 // len(o['tparts']); mask = ((1 << nl) - 1) << (nl * part)
                    S.append(Bundle([f's_mov_b32 exec_lo, {hx(mask)}', f's_mov_b32 exec_hi, {hx(mask >> 32)}',
                                     I(f'buffer_load_dword v{POLL+2}, v{vZ[1]}, {srd(SWSP)}, s{sTC} offen', tok='touch'), 's_mov_b64 exec, -1'], tc, ['go'], 'touch'))
            if n == 4:
                S.append(Bundle([f's_mul_i32 s{sT0}, s{sW}, 320', f's_add_u32 m0, s{sT0}, {L_GATE}', 's_mov_b64 exec, 0xfffff',
                                 I(f'buffer_load_dwordx4 v{vLin}, {srd(SGATE)}, s{sT0} offen lds', tok='gate'), 's_mov_b64 exec, -1'], 30, ['go2'], 'gate'))
        S.append(Bundle([f's_add_u32 m0, s{sLW3}, {L_REL}',
                         I(f'buffer_load_dwordx4 v{vZ[0]}, {srd(SWO)}, s{sREL} offen lds', tok='rel')], 68, ['go2'], 'rel'))
        NB = o['nb']
        def consume(n):
            kp, u = n >> 2, n & 3; slot = n % NPS
            need = [f'XA{(8*n - AX)//16}'] if 8*n >= AX else []
            return Bundle([Mark('need', [f'P{n}'])] +
                          [I(f'ds_read_b128 {a(32*kp + 8*u + 4*k, 4)}, v{vRs[k]} offset:{slot*2048}', tok=f'Pr{n}') for k in range(2)], 0, need, f'Pc{n}')
        def punit(n):
            kp, u = n >> 2, n & 3; slot = n % NPS; tok = f'P{n}'; out = []
            pc = o['pcost'][n // 8]
            pre = [Mark('waitds', [f'Pr{n-NPS}'])] if n >= NPS else []
            out.append(Bundle(pre + [f's_add_u32 m0, s{sLS}, {slot*2048}', f's_xor_b32 s{sT0}, s{sSP[u]}, {128*kp}',
                                     I(f'buffer_load_dwordx4 v{vS[0]}, {srd(SWSP)}, s{sT0} offen lds', tok=tok)], pc, ['Xdead'], tok))
            out.append(Bundle([I(f'buffer_load_dwordx4 v{vS[1]}, {srd(SWSP)}, s{sT0} offen offset:1024 lds', tok=tok)], pc, ['Xdead'], tok))
            if n >= NB: out.append(consume(n - NB))
            return out
        cuts = dict(zip(o['pcut'], ('S8', 'S9', 'Ha', 'Hb', 'Hc')))
        assert len(cuts) == 5
        for n in range(32):
            what = cuts.get(n)
            if what == 'S8': S += wstage(8)
            if what == 'S9': S += wstage(9)
            if what == 'Ha': S += hstage(0) + hstage(1)
            if what == 'Hb': S += hstage(2) + hstage(3)
            if what == 'Hc': S += hstage(4)
            S += punit(n)
        tailc = [consume(n) for n in range(32 - NB, 32)]
        for sg in range(12):
            p, ga, pi = sg >> 2, (sg >> 1) & 1, sg & 1; slot = sg % 3; tok = f'Z{sg}'
            need = ['flagB0' if sg == 0 else 'flagB'] + ([f'Zf{sg-3}'] if sg >= 3 else [])
            for x in range(8):
                pre = []
                if x == 0:
                    pre += [f's_add_u32 m0, s{sLZ}, {slot*8192}', f's_xor_b32 s{sT0}, s{sZB}, {pi*32768 + ga*8192}']
                    if p: pre.append(f's_add_u32 s{sT0}, s{sT0}, {p*131072}')
                if x == 4:
                    pre += [f's_add_u32 m0, s{sLZ}, {slot*8192 + 4096}', f's_add_u32 s{sT0}, s{sT0}, 4096']
                S.append(Bundle(pre + [I(f'buffer_load_dwordx4 v{vLin}, {srd(SWS)}, s{sT0} offen offset:{(x%4)*1024} sc1 lds', tok=tok)], o['zcost'], need, tok))
                if sg == 0 and x % 2 == 1 and tailc: S.append(tailc.pop(0))
            if sg == 0: S += tailc
        def wpart(n):
            out = []
            for x in range(10):
                xx = 10*n + x
                if n == 0: m0, need = f's_add_u32 m0, s{sLW3}, {L_W0 + x*4096}', ['flagB']
                else: m0, need = f's_add_u32 m0, s{sLZ}, {(xx-10)*1024}', [f'Zf{9 + (xx-10)//8}']
                out.append(Bundle([m0, f's_add_u32 s{sT0}, s{sWBUF}, {xx*4096}',
                                   I(f'buffer_load_dwordx4 v{vLin}, {srd(SWS)}, s{sT0} offen sc1 lds', tok=f'O{n}')], o['zcost'], need, f'O{n}'))
            return out
        def hpart(n):
            out = []
            for k in range(8):
                kk = 8*n + k
                pre = [f's_add_u32 s{sT0}, s{sHB}, {kk*1024}'] if k % 4 == 0 else []
                out.append(Bundle(pre + [I(f'buffer_load_dwordx4 {self.hreg(kk)}, v{vLin}, {srd(SWS)}, s{sT0} offen offset:{(k%4)*1024} sc1', tok=f'h{n}')],
                                  o['zcost'], [f'flagC{n}'], f'h{n}'))
            return out
        tpart = []
        for x in range(5):
            pre = []
            if x in (0, 4):
                pre = [f's_mul_i32 s{sT0}, s{sW}, 5120', f's_add_u32 m0, s{sT0}, {LC + x*1024}', f's_add_u32 s{sT0}, s{sT1S}, {x*1024}']
            tpart.append(Bundle(pre + [I(f'buffer_load_dwordx4 v{vLin}, {srd(SWS)}, s{sT0} offen offset:{(x%4)*1024} sc1 lds', tok='T')], o['zcost'], ['Cfree', 'flagT'], 'T'))
        w0 = wpart(0)
        for k, (zs, cnt) in enumerate(o['o0at']):
            pos = max(n for n, b in enumerate(S) if b.tok == f'Z{zs}') + 1
            for b in w0[:cnt]: b.need = set(b.need) | {f'Zf{zs-3}'}
            S[pos:pos] = w0[:cnt]; w0 = w0[cnt:]
        S += w0 + wpart(1) + hpart(0) + wpart(2)[:o['o2pre']] + hpart(1) + tpart + wpart(2)[o['o2pre']:] + hpart(2)
        for b in S:
            if b.tok and any(b.tok.startswith(x) for x in o['drop']):
                b.items = [it for it in b.items if not (isinstance(it, Ins) and it.kind == 'vm')]; b.cost = 0
        for b, cst in zip(S, o['cold']): b.cost = cst
        return S

    def hreg(self, kk):
        if kk < 8: return a(32*(kk >> 2) + 8*(kk & 3), 4)
        if kk < 16: return v([FR[0]+20, FR[0]+24, FR[0]+28, FR[1]+20, FR[1]+24, FR[1]+28, CB, CB+4][kk-8], 4)
        return v(Z2 + 4*(kk - 16), 4)

    def l_w(self, n):
        x, w = n >> 2, n & 3
        return L_W0 + n*1024 if n < 40 else w*24576 + (x - 10)*1024

    def codepf(self, part):
        if not self.o['codepf2']: return []
        return [f's_getpc_b64 s[{SCODE}:{SCODE+1}]', f'L_cq{part}:', f's_mov_b32 s{SCODE+2}, L_code_end - L_cq{part}', f's_mov_b32 s{SCODE+3}, 0x20000',
                f's_and_b32 s{sT1}, s{sI}, 7', f's_lshl_b32 s{sT1}, s{sT1}, 2', f's_add_u32 s{sT1}, s{sT1}, s{sW}', f's_lshl_b32 s{sT1}, s{sT1}, 8', f's_add_u32 s{sT1}, s{sT1}, {self.o["codepf2"]}',
                f'v_and_b32 v{vT}, 128, v{vLin}', f'buffer_load_dword v{POLL+3}, v{vT}, {srd(SCODE)}, s{sT1} offen']

    def poll(self, load, regs, mask=None, pre=(), wait=None):
        chk, ok = self.lab('chk'), self.lab('ok')
        p = [Mark('waitregs', wait or regs), f'{chk}:'] + list(pre)
        p.append(f'v_cmp_ne_u32 vcc, s{sTAG}, {regs[0]}')
        for r in regs[1:]:
            p += [f'v_cmp_ne_u32 s[{sT3+1}:{sT3+2}], s{sTAG}, {r}'.replace(f's[{sT3+1}:{sT3+2}]', 's[62:63]'), 's_or_b64 vcc, vcc, s[62:63]']
        if mask is not None: p.append(f's_and_b64 vcc, vcc, {mask}')
        p.append(f's_cbranch_vccz {ok}')
        p.append(Mark('raw', [f's_cmp_eq_u32 s{sTO}, 0', f's_cbranch_scc1 {ok}', f's_sub_u32 s{sTO}, s{sTO}, 1'] + load +
                      ['s_waitcnt vmcnt(0)', f's_branch {chk}']))
        p.append(f'{ok}:')
        return G(p)

    def flag_store(self, toks, soff):
        return G(Mark('need', toks), f'v_mov_b32 v{vT}, 0', 's_mov_b64 exec, 1',
                 f'buffer_store_dword v{vTag}, v{vT}, {srd(SWS)}, s{soff} offen sc1', 's_mov_b64 exec, -1')

    def gemm(self, kind, extra=(), late=()):
        st0 = {'z2': 0, 'z1': 5, 'A': 0}[kind]
        def tok(n): return f'H{n}' if kind == 'A' else f'S{st0+n}'
        def xr(ks, hh, s): return a(AX + 16*ks + 8*hh + 4*s, 4)
        def reads(ks):
            n, k = ks >> 1, ks & 1; fr = FR[ks & 1]; out = []
            if kind == 'A':
                pre = [f'v_subrev_u32 v{vRx[k]}, 2048, v{vRx[k]}'] if n == 4 else []
                return pre + [f'ds_read_b128 {v(fr+4*T, 4)}, v{vRx[k]} offset:{H_BASE[n] - (2048 if n < 4 else 0) + T*2048}' for T in range(3)]
            slot = (st0 + n) % 3
            if kind == 'z1' and k == 0: out += [f'v_add_u32 v{vGt}, s{sKX[n]}, v{vGa}', f'v_add_u32 v{vGu}, s{sKX[n]}, v{vGb}']
            for hh in range(2):
                if kind == 'z2':
                    for s in range(2):
                        out.append(f'ds_read_b128 {xr(ks, hh, s)}, v{(vRx, vRp)[hh][k]} offset:{slot*16384 + (s ^ hh)*2048}')
                for pp in range(3):
                    for hf in range(2):
                        out.append(f'ds_read_b64_tr_b16 {v(fr+12*hh+4*pp+2*hf, 2)}, v{(vTe, vTo)[hh]} offset:{slot*24576 + k*6144 + hf*768 + 64*pp}')
                if kind == 'z1':
                    out.append(f'ds_read_b128 {v(fr+24+4*hh, 4)}, v{(vGt, vGu)[hh]} offset:{64*k}')
            return out
        def mf(ks):
            fr = FR[ks & 1]; out = []
            if kind == 'A':
                for T in range(3):
                    for hh in range(2):
                        for s in range(2):
                            out.append(mfma(v(ACC + 24*hh + 8*T + 4*s, 4), xr(ks, hh, s), v(fr+4*T, 4), '0' if ks == 0 else None))
                return out
            Z = Z2 if kind == 'z2' else Z1
            for hh in range(2):
                c = '0' if ks == 0 and hh == 0 else None
                for pp in range(3):
                    for s in range(2):
                        out.append(mfma(v(Z + 8*pp + 4*s, 4), v(fr+12*hh+4*pp, 4), xr(ks, hh, s), c))
                if kind == 'z1': out.append(mfma(v(GACC, 4), v(fr+24+4*hh, 4), xr(ks, hh, 0), c))
            return out
        p = []
        if kind == 'A':
            p += [Mark('need', ['H0', 'H1']), 's_barrier']
        else:
            p += [Mark('need', [tok(0)] + (['X0'] if kind == 'z2' else ['gate'])), 's_barrier']
        if kind == 'z2': p += self.stamp('S0 landed')
        p += reads(0)
        extra = norm(extra); per_blk = -(-len(extra) // 10)
        for ks in range(10):
            n, k = ks >> 1, ks & 1
            if k == 1: p += self.stamp(f'@1{kind} n{n}')
            if k == 1 and kind != 'A':
                if late and n < 4:
                    h = -(-len(late) // 4); p += late[n*h:(n+1)*h]
                p.append(Mark('waitds', None))
                if n < 4: p += [Mark('need', [tok(n+1)])]
                p += ['s_barrier', Mark('free', f'W{st0+n}')]
                if n == 4 and kind == 'z2': p.append(Mark('free', 'Xdead'))
            if kind == 'A' and ks == 3: p += [Mark('need', ['H2', 'H3', 'H4']), 's_barrier']
            fill = reads(ks+1) if ks < 9 else []
            m = mf(ks)
            ex = []
            if kind == 'z1' and ks == 3: ex = self.relayout1()
            if kind == 'z1' and ks == 5: ex = self.relayout2()
            if kind == 'z1' and ks == self.o['statat']: ex = self.stat_loads()
            if extra: ex = ex + extra[ks*per_blk:(ks+1)*per_blk]
            p += slot(m, (fill, 0, 2 if len(fill) >= len(m) else 1), (ex, 0, 2))
            if kind == 'A': p.append(Mark('free', f'XA{ks}'))
        return p

    def relayout1(self):
        t0, t1 = TMP, TMP + 1
        return [f'v_bfe_u32 v{t0}, v{vL}, 2, 2', f'v_lshl_add_u32 v{t0}, v{vQ}, 3, v{t0}', f'v_lshlrev_b32 v{t0}, 5, v{t0}',
                f'v_and_b32 v{t1}, 3, v{vL}', f'v_lshl_add_u32 v{t0}, v{t1}, 3, v{t0}',
                f's_add_u32 s{sT1}, s{sLW3}, {L_REL}', f'v_add_u32 v{t0}, s{sT1}, v{t0}', Mark('need', ['rel']),
                f'ds_read_b64_tr_b16 {v(TMP+4, 2)}, v{t0}', f'ds_read_b64_tr_b16 {v(TMP+6, 2)}, v{t0} offset:128']

    def relayout2(self):
        return [I(f'buffer_store_dwordx4 {v(TMP+4, 4)}, v{vLin}, {srd(SWS)}, s{sFC} offen sc1', tok='relst'),
                f's_lshl_b32 s{sT1}, s{sI}, 1', f's_add_u32 s{sT1}, s{sT1}, s{sWH}', f's_lshl_b32 s{sT1}, s{sT1}, 12', f's_add_u32 s{sFC}, s{sT1}, {FLAGC}']

    def gelu(self, z, recv, tmp):
        p = []
        if self.o['pk']:
            for T in range(0, 24, 4):
                if recv is not None:
                    for x in (T, T + 2): p.append(f'v_pk_add_f32 {v(z+x, 2)}, {v(z+x, 2)}, {v(recv+x, 2)}')
                for x in (T, T + 2): p.append(f'v_pk_mul_f32 {v(tmp+x, 2)}, {v(z+x, 2)}, {v(z+x, 2)}')
                for x in (T, T + 2): p.append(f'v_pk_fma_f32 {v(tmp+x, 2)}, {v(tmp+x, 2)}, s[{sC1}:{sC1+1}], {v(vC0, 2)}')
                for x in (T, T + 2): p.append(f'v_pk_mul_f32 {v(tmp+x, 2)}, {v(tmp+x, 2)}, {v(z+x, 2)}')
                for x in range(T, T + 4): p.append(f'v_exp_f32 v{tmp+x}, v{tmp+x}')
                for x in (T, T + 2): p.append(f'v_pk_add_f32 {v(tmp+x, 2)}, {v(tmp+x, 2)}, 1.0 op_sel_hi:[1,0]')
                for x in range(T, T + 4): p.append(f'v_rcp_f32 v{tmp+x}, v{tmp+x}')
                for x in (T, T + 2): p.append(f'v_pk_mul_f32 {v(z+x, 2)}, {v(z+x, 2)}, {v(tmp+x, 2)}')
        else:
            for T in range(0, 24, 4):
                R = range(T, T + 4)
                for x in R: p.append(f'v_add_f32 v{z+x}, v{z+x}, v{recv+x}')
                for x in R: p.append(f'v_mul_f32 v{tmp+x}, v{z+x}, v{z+x}')
                for x in R: p.append(f'v_fma_f32 v{tmp+x}, v{tmp+x}, s{sC1}, v{vC0}')
                for x in R: p.append(f'v_mul_f32 v{tmp+x}, v{tmp+x}, v{z+x}')
                for x in R: p.append(f'v_exp_f32 v{tmp+x}, v{tmp+x}')
                for x in R: p.append(f'v_add_f32 v{tmp+x}, 1.0, v{tmp+x}')
                for x in R: p.append(f'v_rcp_f32 v{tmp+x}, v{tmp+x}')
                for x in R: p.append(f'v_mul_f32 v{z+x}, v{z+x}, v{tmp+x}')
        return p

    def gelu_s(self, z, n, tmp):
        p = []
        for T in range(0, n, 4):
            R = range(4)
            for x in R: p.append(f'v_mul_f32 v{tmp+x}, v{z+T+x}, v{z+T+x}')
            for x in R: p.append(f'v_fma_f32 v{tmp+x}, v{tmp+x}, s{sC1}, v{vC0}')
            for x in R: p.append(f'v_mul_f32 v{tmp+x}, v{tmp+x}, v{z+T+x}')
            for x in R: p.append(f'v_exp_f32 v{tmp+x}, v{tmp+x}')
            for x in R: p.append(f'v_add_f32 v{tmp+x}, 1.0, v{tmp+x}')
            for x in R: p.append(f'v_rcp_f32 v{tmp+x}, v{tmp+x}')
            for x in R: p.append(f'v_mul_f32 v{z+T+x}, v{z+T+x}, v{tmp+x}')
        return p

    def allred_q(self, x, t):
        return [f'v_mov_b32 v{t}, v{x}', f'v_permlane32_swap_b32 v{t}, v{x}', f'v_add_f32 v{x}, v{x}, v{t}',
                f'v_mov_b32 v{t}, v{x}', f'v_permlane16_swap_b32 v{t}, v{x}', f'v_add_f32 v{x}, v{x}, v{t}']

    def stats_publish(self):
        S = [TMP, TMP + 4]
        p = []
        for s in (1, 0):
            sm, sq = S[s], S[s] + 2; z = [Z2 + 8*pp + 4*s + x for pp in range(3) for x in (0, 2)]
            p += [f'v_pk_add_f32 {v(sm, 2)}, {v(z[0], 2)}, {v(z[1], 2)}', f'v_pk_mul_f32 {v(sq, 2)}, {v(z[0], 2)}, {v(z[0], 2)}',
                  f'v_pk_fma_f32 {v(sq, 2)}, {v(z[1], 2)}, {v(z[1], 2)}, {v(sq, 2)}']
            for r in z[2:]:
                p += [f'v_pk_add_f32 {v(sm, 2)}, {v(sm, 2)}, {v(r, 2)}', f'v_pk_fma_f32 {v(sq, 2)}, {v(r, 2)}, {v(r, 2)}, {v(sq, 2)}']
            if s == 1:
                p += [f'v_add_f32 v{sm}, v{sm}, v{sm+1}', f'v_add_f32 v{sm+1}, v{sq}, v{sq+1}', f'ds_write_b64 v{vMx}, {v(sm, 2)}', f'v_xor_b32 v{vMx}, 512, v{vMx}']
            else:
                p += [f'v_add_f32 v{sm}, v{sm}, v{sm+1}', f'v_add_f32 v{sq}, v{sq}, v{sq+1}']
        p += [f's_lshl_b32 s{sT1}, s{sI}, 2', f's_add_u32 s{sT1}, s{sT1}, s{sW}', f's_lshl_b32 s{sT1}, s{sT1}, 11', f's_add_u32 s{sT3}, s{sT1}, {STAT}',
              f's_lshl_b32 s{sT1}, s{sJ}, 8', f's_add_u32 s{sT1}, s{sT1}, s{sT3}', f's_xor_b32 s{sT4}, s{sT3}, 2048']
        s, q = TMP, TMP + 2
        p += [Mark('waitds', None), 's_barrier', f'ds_read_b64 {v(TMP+4, 2)}, v{vMx}', f'v_mov_b32 v{s+1}, s{sTAG}', f'v_mov_b32 v{q+1}, s{sTAG}',
              f'v_add_f32 v{s}, v{s}, v{TMP+4}', f'v_add_f32 v{q}, v{q}, v{TMP+5}']
        r1, r2 = self.allred_q(s, TMP + 4), self.allred_q(q, TMP + 5)
        for x, y in zip(r1, r2): p += [x, y]
        p.append(G('s_mov_b64 exec, 0xffff', f'buffer_store_dwordx4 {v(TMP, 4)}, v{vLin}, {srd(SWS)}, s{sT1} offen sc1', 's_mov_b64 exec, -1'))
        return p

    def clears(self):
        p = []; A = p.append
        for x in range(4): A(f'v_mov_b32 v{POLL+4+x}, -1')
        A(f's_mul_i32 s{sT1}, s{sI}, 96'); A(f's_add_u32 s{sT1}, s{sT1}, s{sJ}'); A(f's_lshl_b32 s{sT1}, s{sT1}, 10'); A(f's_add_u32 s{sT1}, s{sT1}, {hx(HBUF + 8192)}')
        A(I(f'buffer_store_dwordx4 {v(POLL+4, 4)}, v{vHs}, {srd(SWS)}, s{sT1} offen sc1', tok='clr'))
        A(f's_add_u32 s{sT1}, s{sT1}, 8192')
        A(I(f'buffer_store_dwordx4 {v(POLL+4, 4)}, v{vHs}, {srd(SWS)}, s{sT1} offen sc1', tok='clr'))
        return p

    def stat_loads(self):
        return [f'buffer_load_dwordx4 {v(ACC + 8*s + 4*x, 4)}, v{vLin}, {srd(SWS)}, s{(sT3, sT4)[s]} offen offset:{1024*x} sc1' for s in range(2) for x in range(2)]

    def normalize_publish(self):
        t = TMP + 6
        chk = [f'v_xor_b32 v{t}, s{sTAG}, v{ACC+1}']
        T = [ACC + 1 + 2*x for x in range(8)]
        pre = [f'v_min3_u32 v{t}, v{T[0]}, v{T[1]}, v{T[2]}', f'v_max3_u32 v{t+1}, v{T[0]}, v{T[1]}, v{T[2]}',
               f'v_min3_u32 v{t}, v{t}, v{T[3]}, v{T[4]}', f'v_max3_u32 v{t+1}, v{t+1}, v{T[3]}, v{T[4]}',
               f'v_min3_u32 v{t}, v{t}, v{T[5]}, v{T[6]}', f'v_max3_u32 v{t+1}, v{t+1}, v{T[5]}, v{T[6]}',
               f'v_min_u32 v{t}, v{t}, v{T[7]}', f'v_max_u32 v{t+1}, v{t+1}, v{T[7]}']
        p = [self.poll(self.stat_loads(), [f'v{t}', f'v{t+1}'], pre=pre, wait=[f'v{x}' for x in T])]
        p += self.stamp('stats ok')
        inv = hx(f2u(1 / 768))
        R = [TMP, TMP + 2, TMP + 4, TMP + 6]
        for s in range(2):
            p += [f'v_add_f32 v{R[2*s]}, v{ACC+8*s}, v{ACC+8*s+4}', f'v_add_f32 v{R[2*s+1]}, v{ACC+8*s+2}, v{ACC+8*s+6}']
        for x in zip(*[self.allred_q(r, r + 1) for r in R]): p += list(x)
        for op in range(7):
            for s in range(2):
                m, q = R[2*s], R[2*s+1]
                p.append([f'v_mul_f32 v{m}, {inv}, v{m}', f'v_mul_f32 v{q}, {inv}, v{q}', f'v_fma_f32 v{q}, -v{m}, v{m}, v{q}', f'v_max_f32 v{q}, 0, v{q}',
                          f'v_add_f32 v{q}, {hx(f2u(1e-5))}, v{q}', f'v_rsq_f32 v{q}, v{q}', f'v_mul_f32 v{m}, -v{m}, v{q}'][op])
        p += [f's_mul_i32 s{sT1}, s{sJ}, {12*32768}', f's_add_u32 s{sT1}, s{sT1}, {hx(Z2B)}']
        for pp in range(3):
            b = Z2 + 8*pp; d = FR[1] + 4*pp
            for x in range(0, 8, 2):
                s = x >> 2
                p.append(f'v_pk_fma_f32 {v(b+x, 2)}, {v(b+x, 2)}, {v(R[2*s+1], 2)}, {v(R[2*s], 2)} op_sel_hi:[1,0,0]')
            for x in range(4): p.append(f'v_cvt_pk_bf16_f32 v{d+x}, v{b+2*x}, v{b+2*x+1}')
            p += [f'v_permlane16_swap_b32 v{d}, v{d+2}', f'v_permlane16_swap_b32 v{d+1}, v{d+3}']
            p.append(I(f'buffer_store_dwordx4 {v(d, 4)}, v{vZs}, {srd(SWS)}, s{sT1} offen sc1', tok='z2st'))
            if pp < 2: p.append(f's_add_u32 s{sT1}, s{sT1}, 131072')
        return p

    def flagB_addr(self):
        return [f's_lshl_b32 s{sT3}, s{sJ}, 2', f's_add_u32 s{sT3}, s{sT3}, s{sW}', f's_lshl_b32 s{sT3}, s{sT3}, 10', f's_add_u32 s{sT3}, s{sT3}, {FLAGB}',
                f's_lshl_b32 s{sT1}, s{sI}, 5', f's_add_u32 s{sFB}, s{sT1}, s{sT3}']

    def gate(self):
        return [f'v_mul_f32 v{vGate}, {hx(f2u(-math.log2(math.e)))}, v{GACC}', f'v_exp_f32 v{vGate}, v{vGate}',
                f'v_add_f32 v{vGate}, 1.0, v{vGate}', f'v_rcp_f32 v{vGate}, v{vGate}']

    def stepB_pre(self):
        t0, t1, t2 = TMP, TMP + 1, TMP + 2
        ad = []
        A = ad.append
        A(f'v_and_b32 v{t0}, 1, v{vQ}'); A(f'v_xor_b32 v{t0}, s{sW}, v{t0}'); A(f'v_lshrrev_b32 v{t1}, 1, v{vQ}'); A(f'v_lshl_add_u32 v{t0}, v{t0}, 1, v{t1}')
        A(f'v_lshrrev_b32 v{t1}, 1, v{vC}'); A(f'v_xor_b32 v{t0}, v{t0}, v{t1}'); A(f'v_lshlrev_b32 v{t0}, 4, v{t0}')
        A(f'v_lshl_add_u32 v{t0}, v{vC}, 7, v{t0}'); A(f's_mul_i32 s{sT1}, s{sKH}, 6144'); A(f'v_add_u32 v{vGa}, s{sT1}, v{t0}')
        cos, sin, nsin, ncos = self.cvar()
        for x in range(4):
            A(f'v_xor_b32 v{cos[1]+x}, v{vSgn}, v{cos[0]+x}'); A(f'v_xor_b32 v{sin[1]+x}, v{vSgn}, v{sin[0]+x}')
            A(f'v_xor_b32 v{nsin[0]+x}, 0x80008000, v{sin[0]+x}'); A(f'v_xor_b32 v{ncos[0]+x}, 0x80008000, v{cos[0]+x}')
        for x in range(4): A(f'v_xor_b32 v{nsin[1]+x}, 0x80008000, v{sin[1]+x}'); A(f'v_xor_b32 v{ncos[1]+x}, 0x80008000, v{cos[1]+x}')
        sw, sw2 = vTe, vZ[6]
        A(f's_mul_i32 s{sT4}, s{sW}, 5248'); A(f's_add_u32 s{sT4}, s{sT4}, {LC}')
        A(f'v_and_b32 v{t0}, 7, v{vC}'); A(f'v_mul_u32_u24 v{t0}, 656, v{t0}'); A(f'v_lshrrev_b32 v{t1}, 3, v{vC}'); A(f'v_mul_u32_u24 v{t1}, 160, v{t1}')
        A(f'v_lshl_add_u32 v{t0}, v{vQ}, 4, v{t0}'); A(f'v_add3_u32 v{sw}, s{sT4}, v{t0}, v{t1}')
        A(f'v_lshrrev_b32 v{t1}, 1, v{vQ}'); A(f'v_mul_u32_u24 v{t1}, 160, v{t1}'); A(f'v_add_u32 v{sw2}, v{sw}, v{t1}')
        go, sr = self.t1regs()
        for n in range(5):
            A(f'v_add_u32 v{t0}, {64*n}, v{vL}'); A(f'v_mul_u32_u24 v{t1}, 1639, v{t0}'); A(f'v_lshrrev_b32 v{t1}, 16, v{t1}')
            A(f'v_add_u32 v{t2}, v{t1}, v{vL}'); A(f'v_lshl_add_u32 v{sr[n]}, v{t2}, 4, s{sT4}')
        A(f's_mul_i32 s{sT1}, s{sW}, {8*163840}'); A(f's_mul_i32 s{sT2}, s{sI}, 320'); A(f's_add_u32 s{sT1}, s{sT1}, s{sT2}')
        A(f's_mul_i32 s{sT2}, s{sJ}, 10240'); A(f's_add_u32 s{sT1}, s{sT1}, s{sT2}'); A(f's_add_u32 s{sT4}, s{sT1}, {hx(T1B)}')
        A(f'v_and_b32 v{vGt}, 31, v{vL}'); A(f'v_lshlrev_b32 v{vGt}, 5, v{vGt}')
        return ad

    def t1regs(self):
        return vGo, [vRp[0], vRp[1], vGb, vGu, vMx]

    def cvar(self):
        return [CB, FR[0] + 16], [CB + 4, FR[0] + 20], [FR[0] + 24, FR[0] + 28], [FR[1] + 16, FR[1] + 20]

    def stepB(self, pollB):
        sw = vTe
        go, sr = self.t1regs()
        cos, sin, nsin, ncos = self.cvar()
        p = []
        for T in range(3):
            b = ACC + 8*T; d = Z2 + 4*T
            for x in range(0, 8, 2): p.append(f'v_pk_mul_f32 {v(b+x, 2)}, {v(b+x, 2)}, {v(vAl-1, 2)} op_sel:[0,1] op_sel_hi:[1,1]')
            for x in range(0, 8, 2): p.append(f'v_pk_fma_f32 {v(b+x, 2)}, {v(b+24+x, 2)}, {v(vBe, 2)}, {v(b+x, 2)} op_sel_hi:[1,0,1]')
            for x in range(4): p.append(f'v_cvt_pk_bf16_f32 v{d+x}, v{b+2*x}, v{b+2*x+1}')
            p += [f'v_permlane16_swap_b32 v{d}, v{d+2}', f'v_permlane16_swap_b32 v{d+1}, v{d+3}', f'ds_write_b128 v{vGa}, {v(d, 4)} offset:{L_ZT + T*2048}']
        p += self.stamp('@B ztw') + [pollB, Mark('waitds', None), 's_barrier', Mark('free', 'flagB0')] + self.stamp('@B bar')
        def rd(t):
            fr = FR[t & 1]; out = []
            for k in range(2):
                if t < 2: ar, o = vRb[k], L_ZT + t*2048
                elif t == 2: ar, o = vZ[2+k], L_ZT
                else: ar, o = vZ[4+k], L_ZT + (4-t)*2048
                out += [f'ds_read_b128 {v(fr+8*k, 4)}, v{ar} offset:{o}', f'ds_read_b128 {v(fr+8*k+4, 4)}, v{ar} offset:{o + 48*128}']
            return out
        def mf(t):
            fr = FR[t & 1]; re, im = v(ACC+8*t, 4), v(ACC+8*t+4, 4); out = []
            for k in range(2):
                zr, zi = v(fr+8*k, 4), v(fr+8*k+4, 4)
                out += [mfma(re, zr, v(cos[k], 4), '0' if k == 0 else None), mfma(im, zr, v(nsin[k], 4), '0' if k == 0 else None)]
            for k in range(2):
                zr, zi = v(fr+8*k, 4), v(fr+8*k+4, 4)
                out += [mfma(re, zi, v((sin if t < 3 else nsin)[k], 4)), mfma(im, zi, v((cos if t < 3 else ncos)[k], 4))]
            return out
        def pack(t):
            b = ACC + 8*t; d = Z2 + 4*t
            return [f'v_cvt_pk_bf16_f32 v{d+x}, v{b+2*x}, v{b+2*x+1}' for x in range(4)] + \
                   [f'ds_write_b128 v{vZ[6] if t == 2 else sw}, {v(d, 4)} offset:{64*t + (160 if t > 2 else 0)}']
        p += rd(0)
        for t in range(5):
            m = mf(t)
            if t == 2:
                flip = [f'v_xor_b32 v{FR[0]+8*k+4+x}, v{vZ[7]}, v{FR[0]+8*k+4+x}' for k in range(2) for x in range(4)]
                p += slot(m[:4], (flip, 0, 2), keep=0) + slot(m[4:], (rd(3), 0, 1), (pack(1), 0, 2), keep=0)
            else:
                p += slot(m, (rd(t+1) if t < 4 else [], 0, 1), (pack(t-1) if t else [], 3, 2))
        p += self.stamp('@B mf') + pack(4)
        p.append(Mark('waitds', None))
        for n in range(5): p.append(f'ds_read_b128 {v(Z2+4*n, 4)}, v{sr[n]} offset:{1024*n}')
        return p

    def t1_store(self):
        go, sr = self.t1regs()
        return [I(f'buffer_store_dwordx4 {v(Z2+4*n, 4)}, v{go[n]}, {srd(SWS)}, s{sT4} offen sc1', tok='t1st') for n in range(0 if self.o['not1'] else 5)]

    def z_addr(self):
        t0, t1, t2 = TMP, TMP + 1, TMP + 2
        p = [f'v_bfe_u32 v{t2}, v{vL}, 2, 2', f'v_lshl_add_u32 v{t0}, v{vQ}, 3, v{t2}', f'v_lshlrev_b32 v{t0}, 8, v{t0}',
             f'v_and_b32 v{t1}, 1, v{vQ}', f'v_lshl_add_u32 v{t0}, v{t1}, 7, v{t0}',
             f'v_bfe_u32 v{t1}, v{vL}, 1, 1', f'v_lshl_add_u32 v{t0}, v{t1}, 6, v{t0}',
             f'v_lshl_add_u32 v{t0}, v{t2}, 4, v{t0}', f'v_and_b32 v{t1}, 1, v{vL}', f'v_lshl_add_u32 v{t0}, v{t1}, 3, v{t0}',
             f's_bfe_u32 s{sT1}, s{sMK}, 0x20001', f's_lshl_b32 s{sT1}, s{sT1}, 4', f's_lshl_b32 s{sT2}, s{sKH}, 7', f's_or_b32 s{sT1}, s{sT1}, s{sT2}', f'v_xor_b32 v{t0}, s{sT1}, v{t0}',
             f'v_add_u32 v{vZ[0]}, s{sLZ}, v{t0}']
        for n in range(1, 8):
            T, c = n >> 2, n & 3
            p.append(f'v_xor_b32 v{vZ[n]}, {T*128 + c*16}, v{vZ[0]}')
        return p

    def phase2(self):
        RECV = Z2
        def reads(sg):
            fr = FR[sg & 1]; slot = sg % 3; out = [Mark('need', [f'Z{sg}'])]
            for c in range(4):
                for T in range(2):
                    for hf in range(2):
                        out.append(f'ds_read_b64_tr_b16 {v(fr + 8*c + 4*T + 2*hf, 2)}, v{vZ[4*T+c]} offset:{slot*8192 + hf*1024}')
            return out
        def acc(pp, T, u): return ACC + 32*(pp & 1) + 4*(4*T + u)
        def mf(sg):
            pp, ga, pi = sg >> 2, (sg >> 1) & 1, sg & 1; fr = FR[sg & 1]; out = []
            for c in range(4):
                kp = 4*ga + c
                for T in range(2):
                    for u in range(4):
                        out.append(mfma(v(acc(pp, T, u), 4), v(fr + 8*c + 4*T, 4), a(32*kp + 8*u + 4*pi, 4),
                                        (v(BQ + 4*u, 4) if T == 0 and u < 2 else '0') if (sg & 3) == 0 and c == 0 else None))
            return out
        def red_write(pp):
            return [I(f'ds_write_b128 v{vRd[(u & 2) + T - 1]}, {v(acc(pp, T, u), 4)} offset:{((u & 1) ^ T)*1024}', tok=f'rw{pp}') for T in range(2) for u in range(4) if (u & 2) + T]
        def red_read():
            return [f'ds_read_b128 {v(RECV + 8*y + 4*T, 4)}, v{vExR} offset:{y*2048 + T*1024}' for y in range(3) for T in range(2)]
        def epi(pp, pk=False):
            own = acc(pp, 0, 0); out = []
            if pk:
                for y in range(3):
                    for x in range(0, 8, 2): out.append(f'v_pk_add_f32 {v(own+x, 2)}, {v(own+x, 2)}, {v(RECV+8*y+x, 2)}')
                for x in range(0, 8, 2): out.append(f'v_pk_mul_f32 {v(own+x, 2)}, {v(own+x, 2)}, {v(Z1+8*pp+x, 2)}')
            else:
                for y in range(3):
                    for x in range(8): out.append(f'v_add_f32 v{own+x}, v{own+x}, v{RECV+8*y+x}')
                for x in range(8): out.append(f'v_mul_f32 v{own+x}, v{own+x}, v{Z1+8*pp+x}')
            for x in range(4): out.append(f'v_cvt_pk_bf16_f32 v{TMP+4+x}, v{own+2*x}, v{own+2*x+1}')
            if pp:
                for x in range(4): out.append(f'v_min_u32 v{TMP+4+x}, -2, v{TMP+4+x}')
            out += [f'v_permlane16_swap_b32 v{TMP+4}, v{TMP+6}', f'v_permlane16_swap_b32 v{TMP+5}, v{TMP+7}']
            out.append(I(f'buffer_store_dwordx4 {v(TMP+4, 4)}, v{vHs}, {srd(SWS)}, s{sT1} offen sc1', tok=f'hst{pp}'))
            return out
        def haddr(pp):
            return [f's_mul_i32 s{sT1}, s{sI}, 96', f's_add_u32 s{sT1}, s{sT1}, s{sJ}', f's_lshl_b32 s{sT1}, s{sT1}, 10', f's_add_u32 s{sT1}, s{sT1}, {hx(HBUF + pp*8192)}']
        def clear():
            return [f'v_mov_b32 v{POLL+4+x}, -1' for x in range(4)] + haddr(2) + \
                   [I(f'buffer_store_dwordx4 {v(POLL+4, 4)}, v{vHs}, {srd(SWS)}, s{sT1} offen sc1', tok='hst0')]
        def flagc(pp):
            return [f's_lshl_b32 s{sT1}, s{sKH}, 3', f's_add_u32 s{sT1}, s{sT1}, s{sJ}', f's_lshl_b32 s{sT1}, s{sT1}, 7', f's_add_u32 s{sT1}, s{sT1}, {pp*2048}', f's_add_u32 s{sT1}, s{sT1}, s{sFC}', self.flag_store([f'hst{pp}', 'clr'], sT1)]
        p = []
        t1s = self.t1_store(); pre3 = self.p3_pre()
        p += reads(0)
        for sg in range(12):
            pp = sg >> 2
            p += [Mark('waitds', None), Mark('free', f'Zf{sg}')] + self.stamp(f'@2 blk{sg}')
            m = mf(sg)
            rd = reads(sg+1) if sg < 11 else []
            if sg in (4, 8):
                w = red_write(pp-1)
                blk = m[:2] + sprinkle(m[2:17], w) + slot(m[17:20], (rd[:4], 0, 1))
                blk += [Mark('waitds', [f'rw{pp-1}']), 's_barrier']
                blk += slot(m[20:], (red_read() + rd[4:], 0, 2))
                pass
            elif sg in (5, 9):
                e = haddr(pp-1) + epi(pp-1)
                blk = slot(m, (rd, 12, 1), (e[:self.o['esplit']], 0, 2))
                carry = e[self.o['esplit']:]
                if sg == 9: blk = blk[:10] + self.ldC(0) + blk[10:]
            else:
                ex = []
                if sg in (6, 10): ex = carry
                if self.o['gshadow'] and sg in (0, 1, 2, 3, 6, 10): ex = ex + self.gelu_s(Z1 + 4*(0, 1, 2, 3, 6, 10).index(sg), 4, POLL + 4)
                if sg == 7: ex = pre3[:len(pre3)//2]
                if sg == 11: ex = pre3[len(pre3)//2:]
                blk = slot(m, (rd, 8, 1), (ex, 0, 2))
                if sg < 4:
                    st = t1s[(0, 1, 3, 4)[sg]:(1, 3, 4, 5)[sg]]
                    blk = sprinkle(blk, [G(x) if isinstance(x, list) else x for x in st])
                if sg == 7: blk = blk + [self.flag_store(['t1st'], sFB)]
                if sg == 6: blk = blk + flagc(pp-1) + ([G(self.codepf(2))] if self.o['codepf2'] else [])
                if sg == 10: blk = blk[:12] + [self.poll(self.ldC(0), [f'v{POLL}']), Mark('free', 'flagC0')] + blk[12:30] + self.ldT() + blk[30:]
                if sg in (7, 11): blk = blk[:4] + ['s_barrier'] + blk[4:]
            p += blk
        p += self.stamp('p2 mfma done')
        e = epi(2, True)
        p += [Mark('free', 'flagC1')] + red_write(2) + haddr(2) + [self.poll(self.ldT(), [f'v{POLL+1}']), Mark('free', 'flagT'), Mark('waitds', None), 's_barrier'] + red_read() + e[:-1] + [Mark('flush', 'h1'), e[-1]]
        p += self.stamp('h2 stored')
        return p

    def ldC(self, pp):
        return [f'buffer_load_dword v{POLL}, v{vS[0]}, {srd(SWS)}, s{sFC} offen offset:{pp*2048} sc1']

    def ldT(self):
        return [f'buffer_load_dword v{POLL+1}, v{vS[1]}, {srd(SWS)}, s{sT3} offen sc1']

    def poll_addr(self):
        return [f'v_lshlrev_b32 v{vS[0]}, 7, v{vC}']

    def p3_pre(self):
        t0, t1, t2 = TMP, TMP + 1, TMP + 2
        p = [f's_sub_u32 s{sT2}, 7, s{sJ}', f's_min_u32 s{sT2}, s{sT2}, s{sJ}', f's_lshl_b32 s{sT2}, s{sT2}, 1', f's_and_b32 s{sT3}, s{sI}, 24',
             f's_add_u32 s{sT3}, s{sT3}, s{sT2}', f's_lshl_b32 s{sT3}, s{sT3}, 10', f's_add_u32 s{sT3}, s{sT3}, {FLAGT}']
        p += [f'v_add_u32 v{vX[1]}, 65536, v{vLin}', f'v_add_u32 v{vW[0]}, 131072, v{vLin}']
        p += [f'v_lshrrev_b32 v{t0}, 1, v{vQ}', f'v_bfe_u32 v{t1}, v{vL}, 2, 2', f'v_lshl_add_u32 v{t0}, v{t0}, 3, v{t1}', f'v_mul_u32_u24 v{t0}, 320, v{t0}',
              f'v_and_b32 v{t1}, 3, v{vL}', f'v_lshl_add_u32 v{t0}, v{t1}, 4, v{t0}', f'v_and_b32 v{t1}, 1, v{vQ}', f'v_lshl_add_u32 v{t0}, v{t1}, 3, v{t0}',
              f's_mul_i32 s{sT2}, s{sKH}, 160', f's_add_u32 s{sT2}, s{sT2}, {LC}', f'v_add_u32 v{vW[1]}, s{sT2}, v{t0}',
              f'v_bfe_u32 v{t1}, v{vL}, 1, 1', f'v_mul_u32_u24 v{t1}, {10240-160}, v{t1}', f'v_add_u32 v{vW[2]}, v{vW[1]}, v{t1}']
        sw, sr = vGa, vGt
        go = [vH[0], vH[1], vH[2]]
        p += [f's_mul_i32 s{sT2}, s{sW}, 2560', f's_add_u32 s{sT2}, s{sT2}, {L_W0}', f'v_add_u32 v{sr}, s{sT2}, v{vLin}',
              f'v_mul_u32_u24 v{t0}, 160, v{vC}', f'v_lshl_add_u32 v{t0}, v{vQ}, 3, v{t0}', f'v_add_u32 v{sw}, s{sT2}, v{t0}', f's_mov_b32 s{sT2}, 81920']
        for n in range(3):
            p += [f'v_add_u32 v{t0}, {64*n}, v{vL}', f'v_mul_u32_u24 v{t1}, 6554, v{t0}', f'v_lshrrev_b32 v{t1}, 16, v{t1}',
                  f'v_mul_u32_u24 v{t2}, 10, v{t1}', f'v_sub_u32 v{t0}, v{t0}, v{t2}', f'v_lshlrev_b32 v{t0}, 4, v{t0}', f'v_mad_u32_u24 v{go[n]}, v{t1}, s{sT2}, v{t0}']
        p += [f's_lshl_b32 s{sT4}, s{sWH}, 5', f's_add_u32 s{sT4}, s{sT4}, s{sKH}', f's_lshl_b32 s{sT4}, s{sT4}, 5', f's_add_u32 s{sT4}, s{sT4}, s{sI}',
              f's_mul_i32 s{sT4}, s{sT4}, 1280', f's_mul_i32 s{sT2}, s{sJ}, 160', f's_add_u32 s{sT4}, s{sT4}, s{sT2}']
        return p

    def phase3(self):
        accB, accA, accC = ACC, ACC + 20, ACC + 40
        o = self.o
        lo, hi, hi2, ta = vLin, vX[1], vW[0], vW[1]
        sw, sr = vGa, vGt
        go = [vH[0], vH[1], vH[2]]
        def rd(kk):
            out = []
            for t in range(5):
                la = self.l_w(kk*5 + t)
                out.append(f'ds_read_b128 {v(FR[kk & 1] + 4*t, 4)}, v{(lo, hi, hi2)[la >> 16]} offset:{la & 65535}')
            return out
        def mf(kk):
            d = accB if kk < 16 else accC
            return [mfma(v(d + 4*t, 4), v(FR[kk & 1] + 4*t, 4), self.hreg(kk), '0' if kk in (0, 16) else None) for t in range(5)]
        p = [Mark('need', ['O0', 'O1', 'h0']), Mark('waitds', None), 's_barrier', Mark('free', 'Cfree')]
        p += self.stamp('O01 ok')
        p.append(f'v_sub_f32 v{vBias}, 1.0, v{vGate}')
        p += rd(0)
        mx = TMP
        def reload(n):
            rl = []
            for k in range(8):
                if k % 4 == 0: rl.append(f's_add_u32 s{sT2}, s{sHB}, {(8*n+k)*1024}')
                rl.append(f'buffer_load_dwordx4 {self.hreg(8*n+k)}, v{vLin}, {srd(SWS)}, s{sT2} offen offset:{(k%4)*1024} sc1')
            return rl
        def maxes(kk, first):
            r = regs_of(self.hreg(kk))
            return [f'v_max3_u32 v{mx}, {r[0]}, {r[1]}, {r[2]}' if first else f'v_max3_u32 v{mx}, v{mx}, {r[0]}, {r[1]}',
                    f'v_max_u32 v{mx}, v{mx}, {r[3]}' if first else f'v_max3_u32 v{mx}, v{mx}, {r[2]}, {r[3]}']
        allmax = [x for kk in range(8, 16) for x in maxes(kk, kk == 8)]
        for kk in range(16):
            if kk % 2 == 0: p += self.stamp(f'@3 kk{kk}')
            if kk == 8:
                c1, o1 = self.lab('chk'), self.lab('ok')
                p.append(G(f'{c1}:', f'v_cmp_eq_u32 vcc, -1, v{mx}', f's_cbranch_vccz {o1}',
                           Mark('raw', [f's_cmp_eq_u32 s{sTO}, 0', f's_cbranch_scc1 {o1}', f's_sub_u32 s{sTO}, s{sTO}, 1'] + reload(1) + ['s_waitcnt vmcnt(0)'] + allmax + [f's_branch {c1}']),
                           f'{o1}:'))
            if kk == o['h2at']: p.append(Mark('free', 'flagC2'))
            m = mf(kk)
            p += slot(m, (rd(kk+1) if kk < 15 else [], 0, 1), (allmax[4*(kk-4):4*(kk-3)] if 4 <= kk < 8 else [], 0, 1), keep=0)
        p += self.stamp('@3 k16') + [Mark('need', ['O2', 'T']), 's_barrier'] + self.stamp('@3 O2,T')
        for k in range(2):
            for t in range(5):
                for hf in range(2):
                    p.append(f'ds_read_b64_tr_b16 {v(FR[k] + 4*t + 2*hf, 2)}, v{vW[2] if t == 2 else ta} offset:{k*5120 + hf*1280 + t*64 + (10240-160 if t > 2 else 0)}')
        for x in range(0, 20, 2): p.append(f'v_pk_mul_f32 {v(accB+x, 2)}, {v(accB+x, 2)}, {v(vBias, 2)} op_sel_hi:[1,0]')
        p += [mfma(v(accA + 4*t, 4), v(FR[k] + 4*t, 4), v(CF + 4*k, 4), '0' if k == 0 else None) for k in range(2) for t in range(5)]
        p.append(Mark('flush', 'h2'))
        p += self.stamp('@3 prepoll')
        again, retry, done = self.lab('again'), self.lab('retry'), self.lab('done')
        def chk(kk):
            r = Z2 + 4*(kk - 16)
            return [f'v_max3_u32 v{mx}, v{r}, v{r+1}, v{r+2}', f'v_max_u32 v{mx}, v{mx}, v{r+3}', f'v_cmp_eq_u32 vcc, -1, v{mx}', f's_cbranch_vccnz {retry}']
        q = [Mark('waitds', None), f'{again}:'] + rd(16) + chk(16)
        fin = [f'v_fmac_f32 v{accB+x}, v{vGate}, v{accA+x}' for x in range(20)]
        for kk in range(16, 24):
            blk = interleave(mf(kk), rd(kk+1) if kk < 23 else [], per=1)
            q += sprinkle(blk, chk(kk+1) if kk < 23 else [])
        q.append(f's_branch {done}')
        rl = reload(2)
        allmax2 = [x for kk in range(16, 24) for x in maxes(kk, kk == 16)]
        q.append(Mark('raw', [f'{retry}:', 's_waitcnt vmcnt(0) lgkmcnt(0)', 's_nop 7', f's_cmp_eq_u32 s{sTO}, 0', f's_cbranch_scc1 {done}', f's_sub_u32 s{sTO}, s{sTO}, 1'] + rl +
                      ['s_waitcnt vmcnt(0)'] + allmax2 + [f'v_cmp_eq_u32 vcc, -1, v{mx}', 's_nop 0', f's_cbranch_vccnz {retry}', f's_branch {again}', f'{done}:', 's_nop 7']))
        p += fin
        p.append(G(q))
        p += self.stamp('h2 mfma done')
        for t in range(5):
            for x in (0, 2): p.append(f'v_pk_fma_f32 {v(accB+4*t+x, 2)}, {v(accC+4*t+x, 2)}, {v(vBias, 2)}, {v(accB+4*t+x, 2)} op_sel_hi:[1,0,1]')
            p += [f'v_cvt_pk_bf16_f32 v{FR[0]+2*t}, v{accB+4*t}, v{accB+4*t+1}', f'v_cvt_pk_bf16_f32 v{FR[0]+2*t+1}, v{accB+4*t+2}, v{accB+4*t+3}',
                  f'ds_write_b64 v{sw}, {v(FR[0]+2*t, 2)} offset:{32*t}']
        p.append(Mark('waitds', None))
        for n in range(3): p.append(f'ds_read_b128 {v(FR[1]+4*n, 4)}, v{sr} offset:{1024*n}')
        for n in range(2): p.append(f'buffer_store_dwordx4 {v(FR[1]+4*n, 4)}, v{go[n]}, {srd(SOUT)}, s{sT4} offen{o["outfl"]}')
        p.append(G('s_mov_b32 exec_hi, 0', f'buffer_store_dwordx4 {v(FR[1]+8, 4)}, v{go[2]}, {srd(SOUT)}, s{sT4} offen{o["outfl"]}', 's_mov_b64 exec, -1'))
        return p

    def dump(self, name, reg, n):
        if self.o['dbg'] != name: return []
        p = [f's_lshl_b32 s{sT1}, s{sI}, 3', f's_add_u32 s{sT1}, s{sT1}, s{sJ}', f's_lshl_b32 s{sT1}, s{sT1}, 2', f's_add_u32 s{sT1}, s{sT1}, s{sW}',
             f's_mul_i32 s{sT1}, s{sT1}, {n*256}', f's_add_u32 s{sT1}, s{sT1}, {hx(DBGB)}']
        for x in range(0, n, 4):
            p += [f'buffer_store_dwordx4 {v(reg+x, 4)}, v{vLin}, {srd(SWS)}, s{sT1} offen', f's_add_u32 s{sT1}, s{sT1}, 1024']
        return [G(p)]

    def build(self):
        o = self.o
        c = []
        c += self.setup1()
        su = norm(self.setup2() + self.tag())
        c += su[:o['pre']]
        c += self.gemm('z2', late=su[o['pre']:])
        c += self.stamp('z2 gemm done')
        c += self.gelu(Z2, None, ACC)
        c += self.dump('z2', Z2, 24)
        c += self.stats_publish()
        c += self.stamp('stats published')
        c += self.clears()
        c += self.gemm('z1')
        c += self.stamp('z1 gemm done')
        c += self.normalize_publish()
        c += self.dump('z2n', Z2, 24)
        c += [f's_mul_i32 s{sT1}, s{sKH}, 6144', f's_add_u32 s{sT1}, s{sT1}, 2048'] + [f'v_add_u32 v{vRx[k]}, s{sT1}, v{vRb[k]}' for k in range(2)]
        c += self.flagB_addr()
        c += self.gate()
        gA = self.gemm('A', self.stepB_pre())
        c += gA[:o['fbat']] + [self.flag_store(['z2st', 'relst'], sFB)] + self.stamp('flagB stored') + gA[o['fbat']:]
        c += self.stamp('stepA done')
        c += [G(self.codepf(1))] if o['codepf2'] else []
        ldB = [f'buffer_load_dword v{POLL}, v{vGt}, {srd(SWS)}, s{sT3} offen sc1']
        c += [f's_mul_i32 s{sLZ}, s{sW}, 24576'] + ldB + self.stepB(self.poll(ldB, [f'v{POLL}']))
        c += self.stamp('T1 stored')
        c += self.z_addr()
        c += [f's_lshl_b32 s{sT1}, s{sW}, 3', f's_add_u32 s{sT1}, s{sT1}, s{sJ}', f's_lshl_b32 s{sT1}, s{sT1}, 5', f's_add_u32 s{sT1}, s{sT1}, s{sI}',
              f's_lshl_b32 s{sT1}, s{sT1}, 5', f's_add_u32 s{sFB}, s{sT1}, {FLAGT}']
        c.append(Mark('flush', 'Pc31'))
        c += [Mark('waitds', None), 's_barrier', Mark('free', 'flagB')]
        c += self.stamp('flagB ok')
        c += [f'v_mov_b32 v{BQ+x}, v{vBias if x < 4 else vBias1}' for x in range(8)] + self.poll_addr() + [f'v_lshlrev_b32 v{vS[1]}, 5, v{vL}']
        if not o['gshadow']: c += self.gelu(Z1, None, ACC + 32)
        c += self.dump('z1', Z1, 24)
        c += self.stamp('z1 gelu done')
        c += self.phase2()
        c += self.phase3()
        e = self.lab('ep')
        c.append(G(f's_or_b32 s{sT1}, s{sI}, s{sJ}', f's_or_b32 s{sT1}, s{sT1}, s{sW}', f's_cmp_eq_u32 s{sT1}, 0', f's_cbranch_scc0 {e}',
                   Mark('raw', [f'v_mov_b32 v{vT}, 0', 's_mov_b64 exec, 1', f'buffer_store_dword v{vTag}, v{vT}, {srd(SWS)}, 0 offen sc1', 's_mov_b64 exec, -1']), f'{e}:'))
        if o['stamps']:
            c += [G('s_waitcnt vmcnt(0)')] + self.stamp('end')
            st = [f's_lshl_b32 s{sT1}, s{sI}, 3', f's_add_u32 s{sT1}, s{sT1}, s{sJ}', f's_lshl_b32 s{sT1}, s{sT1}, 2', f's_add_u32 s{sT1}, s{sT1}, s{sW}',
                  f's_lshl_b32 s{sT1}, s{sT1}, 7', f's_add_u32 s{sT1}, s{sT1}, {hx(STAMP)}', f'v_mov_b32 v{vT}, 0', 's_mov_b64 exec, 1']
            for n in range(0, 20, 4):
                for x in range(4): st.append(f'v_mov_b32 v{TMP+x}, s{STAMP0+n+x}' if n + x < self.nstamp else f'v_mov_b32 v{TMP+x}, 0')
                st += [f'buffer_store_dwordx4 {v(TMP, 4)}, v{vT}, {srd(SWS)}, s{sT1} offen offset:{4*n}', 's_nop 1']
            c.append(G(st))
        if o['dbgst']:
            e = self.lab('dbg')
            st = ['s_mov_b64 exec, -1', f's_or_b32 s{sT1}, s{sI}, s{sJ}', f's_or_b32 s{sT1}, s{sT1}, s{sW}', f's_cmp_eq_u32 s{sT1}, 0', f's_cbranch_scc0 {e}',
                  f's_load_dwordx2 s[{SGATE}:{SGATE+1}], s[0:1], 96', 's_waitcnt lgkmcnt(0)', f's_mov_b32 s{SGATE+2}, 256', f'v_mov_b32 v{vT}, 0', 's_mov_b64 exec, 1']
            for n in range(0, 16, 4):
                for x in range(4): st += [f's_sub_u32 s{sT1}, s{STAMP0+n+x}, s{STAMP0}', f'v_mov_b32 v{TMP+x}, s{sT1}'] if n + x < self.nstamp else [f'v_mov_b32 v{TMP+x}, 0']
                st += [f'buffer_store_dwordx4 {v(TMP, 4)}, v{vT}, {srd(SGATE)}, 0 offen offset:{4*n}', 's_nop 1']
            c.append(G(Mark('raw', st), f'{e}:'))
        if o['skew']:
            op = 'max' if o['skew'] == 'max' else 'min'
            st = [f's_mov_b32 s{sT1}, {hx(STAMP+0x30000)}', 's_mov_b64 exec, -1', f'buffer_load_dwordx4 {v(TMP,4)}, v{vLin}, {srd(SWS)}, s{sT1} offen sc1', 's_waitcnt vmcnt(0)']
            for x in range(4): st.append(f'v_subrev_u32 v{TMP+x}, s{STAMP0}, v{TMP+x}')
            st += [f'v_{op}_i32 v{TMP}, v{TMP}, v{TMP+1}', f'v_{op}_i32 v{TMP+2}, v{TMP+2}, v{TMP+3}', f'v_{op}_i32 v{TMP}, v{TMP}, v{TMP+2}', 's_nop 1', f's_mov_b32 s{sT2}, 0']
            for l in range(64): st += [f'v_readlane_b32 s{sT1}, v{TMP}, {l}', 's_nop 0', f's_{op}_i32 s{sT2}, s{sT2}, s{sT1}']
            st += [f's_abs_i32 s{sT2}, s{sT2}', f's_add_u32 s{STAMP0+1}, s{STAMP0}, s{sT2}']
            c.append(G(Mark('raw', st)))
        if o['amp']:
            na, nb, k = o['amp']; e, l = self.lab('amp'), self.lab('spin')
            ia, ib = self.stamp_names.index(na), self.stamp_names.index(nb)
            c.append(G(Mark('raw', [f's_or_b32 s{sT1}, s{sI}, s{sJ}', f's_or_b32 s{sT1}, s{sT1}, s{sW}', f's_cmp_eq_u32 s{sT1}, 0', f's_cbranch_scc0 {e}',
                   f's_sub_u32 s{sT1}, s{STAMP0+ib}, s{STAMP0+ia}', f's_mul_i32 s{sT1}, s{sT1}, {k}', f's_min_u32 s{sT1}, s{sT1}, 100000',
                   f'{l}:', 's_memrealtime s[62:63]', 's_waitcnt lgkmcnt(0)', f's_sub_u32 s{sT2}, s62, s{STAMP0+self.nstamp-1}', f's_cmp_lt_u32 s{sT2}, s{sT1}', f's_cbranch_scc1 {l}']), f'{e}:'))
        self.log = []
        items = merge(c, self.stream(), window=o['window'], lat=o['lat'], log=self.log, overdue=o['overdue'])
        if o['nocomp']:
            items = [it for it in items if not (isinstance(it, Ins) and any(it.op.startswith(x) for x in o['nocomp']))]
        if o['trace']:
            na, nb, step, reg = o['trace']; out = []; on = False; k = 0; cnt = 0
            def point():
                nonlocal k
                r = []
                if k: r.append(I(f'v_writelane_b32 v{reg + (k-1)//64}, s{44 + 2*((k-1) % 4)}, {(k-1) % 64}'))
                r += [Mark('anchor', f'T{k}'), I(f's_memtime s[{44 + 2*(k % 4)}:{45 + 2*(k % 4)}]', tok='trace')]
                k += 1
                return r
            for it in items:
                if isinstance(it, Mark) and it.kind == 'anchor':
                    if it.arg == na: on = True; out += point(); cnt = 0
                    if it.arg == nb and on:
                        on = False; out += point(); out.append(I('s_waitcnt lgkmcnt(0)')); out += point()[:1]
                        out += norm([f's_lshl_b32 s52, s{sI}, 3', f's_add_u32 s52, s52, s{sJ}', f's_lshl_b32 s52, s52, 2', f's_add_u32 s52, s52, s{sW}',
                                     's_lshl_b32 s52, s52, 10', f's_add_u32 s52, s52, {hx(DBGB)}', f'buffer_store_dwordx4 {v(reg, 4)}, v{vLin}, {srd(SWS)}, s52 offen', 's_nop 1'])
                out.append(it)
                if on and isinstance(it, Ins) and it.kind != 'label' and (not o['nocomp'] or it.kind == 'vm'):
                    cnt += 1
                    if cnt >= step and k < 254: out += point(); cnt = 0
            items = out; self.ntrace = k - 1
        lines = finalize(items)
        self.lines = lines
        return lines

    def text(self):
        lines = self.build()
        head = open('gated_mix__spectral_fnet__mixer_gmlp__prompt.s.ref').read().split('; Override launch geometry')[0]
        body = '\n'.join(('' if l.endswith(':') else '    ') + l for l in lines)
        return f'''{head}; One persistent launch: 256 workgroups (one per CU) of 4 waves; generated by a script.
; @launch grid=(256,1,1) block=(256,1,1) lds={LDS_BYTES}
.amdgcn_target "amdgcn-amd-amdhsa--gfx950"
.text
.globl {KNAME}
.p2align 8
.type {KNAME},@function
{KNAME}:
{body}
L_end:
    s_endpgm
L_code_end:
{'.set CODE_BYTES, L_code_end - L_pc' if self.o['codepf'] else ''}
.section .rodata,"a"
.p2align 6
.amdhsa_kernel {KNAME}
  .amdhsa_next_free_vgpr 512
  .amdhsa_next_free_sgpr 102
  .amdhsa_accum_offset 256
  .amdhsa_group_segment_fixed_size 0
  .amdhsa_kernarg_size 112
  .amdhsa_user_sgpr_count 2
  .amdhsa_user_sgpr_kernarg_segment_ptr 1
  .amdhsa_system_sgpr_workgroup_id_x 1
  .amdhsa_float_denorm_mode_32 3
.end_amdhsa_kernel
'''


if __name__ == '__main__':
    kw = {}
    out = 'gated_mix__spectral_fnet__mixer_gmlp__prompt.s'
    for x in sys.argv[1:]:
        k, val = x.split('=', 1)
        if k == 'out': out = val
        else: kw[k] = eval(val)
    g = Gen(**kw)
    open(out, 'w').write(g.text())
    for e in g.log: print(e)
```

```python
import sys, struct, math
from dsl import *

KNAME = 'gated_mix__spectral_fnet__mixer_gmlp__prompt_kernel'

DEFAULT = dict(stamps=False, rot=True, window=90, lat=600, codepf=True, dbg=None, pk=True, amp=None, kst=0, xwide=False, purefirst=10, mc2=0, jitter=0, pure=0, lastord=False, xbar={}, tlb=(), tfine=None, relat=5, relpos=7, halfred=False, early=0, cpos=1, cp3=0, cp4=0, coff=256, bar2at=13, chkmid=True, clrat=-1, uout=True, hzero=True, t1at=(3, 3, 3, 3, 3), tailord='mix', rdat=8, gshadow=True, nocomp=(), codepf2=2048, o2pre=2, o0at=(), pre=450, drop=(), outfl='', cold=[30]*5 + [1200] + [150]*6, tparts=(), hpos=5, statat=6, trace=None, not1=False, nb=4, overdue=30, esplit=45, touch=1800, htouch=False, fbat=60, h2at=13, smask=(1, 2, 0), pcost=(150, 60, 100, 60), pcut=(5, 6, 7, 9, 11), wcost=90, sset=None, zcost=64, probe2=None, probe=None, clk='s_memrealtime', skew=None, dbgst=False)


def f2u(x):
    return struct.unpack('<I', struct.pack('<f', x))[0]


def hx(x):
    return hex(x & 0xffffffff)


EPOCH = 0
FLAGB = 0x8000
FLAGT = 0x10000
STAT = 0x20000
FLAGC = 0xC0000
STAMP = 0x60000
WBUF = 0x100000
Z2B = 0x200000
HBUF = 0x500000
T1B = 0x800000
DBGB = 0xE00000
WS_SIZE = 0x2000000
OOB = 0x40000000

LA = 0
LB = 73728
LC = 139264
NPS = 6
L_REL = LB + 57344
L_GATE = LB + 61440
L_ZT = 12288
L_W0 = 98304
LDS_BYTES = 163840
L_W = [LB, None, None]

SX, SWIN, SWSP, SH, SWS, SOUT, SWO, SGATE, SBSP, SCODE = 4, 8, 12, 16, 20, 24, 28, 32, 36, 40
sW, sI, sJ, sKH, sTAG, sTO = 64, 65, 66, 67, 68, 69
sKX = [70, 71, 72, 73, 74]
sWB2, sWB1, sT0, sT1, sT2 = 75, 76, 77, 78, 79
sLX, sLW, sLH, sLS = 80, 81, 82, 83
sXB = [84, 85]
sSP = [86, 87, 88, 89]
sZB, sHB = 90, 91
sC1 = 92
sWH = 94
sT3, sT4 = 95, 96
sFC = 97
sWBUF = 98
sT1S = 99
sREL = 101
sMK = 3
sDX = 61
sDZ = 59
sTC = 60
sFB = 2
sLZ = sREL
sLW3 = 100
STAMP0 = 44


def srd(b): return f's[{b}:{b+3}]'


vT = 0; vL = 1
vX = [2, 3]; vW = [4, 5, 6]; vH = [7, 8, 9]; vS = [10, 11]
vLin = 12; vRb = [13, 14]; vRx = [15, 16]; vRs = [17, 18]; vTe, vTo = 19, 20
vGa, vGt = 21, 22; vExW, vExR = 23, 24; vRd = [25, 26, 27]
vBias, vGate, vZs, vTag = 28, 29, 30, 31
vZ = list(range(32, 40))
TMP = 40
POLL = 48
CF = 56
ACC = 64
FR = [128, 160]
Z2 = 192; Z1 = 216
CB = 240
vC0 = 248
vSgn = 250
vQ, vC = 251, 252
vAl, vBe = 253, 254
vL4 = 255
AX = 96
vRp = [ACC + 48, ACC + 49]
vGb, vGu = ACC + 50, ACC + 51
GACC = ACC + 52
vMx = ACC + 56
BQ = CB
vHt = ACC + 62
vGo = [ACC + 57 + x for x in range(5)]
vBias1 = vExW
vHs = vL4
H_BASE = [24576, 36864, 49152, 61440, 0]


def v(n, k=1): return f'v{n}' if k == 1 else f'v[{n}:{n+k-1}]'
def a(n, k=1): return f'a{n}' if k == 1 else f'a[{n}:{n+k-1}]'
def vr(n, k): return [f'v{x}' for x in range(n, n + k)]


def mfma(d, A, B, c=None):
    return f'v_mfma_f32_16x16x32_bf16 {d}, {A}, {B}, {d if c is None else c}'


class Gen:
    def __init__(self, **kw):
        self.o = dict(DEFAULT); self.o.update(kw)
        self.nlab = 0; self.nstamp = 0; self.stamp_names = []

    def lab(self, s):
        self.nlab += 1
        return f'L_{s}_{self.nlab}'

    def stamp(self, name):
        if self.o['trace']: return [Mark('anchor', name)]
        if self.o['jitter']:
            if name == 'start':
                return [G('s_memtime s[46:47]', 's_waitcnt lgkmcnt(0)', f's_mul_i32 s45, s2, 97', f's_add_u32 s45, s45, s{sW}', 's_mul_i32 s45, s45, 0x9e3779b1', 's_xor_b32 s45, s45, s46')]
            l = self.lab('jit')
            return [G('s_mul_i32 s45, s45, 1664525', 's_add_u32 s45, s45, 1013904223', 's_lshr_b32 s46, s45, 28', 's_cmp_lt_u32 s46, 13', f's_cbranch_scc1 {l}',
                      f's_sleep {self.o["jitter"]}', f'{l}:')]
        if not self.o['stamps']: return []
        ss = self.o['sset']
        if name != 'end' and ((ss is None and name.startswith('@')) or (ss is not None and not any(name.startswith(x) for x in ss))): return []
        n = self.nstamp; self.nstamp += 1; self.stamp_names.append(name)
        assert n < 15
        return [G(self.o['clk'] + ' s[62:63]', 's_waitcnt lgkmcnt(0)', f's_mov_b32 s{STAMP0+n}, s62')]

    def setup1(self):
        o = self.o
        p = []
        A = p.append
        if o['stamps']: A(f"{o['clk']} s[{sC1}:{sC1+1}]")
        A('s_cmp_ge_u32 s2, 256'); A('s_cbranch_scc1 L_end')
        A(f's_load_dwordx2 s[{SX}:{SX+1}], s[0:1], 0')
        A('s_load_dwordx16 s[48:63], s[0:1], 48')
        A('s_load_dwordx4 s[44:47], s[0:1], 24')
        def cp1():
            A(f's_getpc_b64 s[{SCODE}:{SCODE+1}]'); A('L_pc:'); A(f's_mov_b32 s{SCODE+2}, CODE_BYTES'); A(f's_mov_b32 s{SCODE+3}, 0x20000')
            A('v_lshrrev_b32 v50, 3, v0'); A('v_lshlrev_b32 v50, 7, v50')
            A(I(f'buffer_load_dword v{POLL}, v50, {srd(SCODE)}, 0 offen offset:{o["coff"]}'))
        def cp2():
            A('v_lshrrev_b32 v51, 5, v0'); A('v_lshlrev_b32 v51, 7, v51'); A(f's_lshr_b32 s{sT1}, s2, 3'); A(f's_lshl_b32 s{sT1}, s{sT1}, 10'); A(f's_add_u32 s{sT1}, s{sT1}, {4096+o["coff"]}')
            A(I(f'buffer_load_dword v{POLL+1}, v51, {srd(SCODE)}, s{sT1} offen'))
        if o['codepf'] and o['cpos'] < 2: cp1()
        if o['codepf'] and o['cpos'] < 1: cp2()
        t0, t1, t2 = TMP, TMP + 1, TMP + 2
        A('v_lshrrev_b32 v2, 6, v0')
        A(f'v_and_b32 v{vL}, 63, v0')
        A(f'v_readfirstlane_b32 s{sW}, v2')
        A(f's_bfe_u32 s{sI}, s2, 0x20001'); A(f's_lshl_b32 s{sI}, s{sI}, 3')
        A(f's_bfe_u32 s{sT3}, s2, 0x30003'); A(f's_add_u32 s{sI}, s{sI}, s{sT3}')
        A(f's_lshr_b32 s{sT4}, s2, 6')
        A(f's_and_b32 s{sKH}, s{sW}, 1'); A(f's_lshr_b32 s{sWH}, s{sW}, 1')
        A(f'v_lshrrev_b32 v{vQ}, 4, v{vL}')
        A(f'v_and_b32 v{t0}, 7, v{vL}'); A(f'v_xor_b32 v{t0}, v{t0}, v{vQ}'); A(f'v_lshlrev_b32 v{t0}, 4, v{t0}')
        A(f'v_lshrrev_b32 v{t1}, 3, v{vL}')
        A(f's_mov_b32 s{sT1}, 81920')
        A(f'v_mad_u32_u24 v{vX[0]}, v{t1}, s{sT1}, v{t0}')
        A(f'v_xor_b32 v{vX[1]}, 64, v{vX[0]}'); A(f'v_add_u32 v{vX[1]}, {8*81920-1024}, v{vX[1]}')
        if o['xwide']:
            A(f'v_and_b32 v{t2}, 15, v{vL}'); A(f'v_lshlrev_b32 v{t2}, 4, v{t2}'); A(f'v_mad_u32_u24 v{vX[0]}, v{vQ}, s{sT1}, v{t2}'); A(f'v_add_u32 v{vX[1]}, {4*81920-1024}, v{vX[0]}')
        if o['rot']:
            ri, mi, rj, mj = o['rot'] if isinstance(o['rot'], tuple) else (0, 1, 0, 2)
            if ri: A(f's_lshr_b32 s{sT3}, s{sT3}, {ri}')
            if mi != 1: A(f's_mul_i32 s{sT3}, s{sT3}, {mi}')
            A(f's_lshr_b32 s{sT2}, s{sT4}, {rj}'); A(f's_mul_i32 s{sT2}, s{sT2}, {mj}'); A(f's_add_u32 s{sT3}, s{sT3}, s{sT2}')
            A(f's_mul_i32 s{sT2}, s{sT3}, 52'); A(f's_lshr_b32 s{sT2}, s{sT2}, 8'); A(f's_mul_i32 s{sT2}, s{sT2}, 5')
            A(f's_sub_u32 s{sT3}, s{sT3}, s{sT2}'); A(f's_lshl_b32 s{sKX[0]}, s{sT3}, 7')
        else:
            A(f's_mov_b32 s{sKX[0]}, 0')
        A(f's_mul_i32 s{sT1}, s{sI}, 1280'); A(f's_mul_i32 s{sT2}, s{sWH}, {32*40960}'); A(f's_add_u32 s{sT1}, s{sT1}, s{sT2}')
        A(f's_mul_i32 s{sT2}, s{sKH}, {40960+640}'); A(f's_add_u32 s{sXB[0]}, s{sT1}, s{sT2}')
        A(f's_mul_i32 s{sT2}, s{sKH}, {40960-640}'); A(f's_sub_u32 s{sT1}, s{sT1}, s{sT2}'); A(f's_add_u32 s{sXB[1]}, s{sT1}, 40960')
        if o['xwide']:
            A(f's_mul_i32 s{sT2}, s{sKH}, 640'); A(f's_sub_u32 s{sXB[0]}, s{sXB[0]}, s{sT2}'); A(f's_add_u32 s{sXB[1]}, s{sXB[0]}, {8*81920}')
        A(f's_lshl_b32 s{sLX}, s{sW}, 12'); A(f's_add_u32 s{sLX}, s{sLX}, {LB}')
        A(f's_mov_b32 s{SX+2}, {2048*1280}'); A(f's_mov_b32 s{SX+3}, 0x20000')
        A(f'v_lshl_add_u32 v{vS[0]}, v{t1}, 18, v{t0}')
        A(f's_and_b32 s{sJ}, s2, 1'); A(f's_lshl_b32 s{sJ}, s{sJ}, 2'); A(f's_add_u32 s{sJ}, s{sJ}, s{sT4}')
        if o['early']:
            A(f'v_lshlrev_b32 v{vLin}, 4, v{vL}'); A(f'v_mul_u32_u24 v{t0}, 5462, v{vL}'); A(f's_movk_i32 s{sT1}, 2880')
            A(f'v_add_u32 v{t1}, {64*5462}, v{t0}'); A(f'v_add_u32 v{t2}, {128*5462}, v{t0}')
            for x, t in enumerate((t0, t1, t2)):
                A(f'v_lshrrev_b32 v{t}, 16, v{t}'); A(f'v_mad_u32_u24 v{vW[x]}, v{t}, s{sT1}, v{vLin}')
            A(f'v_and_b32 v{t0}, 32, v{vL}'); A(f'v_xor_b32 v{vW[1]}, v{vW[1]}, v{t0}'); A(f'v_xor_b32 v{vW[2]}, 32, v{vW[2]}')
            A(f's_mul_i32 s{sT1}, s{sKH}, {320*3072}'); A(f's_mul_i32 s{sT2}, s{sWH}, {32*3072}'); A(f's_add_u32 s{sT1}, s{sT1}, s{sT2}')
            A(f's_mul_i32 s{sT2}, s{sJ}, 192'); A(f's_add_u32 s{sWB1}, s{sT1}, s{sT2}'); A(f's_add_u32 s{sWB2}, s{sWB1}, 1536')
            A(f's_mul_i32 s{sT1}, s{sKH}, 12288'); A(f's_mul_i32 s{sT2}, s{sWH}, 6144'); A(f's_add_u32 s{sLW}, s{sT1}, s{sT2}')
            A(f's_mov_b32 s{SWIN+2}, {640*3072}'); A(f's_mov_b32 s{SWIN+3}, 0x20000')
        if o['kst'] == 1: A(f"{o['clk']} s[90:91]")
        A('s_waitcnt lgkmcnt(0)')
        if o['kst'] == 2: A(f"{o['clk']} s[90:91]"); A('s_waitcnt lgkmcnt(0)')
        if o['kst']: A(f's_sub_u32 s{sWBUF}, s90, s{sC1}')
        if o['early']: A(f's_mov_b64 s[{SWIN}:{SWIN+1}], s[48:49]')
        head = [G(p), Mark('free', 'goX'), Mark('flush', 'X0')]
        if o['early']: head += [Mark('free', 'goW'), Mark('emit', o['early'])]
        p = []
        A = p.append
        if o['codepf'] and o['cpos'] >= 2: cp1()
        if o['codepf'] and o['cpos'] >= 1: cp2()
        if not o['early']:
            A(f'v_lshlrev_b32 v{vLin}, 4, v{vL}'); A(f'v_mul_u32_u24 v{t0}, 5462, v{vL}'); A(f's_movk_i32 s{sT1}, 2880')
            A(f'v_add_u32 v{t1}, {64*5462}, v{t0}'); A(f'v_add_u32 v{t2}, {128*5462}, v{t0}')
            for x, t in enumerate((t0, t1, t2)):
                A(f'v_lshrrev_b32 v{t}, 16, v{t}'); A(f'v_mad_u32_u24 v{vW[x]}, v{t}, s{sT1}, v{vLin}')
            A(f'v_and_b32 v{t0}, 32, v{vL}'); A(f'v_xor_b32 v{vW[1]}, v{vW[1]}, v{t0}'); A(f'v_xor_b32 v{vW[2]}, 32, v{vW[2]}')
            A(f's_mul_i32 s{sT1}, s{sKH}, {320*3072}'); A(f's_mul_i32 s{sT2}, s{sWH}, {32*3072}'); A(f's_add_u32 s{sT1}, s{sT1}, s{sT2}')
            A(f's_mul_i32 s{sT2}, s{sJ}, 192'); A(f's_add_u32 s{sWB1}, s{sT1}, s{sT2}'); A(f's_add_u32 s{sWB2}, s{sWB1}, 1536')
            A(f's_mul_i32 s{sT1}, s{sKH}, 12288'); A(f's_mul_i32 s{sT2}, s{sWH}, 6144'); A(f's_add_u32 s{sLW}, s{sT1}, s{sT2}')
        A(f's_mov_b64 s[{SWIN}:{SWIN+1}], s[48:49]'); A(f's_mov_b32 s{SWIN+2}, {640*3072}'); A(f's_mov_b32 s{SWIN+3}, 0x20000')
        for n in range(1, 5):
            A(f's_add_u32 s{sKX[n]}, s{sKX[n-1]}, 128'); A(f's_cmp_ge_u32 s{sKX[n]}, 640'); A(f's_cselect_b32 s{sKX[n]}, 0, s{sKX[n]}')
        A(f'v_and_b32 v{vC}, 15, v{vL}')
        A(f'v_lshlrev_b32 v{t0}, 18, v{vC}'); A(f'v_lshl_add_u32 v{vZ[1]}, v{vQ}, 7, v{t0}')
        A(f's_lshl_b32 s{sT1}, s{sWH}, 5'); A(f's_add_u32 s{sT1}, s{sT1}, s{sKH}'); A(f's_lshl_b32 s{sT1}, s{sT1}, 5'); A(f's_add_u32 s{sT1}, s{sT1}, s{sI}')
        A(f's_lshl_b32 s{sT1}, s{sT1}, 2'); A(f's_and_b32 s{sT2}, s{sJ}, 3'); A(f's_add_u32 s{sT1}, s{sT1}, s{sT2}'); A(f's_lshl_b32 s{sT1}, s{sT1}, 1')
        A(f's_lshr_b32 s{sT2}, s{sJ}, 2'); A(f's_add_u32 s{sT1}, s{sT1}, s{sT2}'); A(f's_lshl_b32 s{sTC}, s{sT1}, 9')
        A(f's_mov_b64 s[{SWSP}:{SWSP+1}], s[50:51]'); A(f's_mov_b32 s{SWSP+2}, {2048*4096}'); A(f's_mov_b32 s{SWSP+3}, 0x20000')
        A(f'v_xor_b32 v{vS[1]}, 64, v{vS[0]}'); A(f'v_add_u32 v{vS[1]}, {8*262144-1024}, v{vS[1]}')
        A(f's_mul_i32 s{sLH}, s{sW}, 3072')
        A(f's_mul_i32 s{sLS}, s{sW}, {NPS*2048}'); A(f's_add_u32 s{sLS}, s{sLS}, {LB + 8192}')
        A(f's_lshl_b32 s{sLW3}, s{sW}, 10')
        if o['probe2']:
            fl, n = o['probe2']
            st = [f's_load_dwordx2 s[{SCODE}:{SCODE+1}], s[0:1], 8', 's_waitcnt lgkmcnt(0)', f's_mov_b32 s{SCODE+2}, {2048*4096}', f's_mov_b32 s{SCODE+3}, 0x20000',
                  f's_lshl_b32 s{sT1}, s2, 2', f's_add_u32 s{sT1}, s{sT1}, s{sW}', f's_lshl_b32 s{sT1}, s{sT1}, 13',
                  f's_memrealtime s[{sHB-1}:{sHB}]', 's_waitcnt lgkmcnt(0)', f's_mov_b32 s{sT2}, s{sHB-1}']
            for x in range(n):
                st += [f'buffer_load_dwordx4 {v(ACC+4*x,4)}, v{vLin}, {srd(SCODE)}, s{sT1} offen{fl}', f's_add_u32 s{sT1}, s{sT1}, 1024']
            st += ['s_waitcnt vmcnt(0)', 's_barrier', f's_memrealtime s[{sHB-1}:{sHB}]', 's_waitcnt lgkmcnt(0)', f's_sub_u32 s{sWBUF}, s{sHB-1}, s{sT2}']
            p.append(Mark('raw', st))
        if o['probe']:
            off, stride, first = o['probe']; e = self.lab('probe')
            st = [f's_mov_b32 s{sFC}, 0', f's_or_b32 s{sT1}, s{sI}, s{sJ}', f's_or_b32 s{sT1}, s{sT1}, s{sW}', f's_cmp_eq_u32 s{sT1}, 0', f's_cbranch_scc0 {e}',
                  f's_load_dwordx2 s[{SCODE}:{SCODE+1}], s[0:1], {off}', 's_waitcnt lgkmcnt(0)', f's_mov_b32 s{SCODE+2}, {17*stride+first+4096}', f's_mov_b32 s{SCODE+3}, 0x20000', f'v_mov_b32 v{TMP}, 0',
                  f's_mov_b32 s{sT1}, {first}', f'buffer_load_dword v{TMP+1}, v{TMP}, {srd(SCODE)}, s{sT1} offen', 's_waitcnt vmcnt(0)',
                  f's_memrealtime s[{sHB-1}:{sHB}]', 's_waitcnt lgkmcnt(0)', f's_mov_b32 s{sT2}, s{sHB-1}']
            for n in range(16):
                st += [f's_add_u32 s{sT1}, s{sT1}, {stride}', f'buffer_load_dword v{TMP+1}, v{TMP}, {srd(SCODE)}, s{sT1} offen', 's_waitcnt vmcnt(0)']
            st += [f's_memrealtime s[{sHB-1}:{sHB}]', 's_waitcnt lgkmcnt(0)', f's_sub_u32 s{sFC}, s{sHB-1}, s{sT2}']
            p.append(Mark('raw', st)); p.append(f'{e}:'); p.append(f's_mov_b32 s{sWBUF}, s{sFC}')
        return head + [G(p), Mark('free', 'go')]

    def setup2(self):
        o = self.o
        p = []
        A = p.append
        for b, src, n in ((SBSP, 52, 4096), (SWO, 54, 768*1280), (SGATE, 56, 1280), (SOUT, 58, 2048*1280), (SWS, 62, WS_SIZE)):
            A(f's_mov_b64 s[{b}:{b+1}], s[{src}:{src+1}]'); A(f's_mov_b32 s{b+2}, {n}'); A(f's_mov_b32 s{b+3}, 0x20000')
        A(G(f's_cmp_eq_u32 s{sWH}, 0', f's_cselect_b64 s[{SH}:{SH+1}], s[44:45], s[46:47]'))
        A(f's_mov_b32 s{SH+2}, {640*1280}'); A(f's_mov_b32 s{SH+3}, 0x20000')
        if o['stamps']:
            self.nstamp = 1; self.stamp_names = ['entry']
            A(f's_mov_b32 s{STAMP0}, s{sC1}')
            if o['probe'] or o['probe2'] or o['kst']:
                self.nstamp = 2; self.stamp_names = ['entry', 'probe']
                A(f's_add_u32 s{STAMP0+1}, s{sC1}, s{sWBUF}')
            if o['skew']:
                A(f'v_mov_b32 v{TMP}, s{sC1}'); A(f's_lshl_b32 s{sT1}, s2, 2'); A(f's_add_u32 s{sT1}, s{sT1}, {hx(STAMP+0x30000)}'); A(f'v_mov_b32 v{TMP+1}, 0')
                A(f'buffer_store_dword v{TMP}, v{TMP+1}, {srd(SWS)}, s{sT1} offen sc1')
        p += self.stamp('start')
        t0, t1, t2, t3 = TMP, TMP + 1, TMP + 2, TMP + 3
        A(f'v_mov_b32 v{t3}, 0')
        A(I(f'buffer_load_dword v{vTag}, v{t3}, {srd(SWS)}, 0 offen sc1'))
        A(f's_lshl_b32 s{sT1}, s{sWH}, 5'); A(f's_add_u32 s{sT1}, s{sT1}, s{sKH}'); A(f's_lshl_b32 s{sT1}, s{sT1}, 5'); A(f's_add_u32 s{sT1}, s{sT1}, s{sI}')
        A(f's_lshl_b32 s{sT1}, s{sT1}, 1')
        A(f'v_lshlrev_b32 v{t2}, 7, v{vC}')
        A(I(f'buffer_load_ushort v{vBias}, v{t2}, {srd(SBSP)}, s{sT1} offen'))
        A(f's_xor_b32 s{sT1}, s{sT1}, 64')
        A(I(f'buffer_load_ushort v{vBias1}, v{t2}, {srd(SBSP)}, s{sT1} offen'))
        if o['tlb']:
            A(f'v_and_b32 v{t0}, 7, v{vL}'); A(f'v_lshlrev_b32 v{t0}, 21, v{t0}')
            for b in o['tlb']:
                A(I(f'buffer_load_dword v{POLL+2}, v{t0}, {srd(b)}, 0 offen', tok='touch'))
        A(f'v_lshrrev_b32 v{t0}, 1, v{vC}'); A(f'v_xor_b32 v{t0}, v{t0}, v{vQ}'); A(f'v_lshlrev_b32 v{t0}, 4, v{t0}')
        A(f'v_lshl_add_u32 v{vRb[0]}, v{vC}, 7, v{t0}'); A(f'v_xor_b32 v{vRb[1]}, 64, v{vRb[0]}')
        A(f's_xor_b32 s{sT1}, s{sLX}, 4096')
        for k in range(2):
            A(f'v_add_u32 v{vRx[k]}, s{sLX}, v{vRb[k]}'); A(f'v_add_u32 v{vRp[k]}, s{sT1}, v{vRb[k]}'); A(f'v_add_u32 v{vRs[k]}, s{sLS}, v{vRb[k]}')
        A(f'v_bfe_u32 v{t0}, v{vL}, 2, 2'); A(f'v_lshl_add_u32 v{t0}, v{vQ}, 3, v{t0}'); A(f'v_mul_u32_u24 v{t0}, 192, v{t0}')
        A(f'v_and_b32 v{t1}, 3, v{vL}'); A(f'v_lshl_add_u32 v{t0}, v{t1}, 3, v{t0}')
        A(f'v_xor_b32 v{t1}, s{sKH}, v{vQ}'); A(f'v_and_b32 v{t1}, 1, v{t1}'); A(f'v_lshl_add_u32 v{t0}, v{t1}, 5, v{t0}')
        A(f's_mul_i32 s{sT1}, s{sKH}, 12288'); A(f'v_add_u32 v{vTe}, s{sT1}, v{t0}'); A(f's_sub_u32 s{sT1}, 12288, s{sT1}'); A(f'v_add_u32 v{vTo}, s{sT1}, v{t0}')
        A(f'v_and_b32 v{t0}, 1, v{vQ}'); A(f'v_xor_b32 v{t0}, s{sW}, v{t0}'); A(f'v_mul_u32_u24 v{t0}, 24576, v{t0}')
        A(f'v_lshrrev_b32 v{t1}, 1, v{vQ}'); A(f'v_lshl_add_u32 v{t0}, v{t1}, 8, v{t0}'); A(f'v_lshl_add_u32 v{t0}, v{vC}, 4, v{t0}')
        A(f's_lshl_b32 s{sT1}, s{sKH}, 9'); A(f'v_add_u32 v{vHs}, s{sT1}, v{t0}')
        A(f's_lshl_b32 s{sT1}, s{sI}, 2'); A(f's_add_u32 s{sT1}, s{sT1}, s{sW}')
        A(f's_mul_i32 s{sT2}, s{sT1}, 205'); A(f's_lshr_b32 s{sT2}, s{sT2}, 10')
        A(f's_mul_i32 s{sT3}, s{sT2}, 5'); A(f's_sub_u32 s{sT3}, s{sT1}, s{sT3}')
        A(f's_and_b32 s{sT4}, s{sT2}, 7'); A(f's_mul_i32 s{sT4}, s{sT4}, 3'); A(f's_lshr_b32 s{sT2}, s{sT2}, 3'); A(f's_add_u32 s{sT2}, s{sT2}, s{sT4}')
        A(f's_mul_i32 s{sT2}, s{sT2}, {32*1280}'); A(f's_lshl_b32 s{sT3}, s{sT3}, 5'); A(f's_add_u32 s{sT2}, s{sT2}, s{sT3}')
        A(f's_mul_i32 s{sT3}, s{sJ}, 160'); A(f's_add_u32 s{sT2}, s{sT2}, s{sT3}')
        A(f's_mul_i32 s{sT3}, s{sJ}, 120'); A(f's_add_u32 s{sT3}, s{sT3}, s{sT1}'); A(f's_lshl_b32 s{sT3}, s{sT3}, 10'); A(f's_add_u32 s{sT3}, s{sT3}, {hx(WBUF)}')
        A(G(f's_cmp_lt_u32 s{sT1}, 120', f's_cselect_b32 s{sREL}, s{sT2}, {hx(OOB)}', f's_cselect_b32 s{sFC}, s{sT3}, {hx(OOB)}'))
        A(f'v_lshrrev_b32 v{t0}, 1, v{vL}'); A(f'v_mul_u32_u24 v{t0}, 1280, v{t0}'); A(f'v_and_b32 v{t1}, 1, v{vL}'); A(f'v_lshl_add_u32 v{vZ[0]}, v{t1}, 4, v{t0}')
        A(Mark('free', 'go2'))
        A(f's_mul_i32 s{sT1}, s{sKH}, 640'); A(f's_add_u32 s{sT2}, s{sT1}, {L_GATE}'); A(f'v_lshl_add_u32 v{vGa}, v{vQ}, 4, s{sT2}')
        A(f's_sub_u32 s{sT2}, {L_GATE + 640}, s{sT1}'); A(f'v_lshl_add_u32 v{vGb}, v{vQ}, 4, s{sT2}')
        A(f's_mul_i32 s{sT1}, s{sW}, 6144'); A(f's_add_u32 s{sT1}, s{sT1}, {LC}'); A(f'v_add_u32 v{vExR}, s{sT1}, v{vLin}')
        for u in range(1, 4):
            A(f's_xor_b32 s{sT1}, s{sW}, {u}'); A(f's_mul_i32 s{sT1}, s{sT1}, 6144')
            A(f's_add_u32 s{sT1}, s{sT1}, {LC + (u-1)*2048}'); A(f'v_add_u32 v{vRd[u-1]}, s{sT1}, v{vLin}')
        A(f's_lshl_b32 s{sT1}, s{sW}, 9'); A(f's_add_u32 s{sT1}, s{sT1}, {LC}'); A(f'v_lshl_add_u32 v{vMx}, v{vL}, 3, s{sT1}')
        A(f's_mul_i32 s{sT1}, s{sKH}, 24'); A(f's_mul_i32 s{sT2}, s{sJ}, {40*1280}')
        for y in range(3):
            A(f'v_lshrrev_b32 v{t0}, 3, v{vL}'); A(f'v_add_u32 v{t0}, s{sT1}, v{t0}')
            if y: A(f'v_add_u32 v{t0}, {8*y}, v{t0}')
            A(f'v_lshrrev_b32 v{t1}, 1, v{t0}'); A(f'v_xor_b32 v{t1}, v{t1}, v{vL}'); A(f'v_and_b32 v{t1}, 7, v{t1}')
            if o['hzero'] and y == 2:
                A(f'v_cmp_lt_u32 vcc, 40, v{t0}'); A(f'v_mov_b32 v{t3}, 0x8000'); A(f'v_cndmask_b32 v{t0}, v{t0}, v{t3}, vcc')
            else:
                A(f'v_min_u32 v{t0}, 40, v{t0}')
            A(f'v_mul_u32_u24 v{t0}, 1280, v{t0}'); A(f'v_lshl_add_u32 v{t0}, v{t1}, 4, v{t0}')
            A(f'v_add_u32 v{vH[y]}, s{sT2}, v{t0}')
            if y: A(f'v_subrev_u32 v{vH[y]}, {1024*y}, v{vH[y]}')
        A(f'v_and_b32 v{t0}, 31, v{vL}'); A(f'v_min_u32 v{t0}, 20, v{t0}'); A(f's_mul_i32 s{sT1}, s{sKH}, 20'); A(f'v_add_u32 v{t0}, s{sT1}, v{t0}')
        A(f'v_mul_u32_u24 v{t0}, 1280, v{t0}'); A(f'v_add_u32 v{vHt}, s{sT2}, v{t0}')
        mg, mc, mp = o['smask']
        A(f's_mov_b32 s{sMK}, 0')
        if mg: A(f's_lshr_b32 s{sT1}, s{sJ}, 2'); A(f's_lshl_b32 s{sMK}, s{sT1}, 3')
        if mc == 1: A(f's_and_b32 s{sT1}, s{sJ}, 1'); A(f's_lshl_b32 s{sT1}, s{sT1}, 2'); A(f's_or_b32 s{sMK}, s{sMK}, s{sT1}')
        if mc == 2: A(f's_and_b32 s{sT1}, s{sJ}, 3'); A(f's_lshl_b32 s{sT1}, s{sT1}, 1'); A(f's_or_b32 s{sMK}, s{sMK}, s{sT1}')
        if mp: A(f's_and_b32 s{sT1}, s{sI}, 1'); A(f's_or_b32 s{sMK}, s{sMK}, s{sT1}')
        A(f's_and_b32 s{sT1}, s{sMK}, 1'); A(f's_lshl_b32 s{sT1}, s{sT1}, 6')
        for k in range(2): A(f'v_xor_b32 v{vRs[k]}, s{sT1}, v{vRs[k]}')
        A(f's_lshr_b32 s{sT3}, s{sMK}, 1'); A(f's_lshl_b32 s{sT3}, s{sT3}, 7')
        for u in range(4):
            A(f's_xor_b32 s{sT1}, s{sW}, {u}'); A(f's_and_b32 s{sT2}, s{sT1}, 1'); A(f's_bfe_u32 s{sT1}, s{sT1}, 0x10001')
            A(f's_lshl_b32 s{sT1}, s{sT1}, 5'); A(f's_add_u32 s{sT1}, s{sT1}, s{sT2}'); A(f's_lshl_b32 s{sT1}, s{sT1}, 5'); A(f's_add_u32 s{sT1}, s{sT1}, s{sI}')
            A(f's_lshl_b32 s{sT1}, s{sT1}, 12'); A(f's_add_u32 s{sT1}, s{sT1}, s{sLW3}'); A(f's_or_b32 s{sSP[u]}, s{sT1}, s{sT3}')
        A(Mark('free', 'go3'))
        A(f's_bfe_u32 s{sDX}, s{sMK}, 0x20001'); A(f's_andn2_b32 s{sDX}, s{sDX}, {o["mc2"]}'); A(f's_lshl_b32 s{sDZ}, s{sDX}, 4'); A(f's_lshl_b32 s{sDX}, s{sDX}, 7')
        A(f's_mul_i32 s{sT1}, s{sJ}, 12'); A(f's_lshl_b32 s{sT2}, s{sWH}, 1'); A(f's_add_u32 s{sT1}, s{sT1}, s{sT2}')
        A(f's_and_b32 s{sT2}, s{sMK}, 1'); A(f's_add_u32 s{sT1}, s{sT1}, s{sT2}'); A(f's_lshl_b32 s{sT1}, s{sT1}, 15')
        A(f's_lshl_b32 s{sT2}, s{sKH}, 14'); A(f's_add_u32 s{sT1}, s{sT1}, s{sT2}')
        A(f's_lshr_b32 s{sT2}, s{sMK}, 3'); A(f's_lshl_b32 s{sT2}, s{sT2}, 13'); A(f's_add_u32 s{sT1}, s{sT1}, s{sT2}'); A(f's_add_u32 s{sZB}, s{sT1}, {hx(Z2B)}')
        A(f's_lshl_b32 s{sT1}, s{sI}, 2'); A(f's_add_u32 s{sT1}, s{sT1}, s{sW}'); A(f's_mul_i32 s{sT1}, s{sT1}, 24576'); A(f's_add_u32 s{sHB}, s{sT1}, {hx(HBUF)}')
        A(f's_mul_i32 s{sT1}, s{sJ}, 122880'); A(f's_add_u32 s{sT1}, s{sT1}, s{sLW3}'); A(f's_add_u32 s{sWBUF}, s{sT1}, {hx(WBUF)}')
        A(f's_lshl_b32 s{sT1}, s{sI}, 3'); A(f's_add_u32 s{sT1}, s{sT1}, s{sJ}'); A(f's_mul_i32 s{sT1}, s{sT1}, 20480')
        A(f's_mul_i32 s{sT2}, s{sW}, 5120'); A(f's_add_u32 s{sT1}, s{sT1}, s{sT2}'); A(f's_add_u32 s{sT1S}, s{sT1}, {hx(T1B)}')
        A(f'v_lshrrev_b32 v{t1}, 1, v{vQ}'); A(f's_lshl_b32 s{sT1}, s{sKH}, 1'); A(f'v_add_u32 v{t3}, s{sT1}, v{t1}')
        A(f'v_and_b32 v{t1}, 3, v{vL}'); A(f'v_lshl_or_b32 v{t0}, v{t3}, 2, v{t1}')
        A(f's_and_b32 s{sT1}, s{sI}, 11'); A(f'v_xor_b32 v{t0}, s{sT1}, v{t0}'); A(f'v_lshlrev_b32 v{t0}, 4, v{t0}')
        A(f'v_lshrrev_b32 v{t1}, 2, v{vC}'); A(f'v_lshl_add_u32 v{t0}, v{t1}, 13, v{t0}')
        A(f'v_and_b32 v{t1}, 1, v{vQ}'); A(f'v_xor_b32 v{t1}, s{sW}, v{t1}'); A(f'v_lshl_add_u32 v{t0}, v{t1}, 15, v{t0}')
        A(f's_lshl_b32 s{sT1}, s{sI}, 8'); A(f'v_add_u32 v{vZs}, s{sT1}, v{t0}')
        c0 = -2.0 * math.sqrt(2.0 / math.pi) * math.log2(math.e)
        A(f's_mov_b32 s{sC1}, {hx(f2u(c0*0.044715))}'); A(f's_mov_b32 s{sC1+1}, s{sC1}')
        A(f'v_mov_b32 v{vC0}, {hx(f2u(c0))}'); A(f'v_mov_b32 v{vC0+1}, v{vC0}')
        A(f's_mov_b32 s{sTO}, 200000')
        A(f'v_and_b32 v{t0}, 1, v{vC}'); A(f'v_lshlrev_b32 v{t0}, 31, v{t0}'); A(f'v_or_b32 v{t0}, 1.0, v{t0}')
        A(G(f's_cmp_eq_u32 s{sKH}, 0', 's_cselect_b64 vcc, -1, 0',
            f'v_cndmask_b32 v{vAl}, v{t0}, 1.0, vcc', f'v_cndmask_b32 v{vBe}, 1.0, v{t0}, vcc'))
        def pat(dst, Rreg):
            A(f'v_lshrrev_b32 v{t1}, 1, v{Rreg}'); A(f'v_xor_b32 v{t1}, v{t1}, v{vQ}'); A(f'v_and_b32 v{t1}, 7, v{t1}'); A(f'v_lshlrev_b32 v{t1}, 4, v{t1}')
            A(f'v_lshl_add_u32 v{dst}, v{Rreg}, 7, v{t1}'); A(f'v_xor_b32 v{dst+1}, 64, v{dst}')
        A(f'v_sub_u32 v{t0}, 16, v{vC}'); pat(vZ[4], t0)
        A(f'v_add_u32 v{t0}, 32, v{vC}'); A(f'v_sub_u32 v{t2}, 48, v{vC}')
        A(f'v_cmp_gt_u32 vcc, 8, v{vC}'); A(f'v_mov_b32 v{t1}, 0x80008000'); A(f'v_cndmask_b32 v{t0}, v{t2}, v{t0}, vcc'); A(f'v_cndmask_b32 v{vZ[7]}, v{t1}, 0, vcc')
        pat(vZ[2], t0)
        A(f's_mul_i32 s{sT1}, s{sJ}, 20480'); A(f's_sub_u32 s{sT1}, {15*10240 - 81920}, s{sT1}')
        A(f's_mov_b32 s{sT2}, 81920')
        for n in range(5):
            A(f'v_add_u32 v{t0}, {64*n}, v{vL}'); A(f'v_mul_u32_u24 v{t1}, 3277, v{t0}'); A(f'v_lshrrev_b32 v{t1}, 16, v{t1}')
            A(f'v_mul_u32_u24 v{t2}, 20, v{t1}'); A(f'v_sub_u32 v{t0}, v{t0}, v{t2}'); A(f'v_lshlrev_b32 v{t0}, 4, v{t0}')
            A(f'v_mad_u32_u24 v{t0}, v{t1}, s{sT2}, v{t0}'); A(f'v_and_b32 v{t1}, 1, v{t1}'); A(f'v_mul_lo_u32 v{t1}, v{t1}, s{sT1}'); A(f'v_add_u32 v{vGo[n]}, v{t0}, v{t1}')
        A(f'v_lshrrev_b32 v{t1}, 3, v{vC}'); A(f'v_mul_u32_u24 v{t1}, 24, v{t1}'); A(f's_lshl_b32 s{sT1}, s{sW}, 3'); A(f'v_add3_u32 v{t0}, s{sT1}, v{vC}, v{t1}')
        A(f'v_and_b32 v{t1}, 1, v{vQ}'); A(f'v_lshlrev_b32 v{t1}, 4, v{t1}'); A(f'v_lshrrev_b32 v{t2}, 1, v{vQ}'); A(f'v_add_u32 v{t1}, v{t1}, v{t2}')
        A(f'v_lshlrev_b32 v{t1}, 5, v{t1}'); A(f'v_add_u32 v{t1}, s{sI}, v{t1}')
        A(f'v_mul_u32_u24 v{t1}, v{t0}, v{t1}'); A(f'v_lshlrev_b32 v{t2}, 6, v{t0}')
        A(f'v_and_b32 v{vSgn}, 1, v{t0}'); A(f'v_mul_u32_u24 v{vSgn}, 0x8000, v{vSgn}'); A(f'v_lshl_or_b32 v{vSgn}, v{vSgn}, 16, v{vSgn}')
        cs, sn = ACC, ACC + 8
        for x in range(8):
            A(f'v_and_b32 v{t3}, 0x7ff, v{t1}'); A(f'v_cvt_f32_u32 v{t3}, v{t3}'); A(f'v_mul_f32 v{t3}, {hx(f2u(1/2048))}, v{t3}')
            A(f'v_cos_f32 v{cs+x}, v{t3}'); A(f'v_sin_f32 v{sn+x}, v{t3}')
            if x < 7: A(f'v_add_u32 v{t1}, v{t1}, v{t2}')
        for x in range(4):
            A(f'v_cvt_pk_bf16_f32 v{CB+x}, v{cs+2*x}, v{cs+2*x+1}'); A(f'v_cvt_pk_bf16_f32 v{CB+4+x}, v{sn+2*x}, v{sn+2*x+1}')
        A(f's_lshl_b32 s{sT1}, s{sWH}, 4'); A(f'v_add_u32 v{t0}, s{sT1}, v{vC}')
        A(f'v_lshrrev_b32 v{t1}, 1, v{vQ}'); A(f'v_lshlrev_b32 v{t1}, 3, v{t1}'); A(f'v_mul_u32_u24 v{t1}, v{t0}, v{t1}')
        A(f'v_and_b32 v{t2}, 1, v{vQ}'); A(f'v_mul_u32_u24 v{t2}, 24, v{t2}'); A(f'v_add_u32 v{t1}, v{t1}, v{t2}')
        for x in range(8):
            A(f'v_and_b32 v{t3}, 31, v{t1}'); A(f'v_cvt_f32_u32 v{t3}, v{t3}'); A(f'v_mul_f32 v{t3}, {hx(f2u(1/32))}, v{t3}')
            A(f'v_cos_f32 v{cs+x}, v{t3}')
            if x < 7: A(f'v_add_u32 v{t1}, v{t1}, v{t0}')
        A(f'v_and_b32 v{t0}, 1, v{t0}'); A(f'v_mul_u32_u24 v{t0}, 0x8000, v{t0}'); A(f'v_lshl_or_b32 v{t0}, v{t0}, 16, v{t0}')
        for x in range(4):
            A(f'v_cvt_pk_bf16_f32 v{CF+x}, v{cs+2*x}, v{cs+2*x+1}')
        for x in range(4):
            A(f'v_xor_b32 v{CF+4+x}, v{CF+x}, v{t0}')
        return p

    def tag(self):
        return [f'v_readfirstlane_b32 s{sTAG}, v{vTag}', f's_mul_i32 s{sTAG}, s{sTAG}, 0x9e3779b1', f's_add_u32 s{sTAG}, s{sTAG}, 0x7f4a7c15',
                f'v_mov_b32 v{vTag}, s{sTAG}', f'v_lshlrev_b32 v{vBias}, 16, v{vBias}', f'v_lshlrev_b32 v{vBias1}, 16, v{vBias1}', Mark('waitregs', [f'v{POLL}', f'v{POLL+1}'])]

    def stream(self):
        o = self.o
        S = []
        def wstage(n):
            slot = n % 3; kp = n % 5; tok = f'S{n}'
            need = ['goW' if n == 0 and o['early'] else 'go'] if n < 3 else [f'W{n-3}']
            base = sWB2 if n < 5 else sWB1
            xs, ws = [], []
            if n < 5:
                xn, xt = (['goX'], 'X0') if n == 0 else (need, tok)
                for u in range(2):
                    xs.append(Bundle([f's_add_u32 m0, s{sLX}, {slot*16384 + u*2048}', f's_add_u32 s{sT0}, s{sXB[u]}, s{sKX[kp]}'] + ([f's_add_u32 s{sT0}, s{sT0}, s{sKX[kp]}'] if o['xwide'] else []) + [
                                      I(f'buffer_load_dwordx4 v{vX[0]}, {srd(SX)}, s{sT0} offen lds', tok=xt)], 68, xn, xt))
                    xs.append(Bundle([I(f'buffer_load_dwordx4 v{vX[1]}, {srd(SX)}, s{sT0} offen offset:1024 lds', tok=xt)], 68, xn, xt))
            for g in range(2):
                for x in range(3):
                    pre = []
                    if x == 0:
                        pre = [f's_mul_i32 s{sT0}, s{sKX[kp]}, 1536', f's_add_u32 m0, s{sLW}, {slot*24576 + g*3072}', f's_add_u32 s{sT0}, s{sT0}, s{base}']
                        if g: pre.append(f's_add_u32 s{sT0}, s{sT0}, {16*3072}')
                    ws.append(Bundle(pre + [I(f'buffer_load_dwordx4 v{vW[x]}, {srd(SWIN)}, s{sT0} offen offset:{1024*x} lds', tok=tok)], o['wcost'], need, tok))
            return xs + ws
        def hstage(n):
            out = []
            for y in range(3):
                pre = [f's_add_u32 m0, s{sLH}, {H_BASE[n]}'] if y == 0 else []
                out.append(Bundle(pre + [I(f'buffer_load_dwordx4 v{vH[y]}, {srd(SH)}, s{sKX[n]} offen offset:{1024*y} lds', tok=f'H{n}')], 62, [f'W{7 + n//2}'], f'H{n}'))
            return out
        for n in range(8):
            S += wstage(n)
            if n == o['relpos']:
                S.append(Bundle([f's_add_u32 m0, s{sLW3}, {L_REL}',
                                 I(f'buffer_load_dwordx4 v{vZ[0]}, {srd(SWO)}, s{sREL} offen lds', tok='rel')], 68, ['go2'], 'rel'))
            if n == o['hpos']:
                if o['htouch']:
                    S.append(Bundle([I(f'buffer_load_dword v{POLL+3}, v{vHt}, {srd(SH)}, s{sKX[0]} offen', tok='htouch')], 100, ['go3'], 'htouch'))
            for part, (tp, tc) in enumerate(o['tparts']):
                if tp == n:
                    nl = 64 // len(o['tparts']); mask = ((1 << nl) - 1) << (nl * part)
                    S.append(Bundle([f's_mov_b32 exec_lo, {hx(mask)}', f's_mov_b32 exec_hi, {hx(mask >> 32)}',
                                     I(f'buffer_load_dword v{POLL+2}, v{vZ[1]}, {srd(SWSP)}, s{sTC} offen', tok='touch'), 's_mov_b64 exec, -1'], tc, ['go'], 'touch'))
            if n == 4:
                S.append(Bundle([f's_mul_i32 s{sT0}, s{sW}, 320', f's_add_u32 m0, s{sT0}, {L_GATE}', 's_mov_b64 exec, 0xfffff',
                                 I(f'buffer_load_dwordx4 v{vLin}, {srd(SGATE)}, s{sT0} offen lds', tok='gate'), 's_mov_b64 exec, -1'], 30, ['go2'], 'gate'))
        if o['tfine']:
            first, every, nparts, tc = o['tfine']
            pos = max(n for n, b in enumerate(S) if b.tok == f'S{first}') + 1
            nl = 64 // nparts
            for part in range(nparts):
                mask = ((1 << nl) - 1) << (nl * part)
                while pos < len(S) and not S[pos].items[0].text.startswith('s_') and False: pos += 1
                S.insert(min(pos, len(S)), Bundle([f's_mov_b32 exec_lo, {hx(mask)}', f's_mov_b32 exec_hi, {hx(mask >> 32)}',
                         I(f'buffer_load_dword v{POLL+2}, v{vZ[1]}, {srd(SWSP)}, s{sTC} offen', tok='touch'), 's_mov_b64 exec, -1'], tc, ['go'], 'touch'))
                pos += every + 1
        NB = o['nb']
        def consume(n):
            kp, u = n >> 2, n & 3; slot = n % NPS
            need = [f'XA{(8*n - AX)//16}'] if 8*n >= AX else []
            return Bundle([Mark('need', [f'P{n}'])] +
                          [I(f'ds_read_b128 {a(32*kp + 8*u + 4*k, 4)}, v{vRs[k]} offset:{slot*2048}', tok=f'Pr{n}') for k in range(2)], 0, need, f'Pc{n}')
        def punit(n):
            kp, u = n >> 2, n & 3; slot = n % NPS; tok = f'P{n}'; out = []
            pc = o['pcost'][n // 8]
            pre = [Mark('waitds', [f'Pr{n-NPS}'])] if n >= NPS else []
            out.append(Bundle(pre + [f's_add_u32 m0, s{sLS}, {slot*2048}', f's_xor_b32 s{sT0}, s{sSP[u]}, {128*kp}'] + ([f's_xor_b32 s{sT0}, s{sT0}, s{sDX}'] if kp >= 4 and o['mc2'] != 3 else []) + [
                                     I(f'buffer_load_dwordx4 v{vS[0]}, {srd(SWSP)}, s{sT0} offen lds', tok=tok)], pc, ['Xdead'], tok))
            out.append(Bundle([I(f'buffer_load_dwordx4 v{vS[1]}, {srd(SWSP)}, s{sT0} offen offset:1024 lds', tok=tok)], pc, ['Xdead'], tok))
            if n >= NB: out.append(consume(n - NB))
            return out
        cuts = dict(zip(o['pcut'], ('S8', 'S9', 'Ha', 'Hb', 'Hc')))
        assert len(cuts) == 5
        for n in range(32):
            what = cuts.get(n)
            if what == 'S8': S += wstage(8)
            if what == 'S9': S += wstage(9)
            if what == 'Ha': S += hstage(0) + hstage(1)
            if what == 'Hb': S += hstage(2) + hstage(3)
            if what == 'Hc': S += hstage(4)
            S += punit(n)
        tailc = [consume(n) for n in range(32 - NB, 32)]
        for sg in range(12):
            p, ga, pi = sg >> 2, (sg >> 1) & 1, sg & 1; slot = sg % 3; tok = f'Z{sg}'
            need = ['flagB0' if sg == 0 else 'flagB'] + ([f'Zf{sg-3}'] if sg >= 3 else [])
            for x in range(8):
                pre = []
                if x == 0:
                    pre += [f's_add_u32 m0, s{sLZ}, {slot*8192}', f's_xor_b32 s{sT0}, s{sZB}, {pi*32768 + ga*8192}']
                    if p: pre.append(f's_add_u32 s{sT0}, s{sT0}, {p*131072}')
                if x == 4:
                    pre += [f's_add_u32 m0, s{sLZ}, {slot*8192 + 4096}', f's_add_u32 s{sT0}, s{sT0}, 4096']
                S.append(Bundle(pre + [I(f'buffer_load_dwordx4 v{vLin}, {srd(SWS)}, s{sT0} offen offset:{(x%4)*1024} sc1 lds', tok=tok)], o['zcost'], need, tok))
                if sg == 0 and x % 2 == 1 and tailc: S.append(tailc.pop(0))
            if sg == 0: S += tailc
        def wpart(n):
            out = []
            for x in range(10):
                xx = 10*n + x
                if n == 0: m0, need = f's_add_u32 m0, s{sLW3}, {L_W0 + x*4096}', ['flagB']
                else: m0, need = f's_add_u32 m0, s{sLZ}, {(xx-10)*1024}', [f'Zf{9 + (xx-10)//8}']
                out.append(Bundle([m0, f's_add_u32 s{sT0}, s{sWBUF}, {xx*4096}',
                                   I(f'buffer_load_dwordx4 v{vLin}, {srd(SWS)}, s{sT0} offen sc1 lds', tok=f'O{n}')], o['zcost'], need, f'O{n}'))
            return out
        def hpart(n):
            out = []
            for k in range(8):
                kk = 8*n + k
                pre = [f's_add_u32 s{sT0}, s{sHB}, {kk*1024}'] if k % 4 == 0 else []
                out.append(Bundle(pre + [I(f'buffer_load_dwordx4 {self.hreg(kk)}, v{vLin}, {srd(SWS)}, s{sT0} offen offset:{(k%4)*1024} sc1', tok=f'h{n}')],
                                  o['zcost'], [f'flagC{n}'], f'h{n}'))
            return out
        tpart = [Bundle([f's_mul_i32 s{sT0}, s{sW}, 5120', f's_add_u32 m0, s{sT0}, {LC + x*1024}', f's_add_u32 s{sT0}, s{sT1S}, {x*1024}',
                         I(f'buffer_load_dwordx4 v{vLin}, {srd(SWS)}, s{sT0} offen sc1 lds', tok='T')], o['zcost'], ['Cfree', 'flagT'], 'T') for x in range(5)]
        w0 = wpart(0)
        for k, (zs, cnt) in enumerate(o['o0at']):
            pos = max(n for n, b in enumerate(S) if b.tok == f'Z{zs}') + 1
            for b in w0[:cnt]: b.need = set(b.need) | {f'Zf{zs-3}'}
            S[pos:pos] = w0[:cnt]; w0 = w0[cnt:]
        parts = {'h1': hpart(1), 'T': tpart, 'O2': wpart(2)[o['o2pre']:]}
        S += w0 + wpart(1) + hpart(0) + wpart(2)[:o['o2pre']]
        if o['tailord'] == 'mix':
            S += parts['h1']; a_, b_ = parts['T'], parts['O2']
            while a_ or b_:
                S += b_[:1] + a_[:1]; a_, b_ = a_[1:], b_[1:]
        else:
            for x in o['tailord'].split(','): S += parts[x]
        S += hpart(2)
        for b in S:
            if b.tok and any(b.tok.startswith(x) for x in o['drop']):
                b.items = [it for it in b.items if not (isinstance(it, Ins) and it.kind == 'vm')]; b.cost = 0
        for b, cst in zip(S, o['cold']): b.cost = cst
        return S

    def hreg(self, kk):
        if kk < 8: return a(32*(kk >> 2) + 8*(kk & 3), 4)
        if kk < 16: return v([FR[0]+20, FR[0]+24, FR[0]+28, FR[1]+20, FR[1]+24, FR[1]+28, CB, CB+4][kk-8], 4)
        return v(Z2 + 4*(kk - 16), 4)

    def l_w(self, n):
        x, w = n >> 2, n & 3
        return L_W0 + n*1024 if n < 40 else w*24576 + (x - 10)*1024

    def codepf(self, part, off=None):
        if not self.o['codepf2']: return []
        return [f's_getpc_b64 s[{SCODE}:{SCODE+1}]', f'L_cq{part}:', f's_mov_b32 s{SCODE+2}, L_code_end - L_cq{part}', f's_mov_b32 s{SCODE+3}, 0x20000',
                f's_and_b32 s{sT1}, s{sI}, 7', f's_lshl_b32 s{sT1}, s{sT1}, 2', f's_add_u32 s{sT1}, s{sT1}, s{sW}', f's_lshl_b32 s{sT1}, s{sT1}, 8', f's_add_u32 s{sT1}, s{sT1}, {off or self.o["codepf2"]}',
                f'v_and_b32 v{vT}, 128, v{vLin}', f'buffer_load_dword v{POLL+3}, v{vT}, {srd(SCODE)}, s{sT1} offen']

    def poll(self, load, regs, mask=None, pre=(), wait=None):
        chk, ok = self.lab('chk'), self.lab('ok')
        p = [Mark('waitregs', wait or regs), f'{chk}:'] + list(pre)
        p.append(f'v_cmp_ne_u32 vcc, s{sTAG}, {regs[0]}')
        for r in regs[1:]:
            p += [f'v_cmp_ne_u32 s[{sT3+1}:{sT3+2}], s{sTAG}, {r}'.replace(f's[{sT3+1}:{sT3+2}]', 's[62:63]'), 's_or_b64 vcc, vcc, s[62:63]']
        if mask is not None: p.append(f's_and_b64 vcc, vcc, {mask}')
        p.append(f's_cbranch_vccz {ok}')
        p.append(Mark('raw', [f's_cmp_eq_u32 s{sTO}, 0', f's_cbranch_scc1 {ok}', f's_sub_u32 s{sTO}, s{sTO}, 1'] + load +
                      ['s_waitcnt vmcnt(0)', f's_branch {chk}']))
        p.append(f'{ok}:')
        return G(p)

    def flag_store(self, toks, soff):
        return G(Mark('need', toks), f'v_mov_b32 v{vT}, 0', 's_mov_b64 exec, 1',
                 f'buffer_store_dword v{vTag}, v{vT}, {srd(SWS)}, s{soff} offen sc1', 's_mov_b64 exec, -1')

    def gemm(self, kind, extra=(), late=()):
        st0 = {'z2': 0, 'z1': 5, 'A': 0}[kind]
        def tok(n): return f'H{n}' if kind == 'A' else f'S{st0+n}'
        def xr(ks, hh, s): return a(AX + 16*ks + 8*hh + 4*s, 4)
        def reads(ks):
            n, k = ks >> 1, ks & 1; fr = FR[ks & 1]; out = []
            if kind == 'A':
                pre = [f'v_subrev_u32 v{vRx[k]}, 2048, v{vRx[k]}'] if n == 4 else []
                return pre + [f'ds_read_b128 {v(fr+4*T, 4)}, v{vRx[k]} offset:{H_BASE[n] - (2048 if n < 4 else 0) + T*2048}' for T in range(3)]
            slot = (st0 + n) % 3
            if kind == 'z1' and k == 0: out += [f'v_add_u32 v{vGt}, s{sKX[n]}, v{vGa}', f'v_add_u32 v{vGu}, s{sKX[n]}, v{vGb}']
            for hh in range(2):
                if kind == 'z2':
                    for s in range(2):
                        out.append(f'ds_read_b128 {xr(ks, hh, s)}, v{(vRx, vRp)[hh][k]} offset:{slot*16384 + (s ^ hh)*2048}')
                for pp in range(3):
                    for hf in range(2):
                        out.append(f'ds_read_b64_tr_b16 {v(fr+12*hh+4*pp+2*hf, 2)}, v{(vTe, vTo)[hh]} offset:{slot*24576 + k*6144 + hf*768 + 64*pp}')
                if kind == 'z1':
                    out.append(f'ds_read_b128 {v(fr+24+4*hh, 4)}, v{(vGt, vGu)[hh]} offset:{64*k}')
            return out
        def mf(ks):
            fr = FR[ks & 1]; out = []
            if kind == 'A':
                for T in range(3):
                    for hh in range(2):
                        for s in range(2):
                            out.append(mfma(v(ACC + 24*hh + 8*T + 4*s, 4), xr(ks, hh, s), v(fr+4*T, 4), '0' if ks == 0 else None))
                return out
            Z = Z2 if kind == 'z2' else Z1
            for hh in range(2):
                c = '0' if ks == 0 and hh == 0 else None
                for pp in range(3):
                    for s in range(2):
                        out.append(mfma(v(Z + 8*pp + 4*s, 4), v(fr+12*hh+4*pp, 4), xr(ks, hh, s), c))
                if kind == 'z1': out.append(mfma(v(GACC, 4), v(fr+24+4*hh, 4), xr(ks, hh, 0), c))
            return out
        p = []
        if kind == 'A':
            p += [Mark('need', ['H0', 'H1']), 's_barrier']
        else:
            p += [Mark('need', [tok(0)] + (['X0'] if kind == 'z2' else ['gate'])), 's_barrier']
        if kind == 'z2': p += self.stamp('S0 landed')
        p += reads(0)
        extra = norm(extra); per_blk = -(-len(extra) // 10)
        for ks in range(10):
            n, k = ks >> 1, ks & 1
            if k == 1: p += self.stamp(f'@1{kind} n{n}')
            if k == 1 and kind != 'A':
                if late and n < 4:
                    h = -(-len(late) // 4); p += late[n*h:(n+1)*h]
                p.append(Mark('waitds', None))
                if n < 4: p += [Mark('need', [tok(n+1)])]
                p += ['s_barrier', Mark('free', f'W{st0+n}')]
                if n == 4 and kind == 'z2': p.append(Mark('free', 'Xdead'))
            if kind == 'A' and ks == 3: p += [Mark('need', ['H2', 'H3', 'H4']), 's_barrier']
            fill = reads(ks+1) if ks < 9 else []
            m = mf(ks)
            ex = []
            if kind == 'z1' and ks == self.o['relat']: ex = self.relayout1()
            if kind == 'z1' and ks == self.o['relat'] + 2: ex = self.relayout2()
            if kind == 'z1' and ks == self.o['statat']: ex = ex + self.stat_loads()
            if extra: ex = ex + extra[ks*per_blk:(ks+1)*per_blk]
            p += slot(m, (fill, 0, 2 if len(fill) >= len(m) else 1), (ex, 0, 2))
            if kind == 'A': p.append(Mark('free', f'XA{ks}'))
        return p

    def relayout1(self):
        t0, t1 = TMP, TMP + 1
        return [f'v_bfe_u32 v{t0}, v{vL}, 2, 2', f'v_lshl_add_u32 v{t0}, v{vQ}, 3, v{t0}', f'v_lshlrev_b32 v{t0}, 5, v{t0}',
                f'v_and_b32 v{t1}, 3, v{vL}', f'v_lshl_add_u32 v{t0}, v{t1}, 3, v{t0}',
                f's_add_u32 s{sT1}, s{sLW3}, {L_REL}', f'v_add_u32 v{t0}, s{sT1}, v{t0}', Mark('need', ['rel']),
                f'ds_read_b64_tr_b16 {v(TMP+4, 2)}, v{t0}', f'ds_read_b64_tr_b16 {v(TMP+6, 2)}, v{t0} offset:128']

    def relayout2(self):
        return [I(f'buffer_store_dwordx4 {v(TMP+4, 4)}, v{vLin}, {srd(SWS)}, s{sFC} offen sc1', tok='relst'),
                f's_lshl_b32 s{sT1}, s{sI}, 1', f's_add_u32 s{sT1}, s{sT1}, s{sWH}', f's_lshl_b32 s{sT1}, s{sT1}, 12', f's_add_u32 s{sFC}, s{sT1}, {FLAGC}']

    def gelu(self, z, recv, tmp):
        p = []
        if self.o['pk']:
            for T in range(0, 24, 4):
                if recv is not None:
                    for x in (T, T + 2): p.append(f'v_pk_add_f32 {v(z+x, 2)}, {v(z+x, 2)}, {v(recv+x, 2)}')
                for x in (T, T + 2): p.append(f'v_pk_mul_f32 {v(tmp+x, 2)}, {v(z+x, 2)}, {v(z+x, 2)}')
                for x in (T, T + 2): p.append(f'v_pk_fma_f32 {v(tmp+x, 2)}, {v(tmp+x, 2)}, s[{sC1}:{sC1+1}], {v(vC0, 2)}')
                for x in (T, T + 2): p.append(f'v_pk_mul_f32 {v(tmp+x, 2)}, {v(tmp+x, 2)}, {v(z+x, 2)}')
                for x in range(T, T + 4): p.append(f'v_exp_f32 v{tmp+x}, v{tmp+x}')
                for x in (T, T + 2): p.append(f'v_pk_add_f32 {v(tmp+x, 2)}, {v(tmp+x, 2)}, 1.0 op_sel_hi:[1,0]')
                for x in range(T, T + 4): p.append(f'v_rcp_f32 v{tmp+x}, v{tmp+x}')
                for x in (T, T + 2): p.append(f'v_pk_mul_f32 {v(z+x, 2)}, {v(z+x, 2)}, {v(tmp+x, 2)}')
        else:
            for T in range(0, 24, 4):
                R = range(T, T + 4)
                for x in R: p.append(f'v_add_f32 v{z+x}, v{z+x}, v{recv+x}')
                for x in R: p.append(f'v_mul_f32 v{tmp+x}, v{z+x}, v{z+x}')
                for x in R: p.append(f'v_fma_f32 v{tmp+x}, v{tmp+x}, s{sC1}, v{vC0}')
                for x in R: p.append(f'v_mul_f32 v{tmp+x}, v{tmp+x}, v{z+x}')
                for x in R: p.append(f'v_exp_f32 v{tmp+x}, v{tmp+x}')
                for x in R: p.append(f'v_add_f32 v{tmp+x}, 1.0, v{tmp+x}')
                for x in R: p.append(f'v_rcp_f32 v{tmp+x}, v{tmp+x}')
                for x in R: p.append(f'v_mul_f32 v{z+x}, v{z+x}, v{tmp+x}')
        return p

    def gelu_s(self, z, n, tmp):
        p = []
        for T in range(0, n, 4):
            R = range(4)
            for x in R: p.append(f'v_mul_f32 v{tmp+x}, v{z+T+x}, v{z+T+x}')
            for x in R: p.append(f'v_fma_f32 v{tmp+x}, v{tmp+x}, s{sC1}, v{vC0}')
            for x in R: p.append(f'v_mul_f32 v{tmp+x}, v{tmp+x}, v{z+T+x}')
            for x in R: p.append(f'v_exp_f32 v{tmp+x}, v{tmp+x}')
            for x in R: p.append(f'v_add_f32 v{tmp+x}, 1.0, v{tmp+x}')
            for x in R: p.append(f'v_rcp_f32 v{tmp+x}, v{tmp+x}')
            for x in R: p.append(f'v_mul_f32 v{z+T+x}, v{z+T+x}, v{tmp+x}')
        return p

    def allred_q(self, x, t):
        return [f'v_mov_b32 v{t}, v{x}', f'v_permlane32_swap_b32 v{t}, v{x}', f'v_add_f32 v{x}, v{x}, v{t}',
                f'v_mov_b32 v{t}, v{x}', f'v_permlane16_swap_b32 v{t}, v{x}', f'v_add_f32 v{x}, v{x}, v{t}']

    def stats_publish(self):
        S = [TMP, TMP + 4]
        p = []
        for s in (1, 0):
            sm, sq = S[s], S[s] + 2; z = [Z2 + 8*pp + 4*s + x for pp in range(3) for x in (0, 2)]
            p += [f'v_pk_add_f32 {v(sm, 2)}, {v(z[0], 2)}, {v(z[1], 2)}', f'v_pk_mul_f32 {v(sq, 2)}, {v(z[0], 2)}, {v(z[0], 2)}',
                  f'v_pk_fma_f32 {v(sq, 2)}, {v(z[1], 2)}, {v(z[1], 2)}, {v(sq, 2)}']
            for r in z[2:]:
                p += [f'v_pk_add_f32 {v(sm, 2)}, {v(sm, 2)}, {v(r, 2)}', f'v_pk_fma_f32 {v(sq, 2)}, {v(r, 2)}, {v(r, 2)}, {v(sq, 2)}']
            if s == 1:
                p += [f'v_add_f32 v{sm}, v{sm}, v{sm+1}', f'v_add_f32 v{sm+1}, v{sq}, v{sq+1}', f'ds_write_b64 v{vMx}, {v(sm, 2)}', f'v_xor_b32 v{vMx}, 512, v{vMx}']
            else:
                p += [f'v_add_f32 v{sm}, v{sm}, v{sm+1}', f'v_add_f32 v{sq}, v{sq}, v{sq+1}']
        p += [f's_lshl_b32 s{sT1}, s{sI}, 2', f's_add_u32 s{sT1}, s{sT1}, s{sW}', f's_lshl_b32 s{sT1}, s{sT1}, 11', f's_add_u32 s{sT3}, s{sT1}, {STAT}',
              f's_lshl_b32 s{sT1}, s{sJ}, 8', f's_add_u32 s{sT1}, s{sT1}, s{sT3}', f's_xor_b32 s{sT4}, s{sT3}, 2048']
        s, q = TMP, TMP + 2
        p += [Mark('waitds', None), 's_barrier', f'ds_read_b64 {v(TMP+4, 2)}, v{vMx}', f'v_mov_b32 v{s+1}, s{sTAG}', f'v_mov_b32 v{q+1}, s{sTAG}',
              f'v_add_f32 v{s}, v{s}, v{TMP+4}', f'v_add_f32 v{q}, v{q}, v{TMP+5}']
        r1, r2 = self.allred_q(s, TMP + 4), self.allred_q(q, TMP + 5)
        for x, y in zip(r1, r2): p += [x, y]
        p.append(G('s_mov_b64 exec, 0xffff', f'buffer_store_dwordx4 {v(TMP, 4)}, v{vLin}, {srd(SWS)}, s{sT1} offen sc1', 's_mov_b64 exec, -1'))
        return p

    def clears(self, R=POLL + 4):
        p = []; A = p.append
        for x in range(4): A(f'v_mov_b32 v{R+x}, -1')
        A(f's_mul_i32 s{sT1}, s{sI}, 96'); A(f's_add_u32 s{sT1}, s{sT1}, s{sJ}'); A(f's_lshl_b32 s{sT1}, s{sT1}, 10'); A(f's_add_u32 s{sT1}, s{sT1}, {hx(HBUF + 8192)}')
        A(I(f'buffer_store_dwordx4 {v(R, 4)}, v{vHs}, {srd(SWS)}, s{sT1} offen sc1', tok='clr'))
        A(f's_add_u32 s{sT1}, s{sT1}, 8192')
        A(I(f'buffer_store_dwordx4 {v(R, 4)}, v{vHs}, {srd(SWS)}, s{sT1} offen sc1', tok='clr'))
        return p

    def stat_loads(self):
        return [f'buffer_load_dwordx4 {v(ACC + 8*s + 4*x, 4)}, v{vLin}, {srd(SWS)}, s{(sT3, sT4)[s]} offen offset:{1024*x} sc1' for s in range(2) for x in range(2)]

    def normalize_publish(self):
        t = TMP + 6
        chk = [f'v_xor_b32 v{t}, s{sTAG}, v{ACC+1}']
        T = [ACC + 1 + 2*x for x in range(8)]
        pre = [f'v_min3_u32 v{t}, v{T[0]}, v{T[1]}, v{T[2]}', f'v_max3_u32 v{t+1}, v{T[0]}, v{T[1]}, v{T[2]}',
               f'v_min3_u32 v{t}, v{t}, v{T[3]}, v{T[4]}', f'v_max3_u32 v{t+1}, v{t+1}, v{T[3]}, v{T[4]}',
               f'v_min3_u32 v{t}, v{t}, v{T[5]}, v{T[6]}', f'v_max3_u32 v{t+1}, v{t+1}, v{T[5]}, v{T[6]}',
               f'v_min_u32 v{t}, v{t}, v{T[7]}', f'v_max_u32 v{t+1}, v{t+1}, v{T[7]}']
        p = [self.poll(self.stat_loads(), [f'v{t}', f'v{t+1}'], pre=pre, wait=[f'v{x}' for x in T])]
        p += self.stamp('stats ok')
        inv = hx(f2u(1 / 768))
        R = [TMP, TMP + 2, TMP + 4, TMP + 6]
        for s in range(2):
            p += [f'v_add_f32 v{R[2*s]}, v{ACC+8*s}, v{ACC+8*s+4}', f'v_add_f32 v{R[2*s+1]}, v{ACC+8*s+2}, v{ACC+8*s+6}']
        for x in zip(*[self.allred_q(r, r + 1) for r in R]): p += list(x)
        for op in range(7):
            for s in range(2):
                m, q = R[2*s], R[2*s+1]
                p.append([f'v_mul_f32 v{m}, {inv}, v{m}', f'v_mul_f32 v{q}, {inv}, v{q}', f'v_fma_f32 v{q}, -v{m}, v{m}, v{q}', f'v_max_f32 v{q}, 0, v{q}',
                          f'v_add_f32 v{q}, {hx(f2u(1e-5))}, v{q}', f'v_rsq_f32 v{q}, v{q}', f'v_mul_f32 v{m}, -v{m}, v{q}'][op])
        p += [f's_mul_i32 s{sT1}, s{sJ}, {12*32768}', f's_add_u32 s{sT1}, s{sT1}, {hx(Z2B)}']
        for pp in range(3):
            b = Z2 + 8*pp; d = FR[1] + 4*pp
            for x in range(0, 8, 2):
                s = x >> 2
                p.append(f'v_pk_fma_f32 {v(b+x, 2)}, {v(b+x, 2)}, {v(R[2*s+1], 2)}, {v(R[2*s], 2)} op_sel_hi:[1,0,0]')
            for x in range(4): p.append(f'v_cvt_pk_bf16_f32 v{d+x}, v{b+2*x}, v{b+2*x+1}')
            p += [f'v_permlane16_swap_b32 v{d}, v{d+2}', f'v_permlane16_swap_b32 v{d+1}, v{d+3}']
            p.append(I(f'buffer_store_dwordx4 {v(d, 4)}, v{vZs}, {srd(SWS)}, s{sT1} offen sc1', tok='z2st'))
            if pp < 2: p.append(f's_add_u32 s{sT1}, s{sT1}, 131072')
        return p

    def flagB_addr(self):
        return [f's_lshl_b32 s{sT3}, s{sJ}, 2', f's_add_u32 s{sT3}, s{sT3}, s{sW}', f's_lshl_b32 s{sT3}, s{sT3}, 10', f's_add_u32 s{sT3}, s{sT3}, {FLAGB}',
                f's_lshl_b32 s{sT1}, s{sI}, 5', f's_add_u32 s{sFB}, s{sT1}, s{sT3}']

    def gate(self):
        return [f'v_mul_f32 v{vGate}, {hx(f2u(-math.log2(math.e)))}, v{GACC}', f'v_exp_f32 v{vGate}, v{vGate}',
                f'v_add_f32 v{vGate}, 1.0, v{vGate}', f'v_rcp_f32 v{vGate}, v{vGate}']

    def stepB_pre(self):
        t0, t1, t2 = TMP, TMP + 1, TMP + 2
        ad = []
        A = ad.append
        A(f'v_and_b32 v{t0}, 1, v{vQ}'); A(f'v_xor_b32 v{t0}, s{sW}, v{t0}'); A(f'v_lshrrev_b32 v{t1}, 1, v{vQ}'); A(f'v_lshl_add_u32 v{t0}, v{t0}, 1, v{t1}')
        A(f'v_lshrrev_b32 v{t1}, 1, v{vC}'); A(f'v_xor_b32 v{t0}, v{t0}, v{t1}'); A(f'v_lshlrev_b32 v{t0}, 4, v{t0}')
        A(f'v_lshl_add_u32 v{t0}, v{vC}, 7, v{t0}'); A(f's_mul_i32 s{sT1}, s{sKH}, 6144'); A(f'v_add_u32 v{vGa}, s{sT1}, v{t0}')
        cos, sin, nsin, ncos = self.cvar()
        for x in range(4):
            A(f'v_xor_b32 v{cos[1]+x}, v{vSgn}, v{cos[0]+x}'); A(f'v_xor_b32 v{sin[1]+x}, v{vSgn}, v{sin[0]+x}')
            A(f'v_xor_b32 v{nsin[0]+x}, 0x80008000, v{sin[0]+x}'); A(f'v_xor_b32 v{ncos[0]+x}, 0x80008000, v{cos[0]+x}')
        for x in range(4): A(f'v_xor_b32 v{nsin[1]+x}, 0x80008000, v{sin[1]+x}'); A(f'v_xor_b32 v{ncos[1]+x}, 0x80008000, v{cos[1]+x}')
        sw, sw2 = vTe, vZ[6]
        A(f's_mul_i32 s{sT4}, s{sW}, 5248'); A(f's_add_u32 s{sT4}, s{sT4}, {LC}')
        A(f'v_and_b32 v{t0}, 7, v{vC}'); A(f'v_mul_u32_u24 v{t0}, 656, v{t0}'); A(f'v_lshrrev_b32 v{t1}, 3, v{vC}'); A(f'v_mul_u32_u24 v{t1}, 160, v{t1}')
        A(f'v_lshl_add_u32 v{t0}, v{vQ}, 4, v{t0}'); A(f'v_add3_u32 v{sw}, s{sT4}, v{t0}, v{t1}')
        A(f'v_lshrrev_b32 v{t1}, 1, v{vQ}'); A(f'v_mul_u32_u24 v{t1}, 160, v{t1}'); A(f'v_add_u32 v{sw2}, v{sw}, v{t1}')
        go, sr = self.t1regs()
        for n in range(5):
            A(f'v_add_u32 v{t0}, {64*n}, v{vL}'); A(f'v_mul_u32_u24 v{t1}, 1639, v{t0}'); A(f'v_lshrrev_b32 v{t1}, 16, v{t1}')
            A(f'v_add_u32 v{t2}, v{t1}, v{vL}'); A(f'v_lshl_add_u32 v{sr[n]}, v{t2}, 4, s{sT4}')
        A(f's_mul_i32 s{sT1}, s{sW}, {8*163840}'); A(f's_mul_i32 s{sT2}, s{sI}, 320'); A(f's_add_u32 s{sT1}, s{sT1}, s{sT2}')
        A(f's_mul_i32 s{sT2}, s{sJ}, 10240'); A(f's_add_u32 s{sT1}, s{sT1}, s{sT2}'); A(f's_add_u32 s{sT4}, s{sT1}, {hx(T1B)}')
        A(f'v_and_b32 v{vGt}, 31, v{vL}'); A(f'v_lshlrev_b32 v{vGt}, 5, v{vGt}')
        return ad

    def t1regs(self):
        return vGo, [vRp[0], vRp[1], vGb, vGu, vMx]

    def cvar(self):
        return [CB, FR[0] + 16], [CB + 4, FR[0] + 20], [FR[0] + 24, FR[0] + 28], [FR[1] + 16, FR[1] + 20]

    def stepB(self, pollB):
        sw = vTe
        go, sr = self.t1regs()
        cos, sin, nsin, ncos = self.cvar()
        p = []
        for T in range(3):
            b = ACC + 8*T; d = Z2 + 4*T
            for x in range(0, 8, 2): p.append(f'v_pk_mul_f32 {v(b+x, 2)}, {v(b+x, 2)}, {v(vAl-1, 2)} op_sel:[0,1] op_sel_hi:[1,1]')
            for x in range(0, 8, 2): p.append(f'v_pk_fma_f32 {v(b+x, 2)}, {v(b+24+x, 2)}, {v(vBe, 2)}, {v(b+x, 2)} op_sel_hi:[1,0,1]')
            for x in range(4): p.append(f'v_cvt_pk_bf16_f32 v{d+x}, v{b+2*x}, v{b+2*x+1}')
            p += [f'v_permlane16_swap_b32 v{d}, v{d+2}', f'v_permlane16_swap_b32 v{d+1}, v{d+3}', f'ds_write_b128 v{vGa}, {v(d, 4)} offset:{L_ZT + T*2048}']
        p += self.stamp('@B ztw') + [pollB, Mark('waitds', None), 's_barrier', Mark('free', 'flagB0')] + self.stamp('@B bar')
        def rd(t):
            fr = FR[t & 1]; out = []
            for k in range(2):
                if t < 2: ar, o = vRb[k], L_ZT + t*2048
                elif t == 2: ar, o = vZ[2+k], L_ZT
                else: ar, o = vZ[4+k], L_ZT + (4-t)*2048
                out += [f'ds_read_b128 {v(fr+8*k, 4)}, v{ar} offset:{o}', f'ds_read_b128 {v(fr+8*k+4, 4)}, v{ar} offset:{o + 48*128}']
            return out
        def mf(t):
            fr = FR[t & 1]; re, im = v(ACC+8*t, 4), v(ACC+8*t+4, 4); out = []
            for k in range(2):
                zr, zi = v(fr+8*k, 4), v(fr+8*k+4, 4)
                out += [mfma(re, zr, v(cos[k], 4), '0' if k == 0 else None), mfma(im, zr, v(nsin[k], 4), '0' if k == 0 else None)]
            for k in range(2):
                zr, zi = v(fr+8*k, 4), v(fr+8*k+4, 4)
                out += [mfma(re, zi, v((sin if t < 3 else nsin)[k], 4)), mfma(im, zi, v((cos if t < 3 else ncos)[k], 4))]
            return out
        def pack(t):
            b = ACC + 8*t; d = Z2 + 4*t
            return [f'v_cvt_pk_bf16_f32 v{d+x}, v{b+2*x}, v{b+2*x+1}' for x in range(4)] + \
                   [f'ds_write_b128 v{vZ[6] if t == 2 else sw}, {v(d, 4)} offset:{64*t + (160 if t > 2 else 0)}']
        p += rd(0)
        for t in range(5):
            m = mf(t)
            if t == 2:
                flip = [f'v_xor_b32 v{FR[0]+8*k+4+x}, v{vZ[7]}, v{FR[0]+8*k+4+x}' for k in range(2) for x in range(4)]
                p += slot(m[:4], (flip, 0, 2), keep=0) + slot(m[4:], (rd(3), 0, 1), (pack(1), 0, 2), keep=0)
            else:
                p += slot(m, (rd(t+1) if t < 4 else [], 0, 1), (pack(t-1) if t else [], 3, 2))
        p += self.stamp('@B mf') + pack(4)
        p.append(Mark('waitds', None))
        for n in range(5): p.append(f'ds_read_b128 {v(Z2+4*n, 4)}, v{sr[n]} offset:{1024*n}')
        return p

    def t1_store(self):
        go, sr = self.t1regs()
        return [I(f'buffer_store_dwordx4 {v(Z2+4*n, 4)}, v{go[n]}, {srd(SWS)}, s{sT4} offen sc1', tok='t1st') for n in range(5 - int(self.o['not1']))]

    def z_addr(self):
        t0, t1, t2 = TMP, TMP + 1, TMP + 2
        p = [f'v_bfe_u32 v{t2}, v{vL}, 2, 2', f'v_lshl_add_u32 v{t0}, v{vQ}, 3, v{t2}', f'v_lshlrev_b32 v{t0}, 8, v{t0}',
             f'v_and_b32 v{t1}, 1, v{vQ}', f'v_lshl_add_u32 v{t0}, v{t1}, 7, v{t0}',
             f'v_bfe_u32 v{t1}, v{vL}, 1, 1', f'v_lshl_add_u32 v{t0}, v{t1}, 6, v{t0}',
             f'v_lshl_add_u32 v{t0}, v{t2}, 4, v{t0}', f'v_and_b32 v{t1}, 1, v{vL}', f'v_lshl_add_u32 v{t0}, v{t1}, 3, v{t0}',
             f's_bfe_u32 s{sT1}, s{sMK}, 0x20001', f's_lshl_b32 s{sT1}, s{sT1}, 4', f's_lshl_b32 s{sT2}, s{sKH}, 7', f's_or_b32 s{sT1}, s{sT1}, s{sT2}', f'v_xor_b32 v{t0}, s{sT1}, v{t0}',
             f'v_add_u32 v{vZ[0]}, s{sLZ}, v{t0}']
        for n in range(1, 8):
            T, c = n >> 2, n & 3
            p.append(f'v_xor_b32 v{vZ[n]}, {T*128 + c*16}, v{vZ[0]}')
        return p

    def phase2(self):
        RECV = Z2
        def reads(sg):
            fr = FR[sg & 1]; slot = sg % 3; out = [Mark('need', [f'Z{sg}'])]
            if sg in (2, 4, 6, 8, 10) and self.o['mc2'] != 3:
                out = [f'v_xor_b32 v{vZ[n]}, s{sDZ}, v{vZ[n]}' for n in range(8)] + out
            for c in range(4):
                for T in range(2):
                    for hf in range(2):
                        out.append(f'ds_read_b64_tr_b16 {v(fr + 8*c + 4*T + 2*hf, 2)}, v{vZ[4*T+c]} offset:{slot*8192 + hf*1024}')
            return out
        def acc(pp, T, u): return ACC + 32*(pp & 1) + 4*(4*T + u)
        def mf(sg):
            pp, ga, pi = sg >> 2, (sg >> 1) & 1, sg & 1; fr = FR[sg & 1]; out = []
            for c in range(4):
                kp = 4*ga + c
                for T, u in ([(T, u) for u in range(4) for T in range(2)] if self.o['uout'] else [(T, u) for T in range(2) for u in range(4)]):
                    if True:
                        out.append(mfma(v(acc(pp, T, u), 4), v(fr + 8*c + 4*T, 4), a(32*kp + 8*u + 4*pi, 4),
                                        (v(BQ + 4*u, 4) if T == 0 and u < 2 else '0') if (sg & 3) == 0 and c == 0 else None))
            return out
        def red_write(pp):
            return [I(f'ds_write_b128 v{vRd[(u & 2) + T - 1]}, {v(acc(pp, T, u), 4)} offset:{((u & 1) ^ T)*1024}', tok=f'rw{pp}') for T in range(2) for u in range(4) if (u & 2) + T and not (self.o['halfred'] and pp < 2 and u & 1)]
        def red_read():
            return [f'ds_read_b128 {v(RECV + 8*y + 4*T, 4)}, v{vExR} offset:{y*2048 + T*1024}' for y in range(3) for T in range(2)]
        def epi(pp, pk=False):
            own = acc(pp, 0, 0); out = []
            if pk:
                for y in range(3):
                    for x in range(0, 8, 2): out.append(f'v_pk_add_f32 {v(own+x, 2)}, {v(own+x, 2)}, {v(RECV+8*y+x, 2)}')
                for x in range(0, 8, 2): out.append(f'v_pk_mul_f32 {v(own+x, 2)}, {v(own+x, 2)}, {v(Z1+8*pp+x, 2)}')
            else:
                for y in range(3):
                    for x in range(8): out.append(f'v_add_f32 v{own+x}, v{own+x}, v{RECV+8*y+x}')
                for x in range(8): out.append(f'v_mul_f32 v{own+x}, v{own+x}, v{Z1+8*pp+x}')
            for x in range(4): out.append(f'v_cvt_pk_bf16_f32 v{TMP+4+x}, v{own+2*x}, v{own+2*x+1}')
            if pp:
                for x in range(4): out.append(f'v_min_u32 v{TMP+4+x}, -2, v{TMP+4+x}')
            out += [f'v_permlane16_swap_b32 v{TMP+4}, v{TMP+6}', f'v_permlane16_swap_b32 v{TMP+5}, v{TMP+7}']
            out.append(I(f'buffer_store_dwordx4 {v(TMP+4, 4)}, v{vHs}, {srd(SWS)}, s{sT1} offen sc1', tok=f'hst{pp}'))
            return out
        def haddr(pp):
            return [f's_mul_i32 s{sT1}, s{sI}, 96', f's_add_u32 s{sT1}, s{sT1}, s{sJ}', f's_lshl_b32 s{sT1}, s{sT1}, 10', f's_add_u32 s{sT1}, s{sT1}, {hx(HBUF + pp*8192)}']
        def clear():
            return [f'v_mov_b32 v{POLL+4+x}, -1' for x in range(4)] + haddr(2) + \
                   [I(f'buffer_store_dwordx4 {v(POLL+4, 4)}, v{vHs}, {srd(SWS)}, s{sT1} offen sc1', tok='hst0')]
        def flagc(pp):
            return [f's_lshl_b32 s{sT1}, s{sKH}, 3', f's_add_u32 s{sT1}, s{sT1}, s{sJ}', f's_lshl_b32 s{sT1}, s{sT1}, 7', f's_add_u32 s{sT1}, s{sT1}, {pp*2048}', f's_add_u32 s{sT1}, s{sT1}, s{sFC}', self.flag_store([f'hst{pp}', 'clr'], sT1)]
        p = []
        t1s = self.t1_store(); pre3 = self.p3_pre()
        p += [x for x, at in zip(t1s, self.o['t1at']) if at < 0]
        p += reads(0)
        for sg in range(12):
            pp = sg >> 2
            p += [Mark('waitds', None), Mark('free', f'Zf{sg}')] + self.stamp(f'@2 blk{sg}')
            m = mf(sg)
            if sg == 11 and self.o['lastord']:
                own = {v(acc(2, 0, 0), 4), v(acc(2, 0, 1), 4)}
                dst = lambda x: x.split()[1].rstrip(',')
                order = [v(acc(2, T, u), 4) for T in range(2) for u in range(4) if (u & 2) + T]
                head = [x for x in m[:16] if dst(x) not in own]
                rest = [x for x in m[16:] if dst(x) not in own]
                rest.sort(key=lambda x: order.index(dst(x)))
                m = head + rest + [x for x in m if dst(x) in own]
            rd = reads(sg+1) if sg < 11 else []
            if sg in (4, 8):
                w = red_write(pp-1)
                st = [x for x, at in zip(t1s, self.o['t1at']) if at == sg]
                w = [x for pair in zip(w, st + [None]*6) for x in pair if x is not None]
                blk = m[:2] + sprinkle(m[2:17], w) + slot(m[17:20], (rd[:4], 0, 1))
                blk += [Mark('waitds', [f'rw{pp-1}']), 's_barrier']
                blk += slot(m[20:], (red_read() + rd[4:], 0, 2))
                pass
            elif sg in (5, 9):
                e = haddr(pp-1) + epi(pp-1)
                blk = slot(m, (rd, 12, 1), (e[:self.o['esplit']], 0, 2))
                carry = e[self.o['esplit']:]
                if sg == 9: blk = blk[:10] + self.ldC(0) + blk[10:]
            else:
                ex = []
                if sg in (6, 10): ex = carry
                if self.o['gshadow'] and sg in (0, 1, 2, 3, 6, 10): ex = ex + self.gelu_s(Z1 + 4*(0, 1, 2, 3, 6, 10).index(sg), 4, POLL + 4)
                if sg == 7: ex = pre3[:len(pre3)//2]
                if sg == 11: ex = pre3[len(pre3)//2:]
                blk = slot(m, (rd, self.o['rdat'], 1), (ex, 0, 2))
                if sg < 4:
                    st = [x for x, at in zip(t1s, self.o['t1at']) if at == sg]
                    if sg == self.o['clrat']: st = [G(self.clears(TMP + 4))] + st
                    blk = sprinkle(blk, [G(x) if isinstance(x, list) else x for x in st])
                if sg == 7: blk = blk + [self.flag_store(['t1st'], sFB)]
                if sg == 6: blk = blk + flagc(pp-1) + ([G(self.codepf(2))] if self.o['codepf2'] else [])
                if sg == 10: blk = blk[:12] + [self.poll(self.ldC(0), [f'v{POLL}']), Mark('free', 'flagC0')] + blk[12:30] + self.ldT() + blk[30:]
                if sg == 11 and self.o['lastord']:
                    w = red_write(2)
                    blk = slot(m[:18], (ex, 0, 2)) + sprinkle(m[18:], [[]] + w) if False else slot(m[:18], (ex, 0, 2)) + [x for k in range(14) for x in [m[18+k]] + ([w[k//2]] if k % 2 == 1 and k//2 < 6 else [])]
                if sg in (7, 11): blk = blk[:4] + ['s_barrier'] + blk[4:]
            for pos in sorted(self.o['xbar'].get(sg, ()), reverse=True):
                idx = [n for n, x in enumerate(norm(blk)) if isinstance(x, Ins) and x.kind == 'mfma'][pos]
                blk = norm(blk); blk = blk[:idx] + [Ins('s_barrier')] + blk[idx:]
            p += blk
        p += self.stamp('p2 mfma done')
        e = epi(2, True)
        p += [Mark('free', 'flagC1')] + ([] if self.o['lastord'] else red_write(2)) + haddr(2) + [self.poll(self.ldT(), [f'v{POLL+1}']), Mark('free', 'flagT'), Mark('waitds', None), 's_barrier'] + red_read() + e[:-1] + [Mark('flush', 'h1'), e[-1]]
        p += self.stamp('h2 stored')
        return p

    def ldC(self, pp):
        return [f'buffer_load_dword v{POLL}, v{vS[0]}, {srd(SWS)}, s{sFC} offen offset:{pp*2048} sc1']

    def ldT(self):
        return [f'buffer_load_dword v{POLL+1}, v{vS[1]}, {srd(SWS)}, s{sT3} offen sc1']

    def poll_addr(self):
        return [f'v_lshlrev_b32 v{vS[0]}, 7, v{vC}']

    def p3_pre(self):
        t0, t1, t2 = TMP, TMP + 1, TMP + 2
        p = [f's_sub_u32 s{sT2}, 7, s{sJ}', f's_min_u32 s{sT2}, s{sT2}, s{sJ}', f's_lshl_b32 s{sT2}, s{sT2}, 1', f's_and_b32 s{sT3}, s{sI}, 24',
             f's_add_u32 s{sT3}, s{sT3}, s{sT2}', f's_lshl_b32 s{sT3}, s{sT3}, 10', f's_add_u32 s{sT3}, s{sT3}, {FLAGT}']
        p += [f'v_add_u32 v{vX[1]}, 65536, v{vLin}', f'v_add_u32 v{vW[0]}, 131072, v{vLin}']
        p += [f'v_lshrrev_b32 v{t0}, 1, v{vQ}', f'v_bfe_u32 v{t1}, v{vL}, 2, 2', f'v_lshl_add_u32 v{t0}, v{t0}, 3, v{t1}', f'v_mul_u32_u24 v{t0}, 320, v{t0}',
              f'v_and_b32 v{t1}, 3, v{vL}', f'v_lshl_add_u32 v{t0}, v{t1}, 4, v{t0}', f'v_and_b32 v{t1}, 1, v{vQ}', f'v_lshl_add_u32 v{t0}, v{t1}, 3, v{t0}',
              f's_mul_i32 s{sT2}, s{sKH}, 160', f's_add_u32 s{sT2}, s{sT2}, {LC}', f'v_add_u32 v{vW[1]}, s{sT2}, v{t0}',
              f'v_bfe_u32 v{t1}, v{vL}, 1, 1', f'v_mul_u32_u24 v{t1}, {10240-160}, v{t1}', f'v_add_u32 v{vW[2]}, v{vW[1]}, v{t1}']
        sw, sr = vGa, vGt
        go = [vH[0], vH[1], vH[2]]
        p += [f's_mul_i32 s{sT2}, s{sW}, 2560', f's_add_u32 s{sT2}, s{sT2}, {L_W0}', f'v_add_u32 v{sr}, s{sT2}, v{vLin}',
              f'v_mul_u32_u24 v{t0}, 160, v{vC}', f'v_lshl_add_u32 v{t0}, v{vQ}, 3, v{t0}', f'v_add_u32 v{sw}, s{sT2}, v{t0}', f's_mov_b32 s{sT2}, 81920']
        for n in range(3):
            p += [f'v_add_u32 v{t0}, {64*n}, v{vL}', f'v_mul_u32_u24 v{t1}, 6554, v{t0}', f'v_lshrrev_b32 v{t1}, 16, v{t1}',
                  f'v_mul_u32_u24 v{t2}, 10, v{t1}', f'v_sub_u32 v{t0}, v{t0}, v{t2}', f'v_lshlrev_b32 v{t0}, 4, v{t0}', f'v_mad_u32_u24 v{go[n]}, v{t1}, s{sT2}, v{t0}']
        p += [f's_lshl_b32 s{sT4}, s{sWH}, 5', f's_add_u32 s{sT4}, s{sT4}, s{sKH}', f's_lshl_b32 s{sT4}, s{sT4}, 5', f's_add_u32 s{sT4}, s{sT4}, s{sI}',
              f's_mul_i32 s{sT4}, s{sT4}, 1280', f's_mul_i32 s{sT2}, s{sJ}, 160', f's_add_u32 s{sT4}, s{sT4}, s{sT2}']
        return p

    def phase3(self):
        accB, accA, accC = ACC, ACC + 20, ACC + 40
        o = self.o
        lo, hi, hi2, ta = vLin, vX[1], vW[0], vW[1]
        sw, sr = vGa, vGt
        go = [vH[0], vH[1], vH[2]]
        WR, TR_, PR = 64, 144, FR[0]
        def wreg(kk, t): return a(WR + 20*(kk & 3) + 4*t, 4)
        def rd(kk):
            out = []
            if kk > 23: return out
            for t in range(5):
                la = self.l_w(kk*5 + t)
                out.append(f'ds_read_b128 {wreg(kk, t)}, v{(lo, hi, hi2)[la >> 16]} offset:{la & 65535}')
            return out
        def ready(kk): return Mark('waitregs', [x for t in range(5) for x in regs_of(wreg(kk, t))])
        def mf(kk):
            d = accB if kk < 16 else accC
            return [mfma(v(d + 4*t, 4), wreg(kk, t), self.hreg(kk), '0' if kk in (0, 16) else None) for t in range(5)]
        p = [Mark('need', ['O0', 'O1', 'h0']), Mark('waitds', None), 's_barrier', Mark('free', 'Cfree')]
        p += self.stamp('O01 ok')
        p += rd(0) + rd(1)
        p.append(f'v_sub_f32 v{vBias}, 1.0, v{vGate}')
        mx = TMP
        def reload(n):
            rl = []
            for k in range(8):
                if k % 4 == 0: rl.append(f's_add_u32 s{sT2}, s{sHB}, {(8*n+k)*1024}')
                rl.append(f'buffer_load_dwordx4 {self.hreg(8*n+k)}, v{vLin}, {srd(SWS)}, s{sT2} offen offset:{(k%4)*1024} sc1')
            return rl
        def maxes(kk, first):
            r = regs_of(self.hreg(kk))
            return [f'v_max3_u32 v{mx}, {r[0]}, {r[1]}, {r[2]}' if first else f'v_max3_u32 v{mx}, v{mx}, {r[0]}, {r[1]}',
                    f'v_max_u32 v{mx}, v{mx}, {r[3]}' if first else f'v_max3_u32 v{mx}, v{mx}, {r[2]}, {r[3]}']
        allmax = [x for kk in range(8, 16) for x in maxes(kk, kk == 8)]
        trd = [f'ds_read_b64_tr_b16 {a(TR_ + 20*k + 4*t + 2*hf, 2)}, v{vW[2] if t == 2 else ta} offset:{k*5120 + hf*1280 + t*64 + (10240-160 if t > 2 else 0)}'
               for k in range(2) for t in range(5) for hf in range(2)]
        b2 = o['bar2at']; nt = -(-20 // (16 - b2))
        for kk in range(16):
            if kk % 2 == 0: p += self.stamp(f'@3 kk{kk}')
            if kk == 8:
                c1, o1 = self.lab('chk'), self.lab('ok')
                p.append(G(f'{c1}:', f'v_cmp_eq_u32 vcc, -1, v{mx}', f's_cbranch_vccz {o1}',
                           Mark('raw', [f's_cmp_eq_u32 s{sTO}, 0', f's_cbranch_scc1 {o1}', f's_sub_u32 s{sTO}, s{sTO}, 1'] + reload(1) + ['s_waitcnt vmcnt(0)'] + allmax + [f's_branch {c1}']),
                           f'{o1}:'))
            if kk == b2: p += [Mark('need', ['O2', 'T']), 's_barrier'] + self.stamp('@3 O2,T')
            if kk == o['h2at']: p.append(Mark('free', 'flagC2'))
            ex = allmax[4*(kk-4):4*(kk-3)] if 4 <= kk < 8 else []
            if kk >= b2: ex = trd[nt*(kk-b2):nt*(kk-b2+1)]
            p += [ready(kk)] + slot(mf(kk), (rd(kk+2), 0, 1), (ex, 0, 1), keep=0)
        p += self.stamp('@3 k16')
        p += [Mark('free', 'flagC2'), Mark('waitds', None)]
        mA = [mfma(v(accA + 4*t, 4), a(TR_ + 20*k + 4*t, 4), v(CF + 4*k, 4), '0' if k == 0 else None) for k in range(2) for t in range(5)]
        p += slot(mA, ([f'v_mul_f32 v{PR+x}, v{vBias}, v{accB+x}' for x in range(20)], 2, 2), keep=0)
        p.append(Mark('flush', 'h2'))
        p += self.stamp('@3 prepoll')
        again, retry, done = self.lab('again'), self.lab('retry'), self.lab('done')
        fin = [f'v_fma_f32 v{FR[1]+x}, v{vGate}, v{accA+x}, v{PR+x}' for x in range(20)]
        q = [f'{again}:']
        for kk in range(16, 24):
            ex = fin[3*(kk-16):3*(kk-15)] + maxes(kk, kk == 16)
            if o['chkmid'] and kk == 20: q += [f'v_cmp_eq_u32 vcc, -1, v{mx}', f's_cbranch_vccnz {retry}']
            q += [ready(kk)] + slot(mf(kk), (rd(kk+2), 0, 1), (ex, 0, 1 if kk < 22 else 2), keep=0)
        q += [f'v_cmp_eq_u32 vcc, -1, v{mx}', f's_cbranch_vccz {done}']
        allmax2 = [x for kk in range(16, 24) for x in maxes(kk, kk == 16)]
        q.append(Mark('raw', [f'{retry}:', 's_waitcnt vmcnt(0) lgkmcnt(0)', 's_nop 7', f's_cmp_eq_u32 s{sTO}, 0', f's_cbranch_scc1 {done}', f's_sub_u32 s{sTO}, s{sTO}, 1'] + reload(2) +
                      ['s_waitcnt vmcnt(0)'] + allmax2 + [f'v_cmp_eq_u32 vcc, -1, v{mx}', 's_nop 0', f's_cbranch_vccnz {retry}'] + rd(16) + rd(17) +
                      ['s_waitcnt lgkmcnt(0)', f's_branch {again}', f'{done}:', 's_nop 5']))
        p.append(G(q))
        p += self.stamp('h2 mfma done')
        for t in range(5):
            for x in (0, 2): p.append(f'v_pk_fma_f32 {v(accB+4*t+x, 2)}, {v(accC+4*t+x, 2)}, {v(vBias, 2)}, {v(FR[1]+4*t+x, 2)} op_sel_hi:[1,0,1]')
            p += [f'v_cvt_pk_bf16_f32 v{FR[0]+2*t}, v{accB+4*t}, v{accB+4*t+1}', f'v_cvt_pk_bf16_f32 v{FR[0]+2*t+1}, v{accB+4*t+2}, v{accB+4*t+3}',
                  f'ds_write_b64 v{sw}, {v(FR[0]+2*t, 2)} offset:{32*t}']
        p.append(Mark('waitds', None))
        for n in range(3): p.append(f'ds_read_b128 {v(FR[1]+4*n, 4)}, v{sr} offset:{1024*n}')
        for n in range(2): p.append(f'buffer_store_dwordx4 {v(FR[1]+4*n, 4)}, v{go[n]}, {srd(SOUT)}, s{sT4} offen{o["outfl"]}')
        p.append(G('s_mov_b32 exec_hi, 0', f'buffer_store_dwordx4 {v(FR[1]+8, 4)}, v{go[2]}, {srd(SOUT)}, s{sT4} offen{o["outfl"]}', 's_mov_b64 exec, -1'))
        return p

    def dump(self, name, reg, n):
        if self.o['dbg'] != name: return []
        p = [f's_lshl_b32 s{sT1}, s{sI}, 3', f's_add_u32 s{sT1}, s{sT1}, s{sJ}', f's_lshl_b32 s{sT1}, s{sT1}, 2', f's_add_u32 s{sT1}, s{sT1}, s{sW}',
             f's_mul_i32 s{sT1}, s{sT1}, {n*256}', f's_add_u32 s{sT1}, s{sT1}, {hx(DBGB)}']
        for x in range(0, n, 4):
            p += [f'buffer_store_dwordx4 {v(reg+x, 4)}, v{vLin}, {srd(SWS)}, s{sT1} offen', f's_add_u32 s{sT1}, s{sT1}, 1024']
        return [G(p)]

    def build(self):
        o = self.o
        c = []
        c += self.setup1()
        su = norm(self.setup2() + self.tag())
        c += su[:o['pre']]
        c += self.gemm('z2', late=su[o['pre']:])
        c += self.stamp('z2 gemm done')
        c += self.gelu(Z2, None, ACC)
        c += self.dump('z2', Z2, 24)
        c += self.stats_publish()
        c += self.stamp('stats published')
        if o['clrat'] == -1: c += self.clears()
        if o['cp3']: c.append(G(self.codepf(3, o['cp3'])))
        c += self.gemm('z1')
        c += self.stamp('z1 gemm done')
        c += self.normalize_publish()
        if o['cp4']: c.append(G(self.codepf(4, o['cp4'])))
        c += self.dump('z2n', Z2, 24)
        c += [f's_mul_i32 s{sT1}, s{sKH}, 6144', f's_add_u32 s{sT1}, s{sT1}, 2048'] + [f'v_add_u32 v{vRx[k]}, s{sT1}, v{vRb[k]}' for k in range(2)]
        c += self.flagB_addr()
        c += self.gate()
        gA = self.gemm('A', self.stepB_pre())
        c += gA[:o['fbat']] + [self.flag_store(['z2st', 'relst'], sFB)] + self.stamp('flagB stored') + gA[o['fbat']:]
        c += self.stamp('stepA done')
        c += [G(self.codepf(1))] if o['codepf2'] else []
        ldB = [f'buffer_load_dword v{POLL}, v{vGt}, {srd(SWS)}, s{sT3} offen sc1']
        c += [f's_mul_i32 s{sLZ}, s{sW}, 24576'] + ldB + self.stepB(self.poll(ldB, [f'v{POLL}']))
        c += self.stamp('T1 stored')
        c += self.z_addr()
        c += [f's_lshl_b32 s{sT1}, s{sW}, 3', f's_add_u32 s{sT1}, s{sT1}, s{sJ}', f's_lshl_b32 s{sT1}, s{sT1}, 5', f's_add_u32 s{sT1}, s{sT1}, s{sI}',
              f's_lshl_b32 s{sT1}, s{sT1}, 5', f's_add_u32 s{sFB}, s{sT1}, {FLAGT}']
        c.append(Mark('flush', 'Pc31'))
        c += [Mark('waitds', None), 's_barrier', Mark('free', 'flagB')]
        c += self.stamp('flagB ok')
        c += [f'v_mov_b32 v{BQ+x}, v{vBias if x < 4 else vBias1}' for x in range(8)] + self.poll_addr() + [f'v_lshlrev_b32 v{vS[1]}, 5, v{vL}']
        if not o['gshadow']: c += self.gelu(Z1, None, ACC + 32)
        c += self.dump('z1', Z1, 24)
        c += self.stamp('z1 gelu done')
        c += self.phase2()
        c += self.phase3()
        e = self.lab('ep')
        c.append(G(f's_or_b32 s{sT1}, s{sI}, s{sJ}', f's_or_b32 s{sT1}, s{sT1}, s{sW}', f's_cmp_eq_u32 s{sT1}, 0', f's_cbranch_scc0 {e}',
                   Mark('raw', [f'v_mov_b32 v{vT}, 0', 's_mov_b64 exec, 1', f'buffer_store_dword v{vTag}, v{vT}, {srd(SWS)}, 0 offen sc1', 's_mov_b64 exec, -1']), f'{e}:'))
        if o['stamps']:
            c += [G('s_waitcnt vmcnt(0)')] + self.stamp('end')
            st = [f's_lshl_b32 s{sT1}, s{sI}, 3', f's_add_u32 s{sT1}, s{sT1}, s{sJ}', f's_lshl_b32 s{sT1}, s{sT1}, 2', f's_add_u32 s{sT1}, s{sT1}, s{sW}',
                  f's_lshl_b32 s{sT1}, s{sT1}, 7', f's_add_u32 s{sT1}, s{sT1}, {hx(STAMP)}', f'v_mov_b32 v{vT}, 0', 's_mov_b64 exec, 1']
            for n in range(0, 20, 4):
                for x in range(4): st.append(f'v_mov_b32 v{TMP+x}, s{STAMP0+n+x}' if n + x < self.nstamp else f'v_mov_b32 v{TMP+x}, 0')
                st += [f'buffer_store_dwordx4 {v(TMP, 4)}, v{vT}, {srd(SWS)}, s{sT1} offen offset:{4*n}', 's_nop 1']
            c.append(G(st))
        if o['dbgst']:
            e = self.lab('dbg')
            st = ['s_mov_b64 exec, -1', f's_or_b32 s{sT1}, s{sI}, s{sJ}', f's_or_b32 s{sT1}, s{sT1}, s{sW}', f's_cmp_eq_u32 s{sT1}, 0', f's_cbranch_scc0 {e}',
                  f's_load_dwordx2 s[{SGATE}:{SGATE+1}], s[0:1], 96', 's_waitcnt lgkmcnt(0)', f's_mov_b32 s{SGATE+2}, 256', f'v_mov_b32 v{vT}, 0', 's_mov_b64 exec, 1']
            for n in range(0, 16, 4):
                for x in range(4): st += [f's_sub_u32 s{sT1}, s{STAMP0+n+x}, s{STAMP0}', f'v_mov_b32 v{TMP+x}, s{sT1}'] if n + x < self.nstamp else [f'v_mov_b32 v{TMP+x}, 0']
                st += [f'buffer_store_dwordx4 {v(TMP, 4)}, v{vT}, {srd(SGATE)}, 0 offen offset:{4*n}', 's_nop 1']
            c.append(G(Mark('raw', st), f'{e}:'))
        if o['skew']:
            op = 'max' if o['skew'] == 'max' else 'min'
            st = [f's_mov_b32 s{sT1}, {hx(STAMP+0x30000)}', 's_mov_b64 exec, -1', f'buffer_load_dwordx4 {v(TMP,4)}, v{vLin}, {srd(SWS)}, s{sT1} offen sc1', 's_waitcnt vmcnt(0)']
            for x in range(4): st.append(f'v_subrev_u32 v{TMP+x}, s{STAMP0}, v{TMP+x}')
            st += [f'v_{op}_i32 v{TMP}, v{TMP}, v{TMP+1}', f'v_{op}_i32 v{TMP+2}, v{TMP+2}, v{TMP+3}', f'v_{op}_i32 v{TMP}, v{TMP}, v{TMP+2}', 's_nop 1', f's_mov_b32 s{sT2}, 0']
            for l in range(64): st += [f'v_readlane_b32 s{sT1}, v{TMP}, {l}', 's_nop 0', f's_{op}_i32 s{sT2}, s{sT2}, s{sT1}']
            st += [f's_abs_i32 s{sT2}, s{sT2}', f's_add_u32 s{STAMP0+1}, s{STAMP0}, s{sT2}']
            c.append(G(Mark('raw', st)))
        if o['amp']:
            na, nb, k = o['amp']; e, l = self.lab('amp'), self.lab('spin')
            ia, ib = self.stamp_names.index(na), self.stamp_names.index(nb)
            c.append(G(Mark('raw', [f's_or_b32 s{sT1}, s{sI}, s{sJ}', f's_or_b32 s{sT1}, s{sT1}, s{sW}', f's_cmp_eq_u32 s{sT1}, 0', f's_cbranch_scc0 {e}',
                   f's_sub_u32 s{sT1}, s{STAMP0+ib}, s{STAMP0+ia}', f's_mul_i32 s{sT1}, s{sT1}, {k}', f's_min_u32 s{sT1}, s{sT1}, 100000',
                   f'{l}:', 's_memrealtime s[62:63]', 's_waitcnt lgkmcnt(0)', f's_sub_u32 s{sT2}, s62, s{STAMP0+self.nstamp-1}', f's_cmp_lt_u32 s{sT2}, s{sT1}', f's_cbranch_scc1 {l}']), f'{e}:'))
        self.log = []
        if o['pure']:
            self.nstamp = 1; self.stamp_names = ['entry']
            st = self.stream(); cc = norm(self.setup1())
            cc = [x for x in cc if not (isinstance(x, Mark) and x.kind in ('flush', 'emit'))]
            flat = []
            for x in cc: flat += x.arg if isinstance(x, Mark) and x.kind == 'group' else [x]
            nf = o['purefirst']
            first = [it for b in st[:nf] for it in b.items if isinstance(it, Ins)]
            for x in norm(self.setup2()): flat += x.arg if isinstance(x, Mark) and x.kind == 'group' else [x]
            cut = max(n for n, x in enumerate(flat) if isinstance(x, Ins) and x.text.startswith(f's_lshl_b32 s{sLW3}')) + 1
            items = flat[:cut] + first + ([Ins('s_waitcnt vmcnt(0)'), Ins(o['clk'] + ' s[90:91]'), Ins('s_waitcnt lgkmcnt(0)'), Ins('s_mov_b32 s2, s90')] if nf > 10 else []) + flat[cut:] + [Ins(f's_mul_i32 s{sLZ}, s{sW}, 24576')]
            last = None; k = 0
            for b in st[nf:]:
                grp = b.tok[0] if b.tok[0] != 'S' else ('S' if int(b.tok[1:]) < 5 else 'W')
                if grp != last and grp in 'WPZO' and f'to {grp}' not in self.stamp_names:
                    for x in self.stamp(f'to {grp}'): items += x.arg
                last = grp
                for it in b.items:
                    if isinstance(it, Ins) and it.kind != 'ds':
                        items.append(it)
                        if it.kind == 'vm':
                            k += 1; items.append(Ins(f's_waitcnt vmcnt({o["pure"]})'))
            tail = [Ins('s_waitcnt vmcnt(0)')]
            for x in self.stamp('end'): tail += x.arg
            stt = [f's_lshl_b32 s{sT1}, s{sI}, 3', f's_add_u32 s{sT1}, s{sT1}, s{sJ}', f's_lshl_b32 s{sT1}, s{sT1}, 2', f's_add_u32 s{sT1}, s{sT1}, s{sW}',
                   f's_lshl_b32 s{sT1}, s{sT1}, 7', f's_add_u32 s{sT1}, s{sT1}, {hx(STAMP)}', f'v_mov_b32 v{vT}, 0', 's_mov_b64 exec, 1']
            for n in range(0, 8, 4):
                for x in range(4): stt.append(f'v_mov_b32 v{TMP+x}, s{STAMP0+n+x if (n + x != 1 or nf <= 10) else 2}' if n + x < self.nstamp else f'v_mov_b32 v{TMP+x}, 0')
                stt += [f'buffer_store_dwordx4 {v(TMP, 4)}, v{vT}, {srd(SWS)}, s{sT1} offen offset:{4*n}', 's_nop 1']
            items = [x for x in items if isinstance(x, Ins)] + tail + norm(stt)
            self.lines = finalize(items)
            return self.lines
        items = merge(c, self.stream(), window=o['window'], lat=o['lat'], log=self.log, overdue=o['overdue'])
        if o['nocomp']:
            items = [it for it in items if not (isinstance(it, Ins) and any(it.op.startswith(x) for x in o['nocomp']))]
        if o['trace']:
            na, nb, step, reg = o['trace']; out = []; on = False; k = 0; cnt = 0
            def point():
                nonlocal k
                r = []
                if k: r.append(I(f'v_writelane_b32 v{reg + (k-1)//64}, s{44 + 2*((k-1) % 4)}, {(k-1) % 64}'))
                r += [Mark('anchor', f'T{k}'), I(f's_memtime s[{44 + 2*(k % 4)}:{45 + 2*(k % 4)}]', tok='trace')]
                k += 1
                return r
            for it in items:
                if isinstance(it, Mark) and it.kind == 'anchor':
                    if it.arg == na: on = True; out += point(); cnt = 0
                    if it.arg == nb and on:
                        on = False; out += point(); out.append(I('s_waitcnt lgkmcnt(0)')); out += point()[:1]
                        out += norm([f's_lshl_b32 s52, s{sI}, 3', f's_add_u32 s52, s52, s{sJ}', f's_lshl_b32 s52, s52, 2', f's_add_u32 s52, s52, s{sW}',
                                     's_lshl_b32 s52, s52, 10', f's_add_u32 s52, s52, {hx(DBGB)}', f'buffer_store_dwordx4 {v(reg, 4)}, v{vLin}, {srd(SWS)}, s52 offen', 's_nop 1'])
                out.append(it)
                if on and isinstance(it, Ins) and it.kind != 'label' and (not o['nocomp'] or it.kind == 'vm'):
                    cnt += 1
                    if cnt >= step and k < 254: out += point(); cnt = 0
            items = out; self.ntrace = k - 1
        lines = finalize(items)
        self.lines = lines
        return lines

    def text(self):
        lines = self.build()
        head = open('gated_mix__spectral_fnet__mixer_gmlp__prompt.s.ref').read().split('; Override launch geometry')[0]
        body = '\n'.join(('' if l.endswith(':') else '    ') + l for l in lines)
        return f'''{head};
; One persistent launch, 256 workgroups (one per CU) of 4 waves; straight-line code emitted by my generator script.
; Workgroup (i, j): rows t = 32*m + i (m = 0..63), column block j of 8.
;   phase 1  z2, z1 = gelu(x w_in) tiles, gate, and the hidden-dimension DFT of the tile's rows (MFMA, bf16 in / f32 acc).
;            LayerNorm statistics are exchanged between the 8 column blocks (tagged 16-byte records in d_ws).
;            The sequence DFT (constant DFT matrices) is factored 2048 = 64 x 32: the radix-64 stage with its twiddles
;            runs on the workgroup's own rows, the radix-32 stage in phase 3; the hidden DFT uses the conjugate symmetry
;   phase 2  g = w_sp z2n + b with the 64 x 2048 slice of w_sp resident in AGPRs, z2n streamed through LDS; h = z1 * g.
;   phase 3  out = gate * y + (1 - gate) * (h w_out).
; Hand-offs go through d_ws with write-through (sc1) stores and sc1 loads.  Flags carry a tag derived from an epoch word
; that every launch reads on entry and advances on exit; the last two h blocks are recognised by overwriting a marker that
; this launch wrote first.  Every wait is bounded.  Workgroup numbering is used for L2 locality only.
; @launch grid=(256,1,1) block=(256,1,1) lds={LDS_BYTES}
.amdgcn_target "amdgcn-amd-amdhsa--gfx950"
.text
.globl {KNAME}
.p2align 8
.type {KNAME},@function
{KNAME}:
{body}
L_end:
    s_endpgm
L_code_end:
{'.set CODE_BYTES, L_code_end - L_pc' if self.o['codepf'] else ''}
.section .rodata,"a"
.p2align 6
.amdhsa_kernel {KNAME}
  .amdhsa_next_free_vgpr 512
  .amdhsa_next_free_sgpr 102
  .amdhsa_accum_offset 256
  .amdhsa_group_segment_fixed_size 0
  .amdhsa_kernarg_size 112
  .amdhsa_user_sgpr_count 2
  .amdhsa_user_sgpr_kernarg_segment_ptr 1
  .amdhsa_system_sgpr_workgroup_id_x 1
  .amdhsa_float_denorm_mode_32 3
.end_amdhsa_kernel
'''


if __name__ == '__main__':
    kw = {}
    out = 'gated_mix__spectral_fnet__mixer_gmlp__prompt.s'
    for x in sys.argv[1:]:
        k, val = x.split('=', 1)
        if k == 'out': out = val
        else: kw[k] = eval(val)
    g = Gen(**kw)
    open(out, 'w').write(g.text())
    for e in g.log: print(e)
```

```python
import sys, struct, math
from dsl import *

KNAME = 'gated_mix__spectral_fnet__mixer_gmlp__prompt_kernel'

DEFAULT = dict(stamps=False, rot=True, window=90, lat=600, codepf=True, dbg=None, pk=True, amp=None, wfast=2, tearly=0, ftat=7, tpat=(10, 30), tmix=3, tgrp=(), two=False, B=None, gbit=3, epearly=False, t1stag=None, errscale=0, kst=0, xwide=False, purefirst=10, mc2=0, jitter=0, pure=0, lastord=False, xbar={}, tlb=(), tfine=None, relat=5, relpos=7, halfred=False, early=0, cpos=1, cp3=0, cp4=0, coff=256, bar2at=13, chkmid=True, clrat=-1, uout=True, hzero=True, t1at=(3, 3, 3, 3, 3), tailord='mix', rdat=8, gshadow=True, nocomp=(), codepf2=2048, o2pre=2, o0at=(), pre=450, drop=(), outfl='', cold=[30]*5 + [1200] + [150]*6, tparts=(), hpos=5, statat=6, trace=None, not1=False, nb=4, overdue=30, esplit=45, touch=1800, htouch=False, fbat=60, h2at=13, smask=(1, 2, 0), pcost=(150, 60, 100, 60), pcut=(5, 6, 7, 9, 11), wcost=90, sset=None, zcost=64, probe2=None, probe=None, clk='s_memrealtime', skew=None, dbgst=False)


def f2u(x):
    return struct.unpack('<I', struct.pack('<f', x))[0]


def hx(x):
    return hex(x & 0xffffffff)


EPOCH = 0
FLAGB = 0x8000
FLAGT = 0x10000
STAT = 0x20000
FLAGC = 0xC0000
STAMP = 0x60000
WBUF = 0x100000
Z2B = 0x200000
HBUF = 0x500000
T1B = 0x800000
DBGB = 0xE00000
WS_SIZE = 0x2000000
OOB = 0x40000000

LA = 0
LB = 73728
LC = 139264
NPS = 6
L_REL = LB + 57344
L_GATE = LB + 61440
L_ZT = 12288
L_W0 = 98304
LDS_BYTES = 163840
L_W = [LB, None, None]

SX, SWIN, SWSP, SH, SWS, SOUT, SWO, SGATE, SBSP, SCODE = 4, 8, 12, 16, 20, 24, 28, 32, 36, 40
sW, sI, sJ, sKH, sTAG, sTO = 64, 65, 66, 67, 68, 69
sKX = [70, 71, 72, 73, 74]
sWB2, sWB1, sT0, sT1, sT2 = 75, 76, 77, 78, 79
sLX, sLW, sLH, sLS = 80, 81, 82, 83
sXB = [84, 85]
sSP = [86, 87, 88, 89]
sZB, sHB = 90, 91
sC1 = 92
sWH = 94
sT3, sT4 = 95, 96
sFC = 97
sWBUF = 98
sT1S = 99
sREL = 101
sMK = 3
sDX = 61
sDZ = 59
sSTG = 58
sTC = 60
sFB = 2
sLZ = sREL
sLW3 = 100
STAMP0 = 44


def srd(b): return f's[{b}:{b+3}]'


vT = 0; vL = 1
vX = [2, 3]; vW = [4, 5, 6]; vH = [7, 8, 9]; vS = [10, 11]
vLin = 12; vRb = [13, 14]; vRx = [15, 16]; vRs = [17, 18]; vTe, vTo = 19, 20
vGa, vGt = 21, 22; vExW, vExR = 23, 24; vRd = [25, 26, 27]
vBias, vGate, vZs, vTag = 28, 29, 30, 31
vZ = list(range(32, 40))
TMP = 40
POLL = 48
CF = 56
ACC = 64
FR = [128, 160]
Z2 = 192; Z1 = 216
CB = 240
vC0 = 248
vSgn = 250
vQ, vC = 251, 252
vAl, vBe = 253, 254
vL4 = 255
AX = 96
vRp = [ACC + 48, ACC + 49]
vGb, vGu = ACC + 50, ACC + 51
GACC = ACC + 52
vMx = ACC + 56
BQ = CB
vHt = ACC + 62
vGo = [ACC + 57 + x for x in range(5)]
vBias1 = vExW
vHs = vL4
H_BASE = [24576, 36864, 49152, 61440, 0]


def v(n, k=1): return f'v{n}' if k == 1 else f'v[{n}:{n+k-1}]'
def a(n, k=1): return f'a{n}' if k == 1 else f'a[{n}:{n+k-1}]'
def vr(n, k): return [f'v{x}' for x in range(n, n + k)]


def mfma(d, A, B, c=None):
    return f'v_mfma_f32_16x16x32_bf16 {d}, {A}, {B}, {d if c is None else c}'


class Gen:
    def __init__(self, **kw):
        self.o = dict(DEFAULT); self.o.update(kw)
        if self.o['B'] is not None: self.o['two'] = True
        self.nlab = 0; self.nstamp = 0; self.stamp_names = []

    def lab(self, s):
        self.nlab += 1
        return f'L_{s}_{self.nlab}'

    def stamp(self, name):
        if self.o['trace']: return [Mark('anchor', name)]
        if self.o['jitter']:
            if name == 'start':
                return [G('s_memtime s[46:47]', 's_waitcnt lgkmcnt(0)', f's_mul_i32 s45, s2, 97', f's_add_u32 s45, s45, s{sW}', 's_mul_i32 s45, s45, 0x9e3779b1', 's_xor_b32 s45, s45, s46')]
            l = self.lab('jit')
            return [G('s_mul_i32 s45, s45, 1664525', 's_add_u32 s45, s45, 1013904223', 's_lshr_b32 s46, s45, 28', 's_cmp_lt_u32 s46, 13', f's_cbranch_scc1 {l}',
                      f's_sleep {self.o["jitter"]}', f'{l}:')]
        if not self.o['stamps']: return []
        ss = self.o['sset']
        if name != 'end' and ((ss is None and name.startswith('@')) or (ss is not None and not any(name.startswith(x) for x in ss))): return []
        n = self.nstamp; self.nstamp += 1; self.stamp_names.append(name)
        assert n < 14
        return [G(self.o['clk'] + ' s[62:63]', 's_waitcnt lgkmcnt(0)', f's_mov_b32 s{STAMP0+n}, s62')]

    def setup1(self):
        o = self.o
        p = []
        A = p.append
        if o['stamps']: A(f"{o['clk']} s[{sC1}:{sC1+1}]")
        A('s_cmp_ge_u32 s2, 256'); A('s_cbranch_scc1 L_end')
        A(f's_load_dwordx2 s[{SX}:{SX+1}], s[0:1], 0')
        A('s_load_dwordx16 s[48:63], s[0:1], 48')
        A('s_load_dwordx4 s[44:47], s[0:1], 24')
        def cp1():
            A(f's_getpc_b64 s[{SCODE}:{SCODE+1}]'); A('L_pc:'); A(f's_mov_b32 s{SCODE+2}, CODE_BYTES'); A(f's_mov_b32 s{SCODE+3}, 0x20000')
            A('v_lshrrev_b32 v50, 3, v0'); A('v_lshlrev_b32 v50, 7, v50')
            if o['two']:
                A(f's_bitcmp1_b32 s2, {o["gbit"]}'); A(f's_cselect_b32 s{sT2}, CODE_DELTA, 0')
                A(I(f'buffer_load_dword v{POLL+2}, v50, {srd(SCODE)}, s{sT2} offen offset:{o["coff"] + 384}', tok='touch'))
                A('v_and_b32 v50, 0x380, v50')
            A(I(f'buffer_load_dword v{POLL}, v50, {srd(SCODE)}, 0 offen offset:{o["coff"]}'))
        def cp2():
            if o['two']:
                assert o['gbit'] == 3
                A('v_lshrrev_b32 v51, 4, v0'); A('v_lshlrev_b32 v51, 7, v51'); A(f's_lshr_b32 s{sT1}, s2, 4'); A(f's_lshl_b32 s{sT1}, s{sT1}, 11'); A(f's_add_u32 s{sT1}, s{sT1}, {4096+o["coff"]}')
                A(f's_bitcmp1_b32 s2, 3'); A(f's_cselect_b32 s{sT2}, CODE_DELTA, 0'); A(f's_add_u32 s{sT1}, s{sT1}, s{sT2}')
            else:
                A('v_lshrrev_b32 v51, 5, v0'); A('v_lshlrev_b32 v51, 7, v51'); A(f's_lshr_b32 s{sT1}, s2, 3'); A(f's_lshl_b32 s{sT1}, s{sT1}, 10'); A(f's_add_u32 s{sT1}, s{sT1}, {4096+o["coff"]}')
            A(I(f'buffer_load_dword v{POLL+1}, v51, {srd(SCODE)}, s{sT1} offen'))
        if o['codepf'] and o['cpos'] < 2: cp1()
        if o['codepf'] and o['cpos'] < 1: cp2()
        t0, t1, t2 = TMP, TMP + 1, TMP + 2
        A('v_lshrrev_b32 v2, 6, v0')
        A(f'v_and_b32 v{vL}, 63, v0')
        A(f'v_readfirstlane_b32 s{sW}, v2')
        A(f's_bfe_u32 s{sI}, s2, 0x20001'); A(f's_lshl_b32 s{sI}, s{sI}, 3')
        A(f's_bfe_u32 s{sT3}, s2, 0x30003'); A(f's_add_u32 s{sI}, s{sI}, s{sT3}')
        A(f's_lshr_b32 s{sT4}, s2, 6')
        A(f's_and_b32 s{sKH}, s{sW}, 1'); A(f's_lshr_b32 s{sWH}, s{sW}, 1')
        A(f'v_lshrrev_b32 v{vQ}, 4, v{vL}')
        A(f'v_and_b32 v{t0}, 7, v{vL}'); A(f'v_xor_b32 v{t0}, v{t0}, v{vQ}'); A(f'v_lshlrev_b32 v{t0}, 4, v{t0}')
        A(f'v_lshrrev_b32 v{t1}, 3, v{vL}')
        A(f's_mov_b32 s{sT1}, 81920')
        A(f'v_mad_u32_u24 v{vX[0]}, v{t1}, s{sT1}, v{t0}')
        A(f'v_xor_b32 v{vX[1]}, 64, v{vX[0]}'); A(f'v_add_u32 v{vX[1]}, {8*81920-1024}, v{vX[1]}')
        if o['xwide']:
            A(f'v_and_b32 v{t2}, 15, v{vL}'); A(f'v_lshlrev_b32 v{t2}, 4, v{t2}'); A(f'v_mad_u32_u24 v{vX[0]}, v{vQ}, s{sT1}, v{t2}'); A(f'v_add_u32 v{vX[1]}, {4*81920-1024}, v{vX[0]}')
        if o['rot']:
            ri, mi, rj, mj = o['rot'] if isinstance(o['rot'], tuple) else (0, 1, 0, 2)
            if ri: A(f's_lshr_b32 s{sT3}, s{sT3}, {ri}')
            if mi != 1: A(f's_mul_i32 s{sT3}, s{sT3}, {mi}')
            A(f's_lshr_b32 s{sT2}, s{sT4}, {rj}'); A(f's_mul_i32 s{sT2}, s{sT2}, {mj}'); A(f's_add_u32 s{sT3}, s{sT3}, s{sT2}')
            A(f's_mul_i32 s{sT2}, s{sT3}, 52'); A(f's_lshr_b32 s{sT2}, s{sT2}, 8'); A(f's_mul_i32 s{sT2}, s{sT2}, 5')
            A(f's_sub_u32 s{sT3}, s{sT3}, s{sT2}'); A(f's_lshl_b32 s{sKX[0]}, s{sT3}, 7')
        else:
            A(f's_mov_b32 s{sKX[0]}, 0')
        A(f's_mul_i32 s{sT1}, s{sI}, 1280'); A(f's_mul_i32 s{sT2}, s{sWH}, {32*40960}'); A(f's_add_u32 s{sT1}, s{sT1}, s{sT2}')
        A(f's_mul_i32 s{sT2}, s{sKH}, {40960+640}'); A(f's_add_u32 s{sXB[0]}, s{sT1}, s{sT2}')
        A(f's_mul_i32 s{sT2}, s{sKH}, {40960-640}'); A(f's_sub_u32 s{sT1}, s{sT1}, s{sT2}'); A(f's_add_u32 s{sXB[1]}, s{sT1}, 40960')
        if o['xwide']:
            A(f's_mul_i32 s{sT2}, s{sKH}, 640'); A(f's_sub_u32 s{sXB[0]}, s{sXB[0]}, s{sT2}'); A(f's_add_u32 s{sXB[1]}, s{sXB[0]}, {8*81920}')
        A(f's_lshl_b32 s{sLX}, s{sW}, 12'); A(f's_add_u32 s{sLX}, s{sLX}, {LB}')
        A(f's_mov_b32 s{SX+2}, {2048*1280}'); A(f's_mov_b32 s{SX+3}, 0x20000')
        A(f'v_lshl_add_u32 v{vS[0]}, v{t1}, 18, v{t0}')
        A(f's_and_b32 s{sJ}, s2, 1'); A(f's_lshl_b32 s{sJ}, s{sJ}, 2'); A(f's_add_u32 s{sJ}, s{sJ}, s{sT4}')
        if o['early']:
            A(f'v_lshlrev_b32 v{vLin}, 4, v{vL}'); A(f'v_mul_u32_u24 v{t0}, 5462, v{vL}'); A(f's_movk_i32 s{sT1}, 2880')
            A(f'v_add_u32 v{t1}, {64*5462}, v{t0}'); A(f'v_add_u32 v{t2}, {128*5462}, v{t0}')
            for x, t in enumerate((t0, t1, t2)):
                A(f'v_lshrrev_b32 v{t}, 16, v{t}'); A(f'v_mad_u32_u24 v{vW[x]}, v{t}, s{sT1}, v{vLin}')
            A(f'v_and_b32 v{t0}, 32, v{vL}'); A(f'v_xor_b32 v{vW[1]}, v{vW[1]}, v{t0}'); A(f'v_xor_b32 v{vW[2]}, 32, v{vW[2]}')
            A(f's_mul_i32 s{sT1}, s{sKH}, {320*3072}'); A(f's_mul_i32 s{sT2}, s{sWH}, {32*3072}'); A(f's_add_u32 s{sT1}, s{sT1}, s{sT2}')
            A(f's_mul_i32 s{sT2}, s{sJ}, 192'); A(f's_add_u32 s{sWB1}, s{sT1}, s{sT2}'); A(f's_add_u32 s{sWB2}, s{sWB1}, 1536')
            A(f's_mul_i32 s{sT1}, s{sKH}, 12288'); A(f's_mul_i32 s{sT2}, s{sWH}, 6144'); A(f's_add_u32 s{sLW}, s{sT1}, s{sT2}')
            A(f's_mov_b32 s{SWIN+2}, {640*3072}'); A(f's_mov_b32 s{SWIN+3}, 0x20000')
        if o['kst'] == 1: A(f"{o['clk']} s[90:91]")
        A('s_waitcnt lgkmcnt(0)')
        if o['kst'] == 2: A(f"{o['clk']} s[90:91]"); A('s_waitcnt lgkmcnt(0)')
        if o['kst']: A(f's_sub_u32 s{sWBUF}, s90, s{sC1}')
        if o['early']: A(f's_mov_b64 s[{SWIN}:{SWIN+1}], s[48:49]')
        head = [G(p), Mark('free', 'goX'), Mark('flush', 'X0')]
        if o['early']: head += [Mark('free', 'goW'), Mark('emit', o['early'])]
        p = []
        A = p.append
        if o['codepf'] and o['cpos'] >= 2: cp1()
        if o['codepf'] and o['cpos'] >= 1 and not o['wfast']: cp2()
        if not o['early']:
            A(f'v_lshlrev_b32 v{vLin}, 4, v{vL}'); A(f'v_mul_u32_u24 v{t0}, 5462, v{vL}'); A(f's_movk_i32 s{sT1}, 2880')
            A(f'v_add_u32 v{t1}, {64*5462}, v{t0}'); A(f'v_add_u32 v{t2}, {128*5462}, v{t0}')
            for x, t in enumerate((t0, t1, t2)):
                A(f'v_lshrrev_b32 v{t}, 16, v{t}'); A(f'v_mad_u32_u24 v{vW[x]}, v{t}, s{sT1}, v{vLin}')
            A(f'v_and_b32 v{t0}, 32, v{vL}'); A(f'v_xor_b32 v{vW[1]}, v{vW[1]}, v{t0}'); A(f'v_xor_b32 v{vW[2]}, 32, v{vW[2]}')
            A(f's_mul_i32 s{sT1}, s{sKH}, {320*3072}'); A(f's_mul_i32 s{sT2}, s{sWH}, {32*3072}'); A(f's_add_u32 s{sT1}, s{sT1}, s{sT2}')
            A(f's_mul_i32 s{sT2}, s{sJ}, 192'); A(f's_add_u32 s{sWB1}, s{sT1}, s{sT2}'); A(f's_add_u32 s{sWB2}, s{sWB1}, 1536')
            A(f's_mul_i32 s{sT1}, s{sKH}, 12288'); A(f's_mul_i32 s{sT2}, s{sWH}, 6144'); A(f's_add_u32 s{sLW}, s{sT1}, s{sT2}')
        A(f's_mov_b64 s[{SWIN}:{SWIN+1}], s[48:49]'); A(f's_mov_b32 s{SWIN+2}, {640*3072}'); A(f's_mov_b32 s{SWIN+3}, 0x20000')
        if o['wfast']:
            head += [G(p), Mark('free', 'goW'), Mark('emit', o['wfast'])]
            p = []
            A = p.append
            if o['codepf'] and o['cpos'] >= 1: cp2()
        for n in range(1, 5):
            A(f's_add_u32 s{sKX[n]}, s{sKX[n-1]}, 128'); A(f's_cmp_ge_u32 s{sKX[n]}, 640'); A(f's_cselect_b32 s{sKX[n]}, 0, s{sKX[n]}')
        A(f'v_and_b32 v{vC}, 15, v{vL}')
        if o['tparts'] or o['tgrp'] or o['tfine']:
            A(f'v_lshlrev_b32 v{t0}, 18, v{vC}'); A(f'v_lshl_add_u32 v{vZ[1]}, v{vQ}, 7, v{t0}')
            A(f's_lshl_b32 s{sT1}, s{sWH}, 5'); A(f's_add_u32 s{sT1}, s{sT1}, s{sKH}'); A(f's_lshl_b32 s{sT1}, s{sT1}, 5'); A(f's_add_u32 s{sT1}, s{sT1}, s{sI}')
            A(f's_lshl_b32 s{sT1}, s{sT1}, 2'); A(f's_and_b32 s{sT2}, s{sJ}, 3'); A(f's_add_u32 s{sT1}, s{sT1}, s{sT2}'); A(f's_lshl_b32 s{sT1}, s{sT1}, 1')
            A(f's_lshr_b32 s{sT2}, s{sJ}, 2'); A(f's_add_u32 s{sT1}, s{sT1}, s{sT2}'); A(f's_lshl_b32 s{sTC}, s{sT1}, 9')
        A(f's_mov_b64 s[{SWSP}:{SWSP+1}], s[50:51]'); A(f's_mov_b32 s{SWSP+2}, {2048*4096}'); A(f's_mov_b32 s{SWSP+3}, 0x20000')
        A(f'v_xor_b32 v{vS[1]}, 64, v{vS[0]}'); A(f'v_add_u32 v{vS[1]}, {8*262144-1024}, v{vS[1]}')
        A(f's_mul_i32 s{sLH}, s{sW}, 3072')
        A(f's_mul_i32 s{sLS}, s{sW}, {NPS*2048}'); A(f's_add_u32 s{sLS}, s{sLS}, {LB + 8192}')
        A(f's_lshl_b32 s{sLW3}, s{sW}, 10')
        if o['probe2']:
            fl, n = o['probe2']
            st = [f's_load_dwordx2 s[{SCODE}:{SCODE+1}], s[0:1], 8', 's_waitcnt lgkmcnt(0)', f's_mov_b32 s{SCODE+2}, {2048*4096}', f's_mov_b32 s{SCODE+3}, 0x20000',
                  f's_lshl_b32 s{sT1}, s2, 2', f's_add_u32 s{sT1}, s{sT1}, s{sW}', f's_lshl_b32 s{sT1}, s{sT1}, 13',
                  f's_memrealtime s[{sHB-1}:{sHB}]', 's_waitcnt lgkmcnt(0)', f's_mov_b32 s{sT2}, s{sHB-1}']
            for x in range(n):
                st += [f'buffer_load_dwordx4 {v(ACC+4*x,4)}, v{vLin}, {srd(SCODE)}, s{sT1} offen{fl}', f's_add_u32 s{sT1}, s{sT1}, 1024']
            st += ['s_waitcnt vmcnt(0)', 's_barrier', f's_memrealtime s[{sHB-1}:{sHB}]', 's_waitcnt lgkmcnt(0)', f's_sub_u32 s{sWBUF}, s{sHB-1}, s{sT2}']
            p.append(Mark('raw', st))
        if o['probe']:
            off, stride, first = o['probe']; e = self.lab('probe')
            st = [f's_mov_b32 s{sFC}, 0', f's_or_b32 s{sT1}, s{sI}, s{sJ}', f's_or_b32 s{sT1}, s{sT1}, s{sW}', f's_cmp_eq_u32 s{sT1}, 0', f's_cbranch_scc0 {e}',
                  f's_load_dwordx2 s[{SCODE}:{SCODE+1}], s[0:1], {off}', 's_waitcnt lgkmcnt(0)', f's_mov_b32 s{SCODE+2}, {17*stride+first+4096}', f's_mov_b32 s{SCODE+3}, 0x20000', f'v_mov_b32 v{TMP}, 0',
                  f's_mov_b32 s{sT1}, {first}', f'buffer_load_dword v{TMP+1}, v{TMP}, {srd(SCODE)}, s{sT1} offen', 's_waitcnt vmcnt(0)',
                  f's_memrealtime s[{sHB-1}:{sHB}]', 's_waitcnt lgkmcnt(0)', f's_mov_b32 s{sT2}, s{sHB-1}']
            for n in range(16):
                st += [f's_add_u32 s{sT1}, s{sT1}, {stride}', f'buffer_load_dword v{TMP+1}, v{TMP}, {srd(SCODE)}, s{sT1} offen', 's_waitcnt vmcnt(0)']
            st += [f's_memrealtime s[{sHB-1}:{sHB}]', 's_waitcnt lgkmcnt(0)', f's_sub_u32 s{sFC}, s{sHB-1}, s{sT2}']
            p.append(Mark('raw', st)); p.append(f'{e}:'); p.append(f's_mov_b32 s{sWBUF}, s{sFC}')
        return head + [G(p), Mark('anchor', 'split'), Mark('free', 'go')]

    def setup2(self):
        o = self.o
        p = []
        A = p.append
        for b, src, n in ((SBSP, 52, 4096), (SWO, 54, 768*1280), (SGATE, 56, 1280), (SOUT, 58, 2048*1280), (SWS, 62, WS_SIZE)):
            A(f's_mov_b64 s[{b}:{b+1}], s[{src}:{src+1}]'); A(f's_mov_b32 s{b+2}, {n}'); A(f's_mov_b32 s{b+3}, 0x20000')
        A(G(f's_cmp_eq_u32 s{sWH}, 0', f's_cselect_b64 s[{SH}:{SH+1}], s[44:45], s[46:47]'))
        A(f's_mov_b32 s{SH+2}, {640*1280}'); A(f's_mov_b32 s{SH+3}, 0x20000')
        if o['stamps']:
            self.nstamp = 1; self.stamp_names = ['entry']
            A(f's_mov_b32 s{STAMP0}, s{sC1}')
            if o['probe'] or o['probe2'] or o['kst']:
                self.nstamp = 2; self.stamp_names = ['entry', 'probe']
                A(f's_add_u32 s{STAMP0+1}, s{sC1}, s{sWBUF}')
            if o['skew']:
                A(f'v_mov_b32 v{TMP}, s{sC1}'); A(f's_lshl_b32 s{sT1}, s2, 2'); A(f's_add_u32 s{sT1}, s{sT1}, {hx(STAMP+0x30000)}'); A(f'v_mov_b32 v{TMP+1}, 0')
                A(f'buffer_store_dword v{TMP}, v{TMP+1}, {srd(SWS)}, s{sT1} offen sc1')
        p += self.stamp('start')
        t0, t1, t2, t3 = TMP, TMP + 1, TMP + 2, TMP + 3
        A(f'v_mov_b32 v{t3}, 0')
        A(I(f'buffer_load_dword v{vTag}, v{t3}, {srd(SWS)}, 0 offen sc1'))
        A(f's_lshl_b32 s{sT1}, s{sWH}, 5'); A(f's_add_u32 s{sT1}, s{sT1}, s{sKH}'); A(f's_lshl_b32 s{sT1}, s{sT1}, 5'); A(f's_add_u32 s{sT1}, s{sT1}, s{sI}')
        A(f's_lshl_b32 s{sT1}, s{sT1}, 1')
        A(f'v_lshlrev_b32 v{t2}, 7, v{vC}')
        A(I(f'buffer_load_ushort v{vBias}, v{t2}, {srd(SBSP)}, s{sT1} offen'))
        A(f's_xor_b32 s{sT1}, s{sT1}, 64')
        A(I(f'buffer_load_ushort v{vBias1}, v{t2}, {srd(SBSP)}, s{sT1} offen'))
        if o['tlb']:
            A(f'v_and_b32 v{t0}, 7, v{vL}'); A(f'v_lshlrev_b32 v{t0}, 21, v{t0}')
            for b in o['tlb']:
                A(I(f'buffer_load_dword v{POLL+2}, v{t0}, {srd(b)}, 0 offen', tok='touch'))
        A(f'v_lshrrev_b32 v{t0}, 1, v{vC}'); A(f'v_xor_b32 v{t0}, v{t0}, v{vQ}'); A(f'v_lshlrev_b32 v{t0}, 4, v{t0}')
        A(f'v_lshl_add_u32 v{vRb[0]}, v{vC}, 7, v{t0}'); A(f'v_xor_b32 v{vRb[1]}, 64, v{vRb[0]}')
        A(f's_xor_b32 s{sT1}, s{sLX}, 4096')
        for k in range(2):
            A(f'v_add_u32 v{vRx[k]}, s{sLX}, v{vRb[k]}'); A(f'v_add_u32 v{vRp[k]}, s{sT1}, v{vRb[k]}'); A(f'v_add_u32 v{vRs[k]}, s{sLS}, v{vRb[k]}')
        A(f'v_bfe_u32 v{t0}, v{vL}, 2, 2'); A(f'v_lshl_add_u32 v{t0}, v{vQ}, 3, v{t0}'); A(f'v_mul_u32_u24 v{t0}, 192, v{t0}')
        A(f'v_and_b32 v{t1}, 3, v{vL}'); A(f'v_lshl_add_u32 v{t0}, v{t1}, 3, v{t0}')
        A(f'v_xor_b32 v{t1}, s{sKH}, v{vQ}'); A(f'v_and_b32 v{t1}, 1, v{t1}'); A(f'v_lshl_add_u32 v{t0}, v{t1}, 5, v{t0}')
        A(f's_mul_i32 s{sT1}, s{sKH}, 12288'); A(f'v_add_u32 v{vTe}, s{sT1}, v{t0}'); A(f's_sub_u32 s{sT1}, 12288, s{sT1}'); A(f'v_add_u32 v{vTo}, s{sT1}, v{t0}')
        A(f'v_and_b32 v{t0}, 1, v{vQ}'); A(f'v_xor_b32 v{t0}, s{sW}, v{t0}'); A(f'v_mul_u32_u24 v{t0}, 24576, v{t0}')
        A(f'v_lshrrev_b32 v{t1}, 1, v{vQ}'); A(f'v_lshl_add_u32 v{t0}, v{t1}, 8, v{t0}'); A(f'v_lshl_add_u32 v{t0}, v{vC}, 4, v{t0}')
        A(f's_lshl_b32 s{sT1}, s{sKH}, 9'); A(f'v_add_u32 v{vHs}, s{sT1}, v{t0}')
        A(f's_lshl_b32 s{sT1}, s{sI}, 2'); A(f's_add_u32 s{sT1}, s{sT1}, s{sW}')
        A(f's_mul_i32 s{sT2}, s{sT1}, 205'); A(f's_lshr_b32 s{sT2}, s{sT2}, 10')
        A(f's_mul_i32 s{sT3}, s{sT2}, 5'); A(f's_sub_u32 s{sT3}, s{sT1}, s{sT3}')
        A(f's_and_b32 s{sT4}, s{sT2}, 7'); A(f's_mul_i32 s{sT4}, s{sT4}, 3'); A(f's_lshr_b32 s{sT2}, s{sT2}, 3'); A(f's_add_u32 s{sT2}, s{sT2}, s{sT4}')
        A(f's_mul_i32 s{sT2}, s{sT2}, {32*1280}'); A(f's_lshl_b32 s{sT3}, s{sT3}, 5'); A(f's_add_u32 s{sT2}, s{sT2}, s{sT3}')
        A(f's_mul_i32 s{sT3}, s{sJ}, 160'); A(f's_add_u32 s{sT2}, s{sT2}, s{sT3}')
        A(f's_mul_i32 s{sT3}, s{sJ}, 120'); A(f's_add_u32 s{sT3}, s{sT3}, s{sT1}'); A(f's_lshl_b32 s{sT3}, s{sT3}, 10'); A(f's_add_u32 s{sT3}, s{sT3}, {hx(WBUF)}')
        A(G(f's_cmp_lt_u32 s{sT1}, 120', f's_cselect_b32 s{sREL}, s{sT2}, {hx(OOB)}', f's_cselect_b32 s{sFC}, s{sT3}, {hx(OOB)}'))
        A(f'v_lshrrev_b32 v{t0}, 1, v{vL}'); A(f'v_mul_u32_u24 v{t0}, 1280, v{t0}'); A(f'v_and_b32 v{t1}, 1, v{vL}'); A(f'v_lshl_add_u32 v{vZ[0]}, v{t1}, 4, v{t0}')
        A(Mark('free', 'go2'))
        A(f's_mul_i32 s{sT1}, s{sKH}, 640'); A(f's_add_u32 s{sT2}, s{sT1}, {L_GATE}'); A(f'v_lshl_add_u32 v{vGa}, v{vQ}, 4, s{sT2}')
        A(f's_sub_u32 s{sT2}, {L_GATE + 640}, s{sT1}'); A(f'v_lshl_add_u32 v{vGb}, v{vQ}, 4, s{sT2}')
        A(f's_mul_i32 s{sT1}, s{sW}, 6144'); A(f's_add_u32 s{sT1}, s{sT1}, {LC}'); A(f'v_add_u32 v{vExR}, s{sT1}, v{vLin}')
        for u in range(1, 4):
            A(f's_xor_b32 s{sT1}, s{sW}, {u}'); A(f's_mul_i32 s{sT1}, s{sT1}, 6144')
            A(f's_add_u32 s{sT1}, s{sT1}, {LC + (u-1)*2048}'); A(f'v_add_u32 v{vRd[u-1]}, s{sT1}, v{vLin}')
        A(f's_lshl_b32 s{sT1}, s{sW}, 9'); A(f's_add_u32 s{sT1}, s{sT1}, {LC}'); A(f'v_lshl_add_u32 v{vMx}, v{vL}, 3, s{sT1}')
        A(f's_mul_i32 s{sT1}, s{sKH}, 24'); A(f's_mul_i32 s{sT2}, s{sJ}, {40*1280}')
        for y in range(3):
            A(f'v_lshrrev_b32 v{t0}, 3, v{vL}'); A(f'v_add_u32 v{t0}, s{sT1}, v{t0}')
            if y: A(f'v_add_u32 v{t0}, {8*y}, v{t0}')
            A(f'v_lshrrev_b32 v{t1}, 1, v{t0}'); A(f'v_xor_b32 v{t1}, v{t1}, v{vL}'); A(f'v_and_b32 v{t1}, 7, v{t1}')
            if o['hzero'] and y == 2:
                A(f'v_cmp_lt_u32 vcc, 40, v{t0}'); A(f'v_mov_b32 v{t3}, 0x8000'); A(f'v_cndmask_b32 v{t0}, v{t0}, v{t3}, vcc')
            else:
                A(f'v_min_u32 v{t0}, 40, v{t0}')
            A(f'v_mul_u32_u24 v{t0}, 1280, v{t0}'); A(f'v_lshl_add_u32 v{t0}, v{t1}, 4, v{t0}')
            A(f'v_add_u32 v{vH[y]}, s{sT2}, v{t0}')
            if y: A(f'v_subrev_u32 v{vH[y]}, {1024*y}, v{vH[y]}')
        if o['htouch']:
            A(f'v_and_b32 v{t0}, 31, v{vL}'); A(f'v_min_u32 v{t0}, 20, v{t0}'); A(f's_mul_i32 s{sT1}, s{sKH}, 20'); A(f'v_add_u32 v{t0}, s{sT1}, v{t0}')
            A(f'v_mul_u32_u24 v{t0}, 1280, v{t0}'); A(f'v_add_u32 v{vHt}, s{sT2}, v{t0}')
        mg, mc, mp = o['smask']
        A(f's_mov_b32 s{sMK}, 0')
        if mg: A(f's_lshr_b32 s{sT1}, s{sJ}, 2'); A(f's_lshl_b32 s{sMK}, s{sT1}, 3')
        if mc == 1: A(f's_and_b32 s{sT1}, s{sJ}, 1'); A(f's_lshl_b32 s{sT1}, s{sT1}, 2'); A(f's_or_b32 s{sMK}, s{sMK}, s{sT1}')
        if mc == 2: A(f's_and_b32 s{sT1}, s{sJ}, 3'); A(f's_lshl_b32 s{sT1}, s{sT1}, 1'); A(f's_or_b32 s{sMK}, s{sMK}, s{sT1}')
        if mp: A(f's_and_b32 s{sT1}, s{sI}, 1'); A(f's_or_b32 s{sMK}, s{sMK}, s{sT1}')
        A(f's_and_b32 s{sT1}, s{sMK}, 1'); A(f's_lshl_b32 s{sT1}, s{sT1}, 6')
        for k in range(2): A(f'v_xor_b32 v{vRs[k]}, s{sT1}, v{vRs[k]}')
        A(f's_lshr_b32 s{sT3}, s{sMK}, 1'); A(f's_lshl_b32 s{sT3}, s{sT3}, 7')
        for u in range(4):
            A(f's_xor_b32 s{sT1}, s{sW}, {u}'); A(f's_and_b32 s{sT2}, s{sT1}, 1'); A(f's_bfe_u32 s{sT1}, s{sT1}, 0x10001')
            A(f's_lshl_b32 s{sT1}, s{sT1}, 5'); A(f's_add_u32 s{sT1}, s{sT1}, s{sT2}'); A(f's_lshl_b32 s{sT1}, s{sT1}, 5'); A(f's_add_u32 s{sT1}, s{sT1}, s{sI}')
            A(f's_lshl_b32 s{sT1}, s{sT1}, 12'); A(f's_add_u32 s{sT1}, s{sT1}, s{sLW3}'); A(f's_or_b32 s{sSP[u]}, s{sT1}, s{sT3}')
        A(Mark('free', 'go3'))
        A(f's_bfe_u32 s{sDX}, s{sMK}, 0x20001'); A(f's_andn2_b32 s{sDX}, s{sDX}, {o["mc2"]}'); A(f's_lshl_b32 s{sDZ}, s{sDX}, 4'); A(f's_lshl_b32 s{sDX}, s{sDX}, 7')
        A(f's_mul_i32 s{sT1}, s{sJ}, 12'); A(f's_lshl_b32 s{sT2}, s{sWH}, 1'); A(f's_add_u32 s{sT1}, s{sT1}, s{sT2}')
        A(f's_and_b32 s{sT2}, s{sMK}, 1'); A(f's_add_u32 s{sT1}, s{sT1}, s{sT2}'); A(f's_lshl_b32 s{sT1}, s{sT1}, 15')
        A(f's_lshl_b32 s{sT2}, s{sKH}, 14'); A(f's_add_u32 s{sT1}, s{sT1}, s{sT2}')
        A(f's_lshr_b32 s{sT2}, s{sMK}, 3'); A(f's_lshl_b32 s{sT2}, s{sT2}, 13'); A(f's_add_u32 s{sT1}, s{sT1}, s{sT2}'); A(f's_add_u32 s{sZB}, s{sT1}, {hx(Z2B)}')
        A(f's_lshl_b32 s{sT1}, s{sI}, 2'); A(f's_add_u32 s{sT1}, s{sT1}, s{sW}'); A(f's_mul_i32 s{sT1}, s{sT1}, 24576'); A(f's_add_u32 s{sHB}, s{sT1}, {hx(HBUF)}')
        A(f's_mul_i32 s{sT1}, s{sJ}, 122880'); A(f's_add_u32 s{sT1}, s{sT1}, s{sLW3}'); A(f's_add_u32 s{sWBUF}, s{sT1}, {hx(WBUF)}')
        A(f's_lshl_b32 s{sT1}, s{sI}, 3'); A(f's_add_u32 s{sT1}, s{sT1}, s{sJ}'); A(f's_mul_i32 s{sT1}, s{sT1}, 20480')
        A(f's_mul_i32 s{sT2}, s{sW}, 5120'); A(f's_add_u32 s{sT1}, s{sT1}, s{sT2}'); A(f's_add_u32 s{sT1S}, s{sT1}, {hx(T1B)}')
        A(f'v_lshrrev_b32 v{t1}, 1, v{vQ}'); A(f's_lshl_b32 s{sT1}, s{sKH}, 1'); A(f'v_add_u32 v{t3}, s{sT1}, v{t1}')
        A(f'v_and_b32 v{t1}, 3, v{vL}'); A(f'v_lshl_or_b32 v{t0}, v{t3}, 2, v{t1}')
        A(f's_and_b32 s{sT1}, s{sI}, 11'); A(f'v_xor_b32 v{t0}, s{sT1}, v{t0}'); A(f'v_lshlrev_b32 v{t0}, 4, v{t0}')
        A(f'v_lshrrev_b32 v{t1}, 2, v{vC}'); A(f'v_lshl_add_u32 v{t0}, v{t1}, 13, v{t0}')
        A(f'v_and_b32 v{t1}, 1, v{vQ}'); A(f'v_xor_b32 v{t1}, s{sW}, v{t1}'); A(f'v_lshl_add_u32 v{t0}, v{t1}, 15, v{t0}')
        A(f's_lshl_b32 s{sT1}, s{sI}, 8'); A(f'v_add_u32 v{vZs}, s{sT1}, v{t0}')
        c0 = -2.0 * math.sqrt(2.0 / math.pi) * math.log2(math.e)
        A(f's_mov_b32 s{sC1}, {hx(f2u(c0*0.044715))}'); A(f's_mov_b32 s{sC1+1}, s{sC1}')
        A(f'v_mov_b32 v{vC0}, {hx(f2u(c0))}'); A(f'v_mov_b32 v{vC0+1}, v{vC0}')
        A(f's_mov_b32 s{sTO}, 200000')
        A(f'v_and_b32 v{t0}, 1, v{vC}'); A(f'v_lshlrev_b32 v{t0}, 31, v{t0}'); A(f'v_or_b32 v{t0}, 1.0, v{t0}')
        A(G(f's_cmp_eq_u32 s{sKH}, 0', 's_cselect_b64 vcc, -1, 0',
            f'v_cndmask_b32 v{vAl}, v{t0}, 1.0, vcc', f'v_cndmask_b32 v{vBe}, 1.0, v{t0}, vcc'))
        def pat(dst, Rreg):
            A(f'v_lshrrev_b32 v{t1}, 1, v{Rreg}'); A(f'v_xor_b32 v{t1}, v{t1}, v{vQ}'); A(f'v_and_b32 v{t1}, 7, v{t1}'); A(f'v_lshlrev_b32 v{t1}, 4, v{t1}')
            A(f'v_lshl_add_u32 v{dst}, v{Rreg}, 7, v{t1}'); A(f'v_xor_b32 v{dst+1}, 64, v{dst}')
        A(f'v_sub_u32 v{t0}, 16, v{vC}'); pat(vZ[4], t0)
        A(f'v_add_u32 v{t0}, 32, v{vC}'); A(f'v_sub_u32 v{t2}, 48, v{vC}')
        A(f'v_cmp_gt_u32 vcc, 8, v{vC}'); A(f'v_mov_b32 v{t1}, 0x80008000'); A(f'v_cndmask_b32 v{t0}, v{t2}, v{t0}, vcc'); A(f'v_cndmask_b32 v{vZ[7]}, v{t1}, 0, vcc')
        pat(vZ[2], t0)
        A(f's_mul_i32 s{sT1}, s{sJ}, 20480'); A(f's_sub_u32 s{sT1}, {15*10240 - 81920}, s{sT1}')
        A(f's_mov_b32 s{sT2}, 81920')
        for n in range(5):
            A(f'v_add_u32 v{t0}, {64*n}, v{vL}'); A(f'v_mul_u32_u24 v{t1}, 3277, v{t0}'); A(f'v_lshrrev_b32 v{t1}, 16, v{t1}')
            A(f'v_mul_u32_u24 v{t2}, 20, v{t1}'); A(f'v_sub_u32 v{t0}, v{t0}, v{t2}'); A(f'v_lshlrev_b32 v{t0}, 4, v{t0}')
            A(f'v_mad_u32_u24 v{t0}, v{t1}, s{sT2}, v{t0}'); A(f'v_and_b32 v{t1}, 1, v{t1}'); A(f'v_mul_lo_u32 v{t1}, v{t1}, s{sT1}'); A(f'v_add_u32 v{vGo[n]}, v{t0}, v{t1}')
        A(f'v_lshrrev_b32 v{t1}, 3, v{vC}'); A(f'v_mul_u32_u24 v{t1}, 24, v{t1}'); A(f's_lshl_b32 s{sT1}, s{sW}, 3'); A(f'v_add3_u32 v{t0}, s{sT1}, v{vC}, v{t1}')
        A(f'v_and_b32 v{t1}, 1, v{vQ}'); A(f'v_lshlrev_b32 v{t1}, 4, v{t1}'); A(f'v_lshrrev_b32 v{t2}, 1, v{vQ}'); A(f'v_add_u32 v{t1}, v{t1}, v{t2}')
        A(f'v_lshlrev_b32 v{t1}, 5, v{t1}'); A(f'v_add_u32 v{t1}, s{sI}, v{t1}')
        A(f'v_mul_u32_u24 v{t1}, v{t0}, v{t1}'); A(f'v_lshlrev_b32 v{t2}, 6, v{t0}')
        A(f'v_and_b32 v{vSgn}, 1, v{t0}'); A(f'v_mul_u32_u24 v{vSgn}, 0x8000, v{vSgn}'); A(f'v_lshl_or_b32 v{vSgn}, v{vSgn}, 16, v{vSgn}')
        cs, sn = ACC, ACC + 8
        for x in range(8):
            A(f'v_and_b32 v{t3}, 0x7ff, v{t1}'); A(f'v_cvt_f32_u32 v{t3}, v{t3}'); A(f'v_mul_f32 v{t3}, {hx(f2u(1/2048))}, v{t3}')
            A(f'v_cos_f32 v{cs+x}, v{t3}'); A(f'v_sin_f32 v{sn+x}, v{t3}')
            if x < 7: A(f'v_add_u32 v{t1}, v{t1}, v{t2}')
        for x in range(4):
            A(f'v_cvt_pk_bf16_f32 v{CB+x}, v{cs+2*x}, v{cs+2*x+1}'); A(f'v_cvt_pk_bf16_f32 v{CB+4+x}, v{sn+2*x}, v{sn+2*x+1}')
        A(f's_lshl_b32 s{sT1}, s{sWH}, 4'); A(f'v_add_u32 v{t0}, s{sT1}, v{vC}')
        A(f'v_lshrrev_b32 v{t1}, 1, v{vQ}'); A(f'v_lshlrev_b32 v{t1}, 3, v{t1}'); A(f'v_mul_u32_u24 v{t1}, v{t0}, v{t1}')
        A(f'v_and_b32 v{t2}, 1, v{vQ}'); A(f'v_mul_u32_u24 v{t2}, 24, v{t2}'); A(f'v_add_u32 v{t1}, v{t1}, v{t2}')
        for x in range(8):
            A(f'v_and_b32 v{t3}, 31, v{t1}'); A(f'v_cvt_f32_u32 v{t3}, v{t3}'); A(f'v_mul_f32 v{t3}, {hx(f2u(1/32))}, v{t3}')
            A(f'v_cos_f32 v{cs+x}, v{t3}')
            if x < 7: A(f'v_add_u32 v{t1}, v{t1}, v{t0}')
        A(f'v_and_b32 v{t0}, 1, v{t0}'); A(f'v_mul_u32_u24 v{t0}, 0x8000, v{t0}'); A(f'v_lshl_or_b32 v{t0}, v{t0}, 16, v{t0}')
        for x in range(4):
            A(f'v_cvt_pk_bf16_f32 v{CF+x}, v{cs+2*x}, v{cs+2*x+1}')
        for x in range(4):
            A(f'v_xor_b32 v{CF+4+x}, v{CF+x}, v{t0}')
        return p

    def tag(self):
        return [f'v_readfirstlane_b32 s{sTAG}, v{vTag}', f's_mul_i32 s{sTAG}, s{sTAG}, 0x9e3779b1', f's_add_u32 s{sTAG}, s{sTAG}, 0x7f4a7c15',
                f'v_mov_b32 v{vTag}, s{sTAG}', f'v_lshlrev_b32 v{vBias}, 16, v{vBias}', f'v_lshlrev_b32 v{vBias1}, 16, v{vBias1}', Mark('waitregs', [f'v{POLL}', f'v{POLL+1}'])]

    def stream(self):
        o = self.o
        S = []
        def wstage(n):
            slot = n % 3; kp = n % 5; tok = f'S{n}'
            need = ['goW' if n == 0 and (o['early'] or o['wfast']) else 'go'] if n < 3 else [f'W{n-3}']
            base = sWB2 if n < 5 else sWB1
            xs, ws = [], []
            if n < 5:
                xn, xt = (['goX'], 'X0') if n == 0 else (need, tok)
                for u in range(2):
                    xs.append(Bundle([f's_add_u32 m0, s{sLX}, {slot*16384 + u*2048}', f's_add_u32 s{sT0}, s{sXB[u]}, s{sKX[kp]}'] + ([f's_add_u32 s{sT0}, s{sT0}, s{sKX[kp]}'] if o['xwide'] else []) + [
                                      I(f'buffer_load_dwordx4 v{vX[0]}, {srd(SX)}, s{sT0} offen lds', tok=xt)], 68, xn, xt))
                    xs.append(Bundle([I(f'buffer_load_dwordx4 v{vX[1]}, {srd(SX)}, s{sT0} offen offset:1024 lds', tok=xt)], 68, xn, xt))
            for g in range(2):
                for x in range(3):
                    pre = []
                    if x == 0:
                        pre = [f's_mul_i32 s{sT0}, s{sKX[kp]}, 1536', f's_add_u32 m0, s{sLW}, {slot*24576 + g*3072}', f's_add_u32 s{sT0}, s{sT0}, s{base}']
                        if g: pre.append(f's_add_u32 s{sT0}, s{sT0}, {16*3072}')
                    ws.append(Bundle(pre + [I(f'buffer_load_dwordx4 v{vW[x]}, {srd(SWIN)}, s{sT0} offen offset:{1024*x} lds', tok=tok)], o['wcost'], need, tok))
            return xs + ws
        def hstage(n):
            out = []
            for y in range(3):
                pre = [f's_add_u32 m0, s{sLH}, {H_BASE[n]}'] if y == 0 else []
                out.append(Bundle(pre + [I(f'buffer_load_dwordx4 v{vH[y]}, {srd(SH)}, s{sKX[n]} offen offset:{1024*y} lds', tok=f'H{n}')], 62, [f'W{7 + n//2}'], f'H{n}'))
            return out
        for n in range(8):
            S += wstage(n)
            if n == o['relpos']:
                S.append(Bundle([f's_add_u32 m0, s{sLW3}, {L_REL}',
                                 I(f'buffer_load_dwordx4 v{vZ[0]}, {srd(SWO)}, s{sREL} offen lds', tok='rel')], 68, ['go2'], 'rel'))
            if n == o['hpos']:
                if o['htouch']:
                    S.append(Bundle([I(f'buffer_load_dword v{POLL+3}, v{vHt}, {srd(SH)}, s{sKX[0]} offen', tok='htouch')], 100, ['go3'], 'htouch'))
            for tp, tc, grp, ngrp in o['tgrp']:
                if tp == n:
                    l = self.lab('tg')
                    S.append(Bundle([f's_and_b32 s{sT0}, s{sI}, {ngrp - 1}', f's_cmp_eq_u32 s{sT0}, {grp}', f's_cbranch_scc0 {l}',
                                     Mark('raw', [f'buffer_load_dword v{POLL+2}, v{vZ[1]}, {srd(SWSP)}, s{sTC} offen']), f'{l}:'], tc, ['go'], 'touch'))
            for part, (tp, tc) in enumerate(o['tparts']):
                if tp == n:
                    nl = 64 // len(o['tparts']); mask = ((1 << nl) - 1) << (nl * part)
                    S.append(Bundle([f's_mov_b32 exec_lo, {hx(mask)}', f's_mov_b32 exec_hi, {hx(mask >> 32)}',
                                     I(f'buffer_load_dword v{POLL+2}, v{vZ[1]}, {srd(SWSP)}, s{sTC} offen', tok='touch'), 's_mov_b64 exec, -1'], tc, ['go'], 'touch'))
            if n == 4:
                S.append(Bundle([f's_mul_i32 s{sT0}, s{sW}, 320', f's_add_u32 m0, s{sT0}, {L_GATE}', 's_mov_b64 exec, 0xfffff',
                                 I(f'buffer_load_dwordx4 v{vLin}, {srd(SGATE)}, s{sT0} offen lds', tok='gate'), 's_mov_b64 exec, -1'], 30, ['go2'], 'gate'))
        if o['tfine']:
            first, every, nparts, tc = o['tfine']
            pos = max(n for n, b in enumerate(S) if b.tok == f'S{first}') + 1
            nl = 64 // nparts
            for part in range(nparts):
                mask = ((1 << nl) - 1) << (nl * part)
                while pos < len(S) and not S[pos].items[0].text.startswith('s_') and False: pos += 1
                S.insert(min(pos, len(S)), Bundle([f's_mov_b32 exec_lo, {hx(mask)}', f's_mov_b32 exec_hi, {hx(mask >> 32)}',
                         I(f'buffer_load_dword v{POLL+2}, v{vZ[1]}, {srd(SWSP)}, s{sTC} offen', tok='touch'), 's_mov_b64 exec, -1'], tc, ['go'], 'touch'))
                pos += every + 1
        NB = o['nb']
        def consume(n):
            kp, u = n >> 2, n & 3; slot = n % NPS
            need = [f'XA{(8*n - AX)//16}'] if 8*n >= AX else []
            return Bundle([Mark('need', [f'P{n}'])] +
                          [I(f'ds_read_b128 {a(32*kp + 8*u + 4*k, 4)}, v{vRs[k]} offset:{slot*2048}', tok=f'Pr{n}') for k in range(2)], 0, need, f'Pc{n}')
        def punit(n):
            kp, u = n >> 2, n & 3; slot = n % NPS; tok = f'P{n}'; out = []
            pc = o['pcost'][n // 8]
            pre = [Mark('waitds', [f'Pr{n-NPS}'])] if n >= NPS else []
            out.append(Bundle(pre + [f's_add_u32 m0, s{sLS}, {slot*2048}', f's_xor_b32 s{sT0}, s{sSP[u]}, {128*kp}'] + ([f's_xor_b32 s{sT0}, s{sT0}, s{sDX}'] if kp >= 4 and o['mc2'] != 3 else []) + [
                                     I(f'buffer_load_dwordx4 v{vS[0]}, {srd(SWSP)}, s{sT0} offen lds', tok=tok)], pc, ['Xdead'], tok))
            out.append(Bundle([I(f'buffer_load_dwordx4 v{vS[1]}, {srd(SWSP)}, s{sT0} offen offset:1024 lds', tok=tok)], pc, ['Xdead'], tok))
            if n >= NB: out.append(consume(n - NB))
            return out
        cuts = dict(zip(o['pcut'], ('S8', 'S9', 'Ha', 'Hb', 'Hc')))
        assert len(cuts) == 5
        for n in range(32):
            what = cuts.get(n)
            if what == 'S8': S += wstage(8)
            if what == 'S9': S += wstage(9)
            if what == 'Ha': S += hstage(0) + hstage(1)
            if what == 'Hb': S += hstage(2) + hstage(3)
            if what == 'Hc': S += hstage(4)
            S += punit(n)
        tailc = [consume(n) for n in range(32 - NB, 32)]
        for sg in range(12):
            p, ga, pi = sg >> 2, (sg >> 1) & 1, sg & 1; slot = sg % 3; tok = f'Z{sg}'
            need = ['flagB0' if sg == 0 else 'flagB'] + ([f'Zf{sg-3}'] if sg >= 3 else [])
            for x in range(8):
                pre = []
                if x == 0:
                    pre += [f's_add_u32 m0, s{sLZ}, {slot*8192}', f's_xor_b32 s{sT0}, s{sZB}, {pi*32768 + ga*8192}']
                    if p: pre.append(f's_add_u32 s{sT0}, s{sT0}, {p*131072}')
                if x == 4:
                    pre += [f's_add_u32 m0, s{sLZ}, {slot*8192 + 4096}', f's_add_u32 s{sT0}, s{sT0}, 4096']
                S.append(Bundle(pre + [I(f'buffer_load_dwordx4 v{vLin}, {srd(SWS)}, s{sT0} offen offset:{(x%4)*1024} sc1 lds', tok=tok)], o['zcost'], need, tok))
                if sg == 0 and x % 2 == 1 and tailc: S.append(tailc.pop(0))
            if sg == 0: S += tailc
        def wpart(n):
            out = []
            for x in range(10):
                xx = 10*n + x
                if n == 0: m0, need = f's_add_u32 m0, s{sLW3}, {L_W0 + x*4096}', ['flagB']
                else: m0, need = f's_add_u32 m0, s{sLZ}, {(xx-10)*1024}', [f'Zf{9 + (xx-10)//8}']
                out.append(Bundle([m0, f's_add_u32 s{sT0}, s{sWBUF}, {xx*4096}',
                                   I(f'buffer_load_dwordx4 v{vLin}, {srd(SWS)}, s{sT0} offen sc1 lds', tok=f'O{n}')], o['zcost'], need, f'O{n}'))
            return out
        def hpart(n):
            out = []
            for k in range(8):
                kk = 8*n + k
                pre = [f's_add_u32 s{sT0}, s{sHB}, {kk*1024}'] if k % 4 == 0 else []
                out.append(Bundle(pre + [I(f'buffer_load_dwordx4 {self.hreg(kk)}, v{vLin}, {srd(SWS)}, s{sT0} offen offset:{(k%4)*1024} sc1', tok=f'h{n}')],
                                  o['zcost'], [f'flagC{n}'], f'h{n}'))
            return out
        tpart = [Bundle([f's_mul_i32 s{sT0}, s{sW}, 5120', f's_add_u32 m0, s{sT0}, {LC + x*1024}', f's_add_u32 s{sT0}, s{sT1S}, {x*1024}',
                         I(f'buffer_load_dwordx4 v{vLin}, {srd(SWS)}, s{sT0} offen sc1 lds', tok='T')], o['zcost'], ['Cfree', 'flagT'], 'T') for x in range(5)]
        if o['tearly']:
            def wfrag(xx):
                if xx < 5: m0, need = f's_add_u32 m0, s{sLW3}, {L_W0 + 20480 + xx*4096}', ['flagB']
                elif xx < 29: m0, need = f's_add_u32 m0, s{sLZ}, {(xx-5)*1024}', [f'Zf{9 + (xx-5)//8}']
                else: m0, need = f's_add_u32 m0, s{sLW3}, {LC}', ['Cfree']
                tok = f'O{xx // 10}'
                return Bundle([m0, f's_add_u32 s{sT0}, s{sWBUF}, {xx*4096}',
                               I(f'buffer_load_dwordx4 v{vLin}, {srd(SWS)}, s{sT0} offen sc1 lds', tok=tok)], o['zcost'], need, tok)
            tfr = [Bundle([f's_mul_i32 s{sT0}, s{sW}, 5120', f's_add_u32 m0, s{sT0}, {L_W0 + x*1024}', f's_add_u32 s{sT0}, s{sT1S}, {x*1024}',
                           I(f'buffer_load_dwordx4 v{vLin}, {srd(SWS)}, s{sT0} offen sc1 lds', tok='T')], o['zcost'], ['flagT'], 'T') for x in range(5)]
            W = [wfrag(x) for x in range(30)]
            h0 = hpart(0)
            for b, k in zip(h0, range(8)):
                if k % 4: b.items = norm([f's_add_u32 s{sT0}, s{sHB}, {(k - k % 4)*1024}']) + b.items
            seq = W[:20] + h0 + W[20:20+o['o2pre']]
            pos = o['tearly']
            for b in tfr:
                seq.insert(min(pos, len(seq)), b); pos += o['tmix'] + 1
            S += seq + hpart(1) + W[20+o['o2pre']:] + hpart(2)
            parts = None
        w0 = wpart(0) if not o['tearly'] else []
        for k, (zs, cnt) in enumerate(o['o0at']):
            pos = max(n for n, b in enumerate(S) if b.tok == f'Z{zs}') + 1
            for b in w0[:cnt]: b.need = set(b.need) | {f'Zf{zs-3}'}
            S[pos:pos] = w0[:cnt]; w0 = w0[cnt:]
        parts = {'h1': hpart(1), 'T': tpart, 'O2': wpart(2)[o['o2pre']:]}
        if not o['tearly']: S += w0 + wpart(1) + hpart(0) + wpart(2)[:o['o2pre']]
        if o['tearly']: pass
        elif o['tailord'] == 'mix':
            S += parts['h1']; a_, b_ = parts['T'], parts['O2']
            while a_ or b_:
                S += b_[:1] + a_[:1]; a_, b_ = a_[1:], b_[1:]
        else:
            for x in o['tailord'].split(','): S += parts[x]
        if not o['tearly']: S += hpart(2)
        for b in S:
            if b.tok and any(b.tok.startswith(x) for x in o['drop']):
                b.items = [it for it in b.items if not (isinstance(it, Ins) and it.kind == 'vm')]; b.cost = 0
        for b, cst in zip(S, o['cold']): b.cost = cst
        return S

    def hreg(self, kk):
        if kk < 8: return a(32*(kk >> 2) + 8*(kk & 3), 4)
        if kk < 16: return v([FR[0]+20, FR[0]+24, FR[0]+28, FR[1]+20, FR[1]+24, FR[1]+28, CB, CB+4][kk-8], 4)
        return v(Z2 + 4*(kk - 16), 4)

    def l_w(self, n):
        x, w = n >> 2, n & 3
        if self.o['tearly']:
            if x < 5: return L_W0 + 20480 + n*1024
            return w*24576 + (x - 5)*1024 if x < 29 else LC + w*1024
        return L_W0 + n*1024 if n < 40 else w*24576 + (x - 10)*1024

    def codepf(self, part, off=None):
        if not self.o['codepf2']: return []
        return [f's_getpc_b64 s[{SCODE}:{SCODE+1}]', f'L_cq{part}:', f's_mov_b32 s{SCODE+2}, L_code_end - L_cq{part}', f's_mov_b32 s{SCODE+3}, 0x20000',
                f's_and_b32 s{sT1}, s{sI}, {6 if self.o["two"] else 7}', f's_lshl_b32 s{sT1}, s{sT1}, {1 if self.o["two"] else 2}', f's_add_u32 s{sT1}, s{sT1}, s{sW}', f's_lshl_b32 s{sT1}, s{sT1}, {9 if self.o["two"] else 8}', f's_add_u32 s{sT1}, s{sT1}, {off or self.o["codepf2"]}',
                f'v_and_b32 v{vT}, {384 if self.o["two"] else 128}, v{vLin}', f'buffer_load_dword v{POLL+3}, v{vT}, {srd(SCODE)}, s{sT1} offen']

    def poll(self, load, regs, mask=None, pre=(), wait=None):
        chk, ok = self.lab('chk'), self.lab('ok')
        p = [Mark('waitregs', wait or regs), f'{chk}:'] + list(pre)
        p.append(f'v_cmp_ne_u32 vcc, s{sTAG}, {regs[0]}')
        for r in regs[1:]:
            p += [f'v_cmp_ne_u32 s[{sT3+1}:{sT3+2}], s{sTAG}, {r}'.replace(f's[{sT3+1}:{sT3+2}]', 's[62:63]'), 's_or_b64 vcc, vcc, s[62:63]']
        if mask is not None: p.append(f's_and_b64 vcc, vcc, {mask}')
        p.append(f's_cbranch_vccz {ok}')
        p.append(Mark('raw', [f's_cmp_eq_u32 s{sTO}, 0', f's_cbranch_scc1 {ok}', f's_sub_u32 s{sTO}, s{sTO}, 1'] + load +
                      ['s_waitcnt vmcnt(0)', f's_branch {chk}']))
        p.append(f'{ok}:')
        return G(p)

    def flag_store(self, toks, soff):
        return G(Mark('need', toks), f'v_mov_b32 v{vT}, 0', 's_mov_b64 exec, 1',
                 f'buffer_store_dword v{vTag}, v{vT}, {srd(SWS)}, s{soff} offen sc1', 's_mov_b64 exec, -1')

    def gemm(self, kind, extra=(), late=()):
        st0 = {'z2': 0, 'z1': 5, 'A': 0}[kind]
        def tok(n): return f'H{n}' if kind == 'A' else f'S{st0+n}'
        def xr(ks, hh, s): return a(AX + 16*ks + 8*hh + 4*s, 4)
        def reads(ks):
            n, k = ks >> 1, ks & 1; fr = FR[ks & 1]; out = []
            if kind == 'A':
                pre = [f'v_subrev_u32 v{vRx[k]}, 2048, v{vRx[k]}'] if n == 4 else []
                return pre + [f'ds_read_b128 {v(fr+4*T, 4)}, v{vRx[k]} offset:{H_BASE[n] - (2048 if n < 4 else 0) + T*2048}' for T in range(3)]
            slot = (st0 + n) % 3
            if kind == 'z1' and k == 0: out += [f'v_add_u32 v{vGt}, s{sKX[n]}, v{vGa}', f'v_add_u32 v{vGu}, s{sKX[n]}, v{vGb}']
            for hh in range(2):
                if kind == 'z2':
                    for s in range(2):
                        out.append(f'ds_read_b128 {xr(ks, hh, s)}, v{(vRx, vRp)[hh][k]} offset:{slot*16384 + (s ^ hh)*2048}')
                for pp in range(3):
                    for hf in range(2):
                        out.append(f'ds_read_b64_tr_b16 {v(fr+12*hh+4*pp+2*hf, 2)}, v{(vTe, vTo)[hh]} offset:{slot*24576 + k*6144 + hf*768 + 64*pp}')
                if kind == 'z1':
                    out.append(f'ds_read_b128 {v(fr+24+4*hh, 4)}, v{(vGt, vGu)[hh]} offset:{64*k}')
            return out
        def mf(ks):
            fr = FR[ks & 1]; out = []
            if kind == 'A':
                for T in range(3):
                    for hh in range(2):
                        for s in range(2):
                            out.append(mfma(v(ACC + 24*hh + 8*T + 4*s, 4), xr(ks, hh, s), v(fr+4*T, 4), '0' if ks == 0 else None))
                return out
            Z = Z2 if kind == 'z2' else Z1
            for hh in range(2):
                c = '0' if ks == 0 and hh == 0 else None
                for pp in range(3):
                    for s in range(2):
                        out.append(mfma(v(Z + 8*pp + 4*s, 4), v(fr+12*hh+4*pp, 4), xr(ks, hh, s), c))
                if kind == 'z1': out.append(mfma(v(GACC, 4), v(fr+24+4*hh, 4), xr(ks, hh, 0), c))
            return out
        p = []
        if kind == 'A':
            p += [Mark('need', ['H0', 'H1']), 's_barrier']
        else:
            p += [Mark('need', [tok(0)] + (['X0'] if kind == 'z2' else ['gate'])), 's_barrier']
        if kind == 'z2': p += self.stamp('S0 landed')
        p += reads(0)
        extra = norm(extra); per_blk = -(-len(extra) // 10)
        for ks in range(10):
            n, k = ks >> 1, ks & 1
            if k == 1: p += self.stamp(f'@1{kind} n{n}')
            if k == 1 and kind != 'A':
                if late and n < 4:
                    h = -(-len(late) // 4); p += late[n*h:(n+1)*h]
                p.append(Mark('waitds', None))
                if n < 4: p += [Mark('need', [tok(n+1)])]
                p += ['s_barrier', Mark('free', f'W{st0+n}')]
                if n == 4 and kind == 'z2': p.append(Mark('free', 'Xdead'))
            if kind == 'A' and ks == 3: p += [Mark('need', ['H2', 'H3', 'H4']), 's_barrier']
            fill = reads(ks+1) if ks < 9 else []
            m = mf(ks)
            ex = []
            if kind == 'z1' and ks == self.o['relat']: ex = self.relayout1()
            if kind == 'z1' and ks == self.o['relat'] + 2: ex = self.relayout2()
            if kind == 'z1' and ks == self.o['statat']: ex = ex + self.stat_loads()
            if extra: ex = ex + extra[ks*per_blk:(ks+1)*per_blk]
            p += slot(m, (fill, 0, 2 if len(fill) >= len(m) else 1), (ex, 0, 2))
            if kind == 'A': p.append(Mark('free', f'XA{ks}'))
        return p

    def relayout1(self):
        t0, t1 = TMP, TMP + 1
        return [f'v_bfe_u32 v{t0}, v{vL}, 2, 2', f'v_lshl_add_u32 v{t0}, v{vQ}, 3, v{t0}', f'v_lshlrev_b32 v{t0}, 5, v{t0}',
                f'v_and_b32 v{t1}, 3, v{vL}', f'v_lshl_add_u32 v{t0}, v{t1}, 3, v{t0}',
                f's_add_u32 s{sT1}, s{sLW3}, {L_REL}', f'v_add_u32 v{t0}, s{sT1}, v{t0}', Mark('need', ['rel']),
                f'ds_read_b64_tr_b16 {v(TMP+4, 2)}, v{t0}', f'ds_read_b64_tr_b16 {v(TMP+6, 2)}, v{t0} offset:128']

    def relayout2(self):
        return [I(f'buffer_store_dwordx4 {v(TMP+4, 4)}, v{vLin}, {srd(SWS)}, s{sFC} offen sc1', tok='relst'),
                f's_lshl_b32 s{sT1}, s{sI}, 1', f's_add_u32 s{sT1}, s{sT1}, s{sWH}', f's_lshl_b32 s{sT1}, s{sT1}, 12', f's_add_u32 s{sFC}, s{sT1}, {FLAGC}']

    def gelu(self, z, recv, tmp):
        p = []
        if self.o['pk']:
            for T in range(0, 24, 4):
                if recv is not None:
                    for x in (T, T + 2): p.append(f'v_pk_add_f32 {v(z+x, 2)}, {v(z+x, 2)}, {v(recv+x, 2)}')
                for x in (T, T + 2): p.append(f'v_pk_mul_f32 {v(tmp+x, 2)}, {v(z+x, 2)}, {v(z+x, 2)}')
                for x in (T, T + 2): p.append(f'v_pk_fma_f32 {v(tmp+x, 2)}, {v(tmp+x, 2)}, s[{sC1}:{sC1+1}], {v(vC0, 2)}')
                for x in (T, T + 2): p.append(f'v_pk_mul_f32 {v(tmp+x, 2)}, {v(tmp+x, 2)}, {v(z+x, 2)}')
                for x in range(T, T + 4): p.append(f'v_exp_f32 v{tmp+x}, v{tmp+x}')
                for x in (T, T + 2): p.append(f'v_pk_add_f32 {v(tmp+x, 2)}, {v(tmp+x, 2)}, 1.0 op_sel_hi:[1,0]')
                for x in range(T, T + 4): p.append(f'v_rcp_f32 v{tmp+x}, v{tmp+x}')
                for x in (T, T + 2): p.append(f'v_pk_mul_f32 {v(z+x, 2)}, {v(z+x, 2)}, {v(tmp+x, 2)}')
        else:
            for T in range(0, 24, 4):
                R = range(T, T + 4)
                for x in R: p.append(f'v_add_f32 v{z+x}, v{z+x}, v{recv+x}')
                for x in R: p.append(f'v_mul_f32 v{tmp+x}, v{z+x}, v{z+x}')
                for x in R: p.append(f'v_fma_f32 v{tmp+x}, v{tmp+x}, s{sC1}, v{vC0}')
                for x in R: p.append(f'v_mul_f32 v{tmp+x}, v{tmp+x}, v{z+x}')
                for x in R: p.append(f'v_exp_f32 v{tmp+x}, v{tmp+x}')
                for x in R: p.append(f'v_add_f32 v{tmp+x}, 1.0, v{tmp+x}')
                for x in R: p.append(f'v_rcp_f32 v{tmp+x}, v{tmp+x}')
                for x in R: p.append(f'v_mul_f32 v{z+x}, v{z+x}, v{tmp+x}')
        return p

    def gelu_s(self, z, n, tmp):
        p = []
        for T in range(0, n, 4):
            R = range(4)
            for x in R: p.append(f'v_mul_f32 v{tmp+x}, v{z+T+x}, v{z+T+x}')
            for x in R: p.append(f'v_fma_f32 v{tmp+x}, v{tmp+x}, s{sC1}, v{vC0}')
            for x in R: p.append(f'v_mul_f32 v{tmp+x}, v{tmp+x}, v{z+T+x}')
            for x in R: p.append(f'v_exp_f32 v{tmp+x}, v{tmp+x}')
            for x in R: p.append(f'v_add_f32 v{tmp+x}, 1.0, v{tmp+x}')
            for x in R: p.append(f'v_rcp_f32 v{tmp+x}, v{tmp+x}')
            for x in R: p.append(f'v_mul_f32 v{z+T+x}, v{z+T+x}, v{tmp+x}')
        return p

    def allred_q(self, x, t):
        return [f'v_mov_b32 v{t}, v{x}', f'v_permlane32_swap_b32 v{t}, v{x}', f'v_add_f32 v{x}, v{x}, v{t}',
                f'v_mov_b32 v{t}, v{x}', f'v_permlane16_swap_b32 v{t}, v{x}', f'v_add_f32 v{x}, v{x}, v{t}']

    def stats_publish(self):
        S = [TMP, TMP + 4]
        p = []
        for s in (1, 0):
            sm, sq = S[s], S[s] + 2; z = [Z2 + 8*pp + 4*s + x for pp in range(3) for x in (0, 2)]
            p += [f'v_pk_add_f32 {v(sm, 2)}, {v(z[0], 2)}, {v(z[1], 2)}', f'v_pk_mul_f32 {v(sq, 2)}, {v(z[0], 2)}, {v(z[0], 2)}',
                  f'v_pk_fma_f32 {v(sq, 2)}, {v(z[1], 2)}, {v(z[1], 2)}, {v(sq, 2)}']
            for r in z[2:]:
                p += [f'v_pk_add_f32 {v(sm, 2)}, {v(sm, 2)}, {v(r, 2)}', f'v_pk_fma_f32 {v(sq, 2)}, {v(r, 2)}, {v(r, 2)}, {v(sq, 2)}']
            if s == 1:
                p += [f'v_add_f32 v{sm}, v{sm}, v{sm+1}', f'v_add_f32 v{sm+1}, v{sq}, v{sq+1}', f'ds_write_b64 v{vMx}, {v(sm, 2)}', f'v_xor_b32 v{vMx}, 512, v{vMx}']
            else:
                p += [f'v_add_f32 v{sm}, v{sm}, v{sm+1}', f'v_add_f32 v{sq}, v{sq}, v{sq+1}']
        p += [f's_lshl_b32 s{sT1}, s{sI}, 2', f's_add_u32 s{sT1}, s{sT1}, s{sW}', f's_lshl_b32 s{sT1}, s{sT1}, 11', f's_add_u32 s{sT3}, s{sT1}, {STAT}',
              f's_lshl_b32 s{sT1}, s{sJ}, 8', f's_add_u32 s{sT1}, s{sT1}, s{sT3}', f's_xor_b32 s{sT4}, s{sT3}, 2048']
        s, q = TMP, TMP + 2
        p += [Mark('waitds', None), 's_barrier', f'ds_read_b64 {v(TMP+4, 2)}, v{vMx}', f'v_mov_b32 v{s+1}, s{sTAG}', f'v_mov_b32 v{q+1}, s{sTAG}',
              f'v_add_f32 v{s}, v{s}, v{TMP+4}', f'v_add_f32 v{q}, v{q}, v{TMP+5}']
        r1, r2 = self.allred_q(s, TMP + 4), self.allred_q(q, TMP + 5)
        for x, y in zip(r1, r2): p += [x, y]
        p.append(G('s_mov_b64 exec, 0xffff', f'buffer_store_dwordx4 {v(TMP, 4)}, v{vLin}, {srd(SWS)}, s{sT1} offen sc1', 's_mov_b64 exec, -1'))
        return p

    def clears(self, R=POLL + 4):
        p = []; A = p.append
        for x in range(4): A(f'v_mov_b32 v{R+x}, -1')
        A(f's_mul_i32 s{sT1}, s{sI}, 96'); A(f's_add_u32 s{sT1}, s{sT1}, s{sJ}'); A(f's_lshl_b32 s{sT1}, s{sT1}, 10'); A(f's_add_u32 s{sT1}, s{sT1}, {hx(HBUF + 8192)}')
        A(I(f'buffer_store_dwordx4 {v(R, 4)}, v{vHs}, {srd(SWS)}, s{sT1} offen sc1', tok='clr'))
        A(f's_add_u32 s{sT1}, s{sT1}, 8192')
        A(I(f'buffer_store_dwordx4 {v(R, 4)}, v{vHs}, {srd(SWS)}, s{sT1} offen sc1', tok='clr'))
        return p

    def stat_loads(self):
        return [f'buffer_load_dwordx4 {v(ACC + 8*s + 4*x, 4)}, v{vLin}, {srd(SWS)}, s{(sT3, sT4)[s]} offen offset:{1024*x} sc1' for s in range(2) for x in range(2)]

    def normalize_publish(self):
        t = TMP + 6
        chk = [f'v_xor_b32 v{t}, s{sTAG}, v{ACC+1}']
        T = [ACC + 1 + 2*x for x in range(8)]
        pre = [f'v_min3_u32 v{t}, v{T[0]}, v{T[1]}, v{T[2]}', f'v_max3_u32 v{t+1}, v{T[0]}, v{T[1]}, v{T[2]}',
               f'v_min3_u32 v{t}, v{t}, v{T[3]}, v{T[4]}', f'v_max3_u32 v{t+1}, v{t+1}, v{T[3]}, v{T[4]}',
               f'v_min3_u32 v{t}, v{t}, v{T[5]}, v{T[6]}', f'v_max3_u32 v{t+1}, v{t+1}, v{T[5]}, v{T[6]}',
               f'v_min_u32 v{t}, v{t}, v{T[7]}', f'v_max_u32 v{t+1}, v{t+1}, v{T[7]}']
        p = [self.poll(self.stat_loads(), [f'v{t}', f'v{t+1}'], pre=pre, wait=[f'v{x}' for x in T])]
        p += self.stamp('stats ok')
        inv = hx(f2u(1 / 768))
        R = [TMP, TMP + 2, TMP + 4, TMP + 6]
        for s in range(2):
            p += [f'v_add_f32 v{R[2*s]}, v{ACC+8*s}, v{ACC+8*s+4}', f'v_add_f32 v{R[2*s+1]}, v{ACC+8*s+2}, v{ACC+8*s+6}']
        for x in zip(*[self.allred_q(r, r + 1) for r in R]): p += list(x)
        for op in range(7):
            for s in range(2):
                m, q = R[2*s], R[2*s+1]
                p.append([f'v_mul_f32 v{m}, {inv}, v{m}', f'v_mul_f32 v{q}, {inv}, v{q}', f'v_fma_f32 v{q}, -v{m}, v{m}, v{q}', f'v_max_f32 v{q}, 0, v{q}',
                          f'v_add_f32 v{q}, {hx(f2u(1e-5))}, v{q}', f'v_rsq_f32 v{q}, v{q}', f'v_mul_f32 v{m}, -v{m}, v{q}'][op])
        p += [f's_mul_i32 s{sT1}, s{sJ}, {12*32768}', f's_add_u32 s{sT1}, s{sT1}, {hx(Z2B)}']
        for pp in range(3):
            b = Z2 + 8*pp; d = FR[1] + 4*pp
            for x in range(0, 8, 2):
                s = x >> 2
                p.append(f'v_pk_fma_f32 {v(b+x, 2)}, {v(b+x, 2)}, {v(R[2*s+1], 2)}, {v(R[2*s], 2)} op_sel_hi:[1,0,0]')
            for x in range(4): p.append(f'v_cvt_pk_bf16_f32 v{d+x}, v{b+2*x}, v{b+2*x+1}')
            p += [f'v_permlane16_swap_b32 v{d}, v{d+2}', f'v_permlane16_swap_b32 v{d+1}, v{d+3}']
            p.append(I(f'buffer_store_dwordx4 {v(d, 4)}, v{vZs}, {srd(SWS)}, s{sT1} offen sc1', tok='z2st'))
            if pp < 2: p.append(f's_add_u32 s{sT1}, s{sT1}, 131072')
        return p

    def flagB_addr(self):
        return [f's_lshl_b32 s{sT3}, s{sJ}, 2', f's_add_u32 s{sT3}, s{sT3}, s{sW}', f's_lshl_b32 s{sT3}, s{sT3}, 10', f's_add_u32 s{sT3}, s{sT3}, {FLAGB}',
                f's_lshl_b32 s{sT1}, s{sI}, 5', f's_add_u32 s{sFB}, s{sT1}, s{sT3}']

    def gate(self):
        return [f'v_mul_f32 v{vGate}, {hx(f2u(-math.log2(math.e)))}, v{GACC}', f'v_exp_f32 v{vGate}, v{vGate}',
                f'v_add_f32 v{vGate}, 1.0, v{vGate}', f'v_rcp_f32 v{vGate}, v{vGate}']

    def stepB_pre(self):
        t0, t1, t2 = TMP, TMP + 1, TMP + 2
        ad = []
        A = ad.append
        A(f'v_and_b32 v{t0}, 1, v{vQ}'); A(f'v_xor_b32 v{t0}, s{sW}, v{t0}'); A(f'v_lshrrev_b32 v{t1}, 1, v{vQ}'); A(f'v_lshl_add_u32 v{t0}, v{t0}, 1, v{t1}')
        A(f'v_lshrrev_b32 v{t1}, 1, v{vC}'); A(f'v_xor_b32 v{t0}, v{t0}, v{t1}'); A(f'v_lshlrev_b32 v{t0}, 4, v{t0}')
        A(f'v_lshl_add_u32 v{t0}, v{vC}, 7, v{t0}'); A(f's_mul_i32 s{sT1}, s{sKH}, 6144'); A(f'v_add_u32 v{vGa}, s{sT1}, v{t0}')
        cos, sin, nsin, ncos = self.cvar()
        for x in range(4):
            A(f'v_xor_b32 v{cos[1]+x}, v{vSgn}, v{cos[0]+x}'); A(f'v_xor_b32 v{sin[1]+x}, v{vSgn}, v{sin[0]+x}')
            A(f'v_xor_b32 v{nsin[0]+x}, 0x80008000, v{sin[0]+x}'); A(f'v_xor_b32 v{ncos[0]+x}, 0x80008000, v{cos[0]+x}')
        for x in range(4): A(f'v_xor_b32 v{nsin[1]+x}, 0x80008000, v{sin[1]+x}'); A(f'v_xor_b32 v{ncos[1]+x}, 0x80008000, v{cos[1]+x}')
        sw, sw2 = vTe, vZ[6]
        A(f's_mul_i32 s{sT4}, s{sW}, 5248'); A(f's_add_u32 s{sT4}, s{sT4}, {LC}')
        A(f'v_and_b32 v{t0}, 7, v{vC}'); A(f'v_mul_u32_u24 v{t0}, 656, v{t0}'); A(f'v_lshrrev_b32 v{t1}, 3, v{vC}'); A(f'v_mul_u32_u24 v{t1}, 160, v{t1}')
        A(f'v_lshl_add_u32 v{t0}, v{vQ}, 4, v{t0}'); A(f'v_add3_u32 v{sw}, s{sT4}, v{t0}, v{t1}')
        A(f'v_lshrrev_b32 v{t1}, 1, v{vQ}'); A(f'v_mul_u32_u24 v{t1}, 160, v{t1}'); A(f'v_add_u32 v{sw2}, v{sw}, v{t1}')
        go, sr = self.t1regs()
        for n in range(5):
            A(f'v_add_u32 v{t0}, {64*n}, v{vL}'); A(f'v_mul_u32_u24 v{t1}, 1639, v{t0}'); A(f'v_lshrrev_b32 v{t1}, 16, v{t1}')
            A(f'v_add_u32 v{t2}, v{t1}, v{vL}'); A(f'v_lshl_add_u32 v{sr[n]}, v{t2}, 4, s{sT4}')
        A(f's_mul_i32 s{sT1}, s{sW}, {8*163840}'); A(f's_mul_i32 s{sT2}, s{sI}, 320'); A(f's_add_u32 s{sT1}, s{sT1}, s{sT2}')
        A(f's_mul_i32 s{sT2}, s{sJ}, 10240'); A(f's_add_u32 s{sT1}, s{sT1}, s{sT2}'); A(f's_add_u32 s{sT4}, s{sT1}, {hx(T1B)}')
        A(f'v_and_b32 v{vGt}, 31, v{vL}'); A(f'v_lshlrev_b32 v{vGt}, 5, v{vGt}')
        return ad

    def t1regs(self):
        return vGo, [vRp[0], vRp[1], vGb, vGu, vMx]

    def cvar(self):
        return [CB, FR[0] + 16], [CB + 4, FR[0] + 20], [FR[0] + 24, FR[0] + 28], [FR[1] + 16, FR[1] + 20]

    def stepB(self, pollB):
        sw = vTe
        go, sr = self.t1regs()
        cos, sin, nsin, ncos = self.cvar()
        p = []
        for T in range(3):
            b = ACC + 8*T; d = Z2 + 4*T
            for x in range(0, 8, 2): p.append(f'v_pk_mul_f32 {v(b+x, 2)}, {v(b+x, 2)}, {v(vAl-1, 2)} op_sel:[0,1] op_sel_hi:[1,1]')
            for x in range(0, 8, 2): p.append(f'v_pk_fma_f32 {v(b+x, 2)}, {v(b+24+x, 2)}, {v(vBe, 2)}, {v(b+x, 2)} op_sel_hi:[1,0,1]')
            for x in range(4): p.append(f'v_cvt_pk_bf16_f32 v{d+x}, v{b+2*x}, v{b+2*x+1}')
            p += [f'v_permlane16_swap_b32 v{d}, v{d+2}', f'v_permlane16_swap_b32 v{d+1}, v{d+3}', f'ds_write_b128 v{vGa}, {v(d, 4)} offset:{L_ZT + T*2048}']
        p += self.stamp('@B ztw') + [pollB, Mark('waitds', None), 's_barrier', Mark('free', 'flagB0')] + self.stamp('@B bar')
        def rd(t):
            fr = FR[t & 1]; out = []
            for k in range(2):
                if t < 2: ar, o = vRb[k], L_ZT + t*2048
                elif t == 2: ar, o = vZ[2+k], L_ZT
                else: ar, o = vZ[4+k], L_ZT + (4-t)*2048
                out += [f'ds_read_b128 {v(fr+8*k, 4)}, v{ar} offset:{o}', f'ds_read_b128 {v(fr+8*k+4, 4)}, v{ar} offset:{o + 48*128}']
            return out
        def mf(t):
            fr = FR[t & 1]; re, im = v(ACC+8*t, 4), v(ACC+8*t+4, 4); out = []
            for k in range(2):
                zr, zi = v(fr+8*k, 4), v(fr+8*k+4, 4)
                out += [mfma(re, zr, v(cos[k], 4), '0' if k == 0 else None), mfma(im, zr, v(nsin[k], 4), '0' if k == 0 else None)]
            for k in range(2):
                zr, zi = v(fr+8*k, 4), v(fr+8*k+4, 4)
                out += [mfma(re, zi, v((sin if t < 3 else nsin)[k], 4)), mfma(im, zi, v((cos if t < 3 else ncos)[k], 4))]
            return out
        def pack(t):
            b = ACC + 8*t; d = Z2 + 4*t
            return [f'v_cvt_pk_bf16_f32 v{d+x}, v{b+2*x}, v{b+2*x+1}' for x in range(4)] + \
                   [f'ds_write_b128 v{vZ[6] if t == 2 else sw}, {v(d, 4)} offset:{64*t + (160 if t > 2 else 0)}']
        p += rd(0)
        for t in range(5):
            m = mf(t)
            if t == 2:
                flip = [f'v_xor_b32 v{FR[0]+8*k+4+x}, v{vZ[7]}, v{FR[0]+8*k+4+x}' for k in range(2) for x in range(4)]
                p += slot(m[:4], (flip, 0, 2), keep=0) + slot(m[4:], (rd(3), 0, 1), (pack(1), 0, 2), keep=0)
            else:
                p += slot(m, (rd(t+1) if t < 4 else [], 0, 1), (pack(t-1) if t else [], 3, 2))
        p += self.stamp('@B mf') + pack(4)
        p.append(Mark('waitds', None))
        for n in range(5): p.append(f'ds_read_b128 {v(Z2+4*n, 4)}, v{sr[n]} offset:{1024*n}')
        return p

    def t1_store(self):
        go, sr = self.t1regs()
        return [I(f'buffer_store_dwordx4 {v(Z2+4*n, 4)}, v{go[n]}, {srd(SWS)}, s{sT4} offen sc1', tok='t1st') for n in range(5 - int(self.o['not1']))]

    def z_addr(self):
        t0, t1, t2 = TMP, TMP + 1, TMP + 2
        p = [f'v_bfe_u32 v{t2}, v{vL}, 2, 2', f'v_lshl_add_u32 v{t0}, v{vQ}, 3, v{t2}', f'v_lshlrev_b32 v{t0}, 8, v{t0}',
             f'v_and_b32 v{t1}, 1, v{vQ}', f'v_lshl_add_u32 v{t0}, v{t1}, 7, v{t0}',
             f'v_bfe_u32 v{t1}, v{vL}, 1, 1', f'v_lshl_add_u32 v{t0}, v{t1}, 6, v{t0}',
             f'v_lshl_add_u32 v{t0}, v{t2}, 4, v{t0}', f'v_and_b32 v{t1}, 1, v{vL}', f'v_lshl_add_u32 v{t0}, v{t1}, 3, v{t0}',
             f's_bfe_u32 s{sT1}, s{sMK}, 0x20001', f's_lshl_b32 s{sT1}, s{sT1}, 4', f's_lshl_b32 s{sT2}, s{sKH}, 7', f's_or_b32 s{sT1}, s{sT1}, s{sT2}', f'v_xor_b32 v{t0}, s{sT1}, v{t0}',
             f'v_add_u32 v{vZ[0]}, s{sLZ}, v{t0}']
        for n in range(1, 8):
            T, c = n >> 2, n & 3
            p.append(f'v_xor_b32 v{vZ[n]}, {T*128 + c*16}, v{vZ[0]}')
        return p

    def phase2(self):
        RECV = Z2
        def reads(sg):
            fr = FR[sg & 1]; slot = sg % 3; out = [Mark('need', [f'Z{sg}'])]
            if sg in (2, 4, 6, 8, 10) and self.o['mc2'] != 3:
                out = [f'v_xor_b32 v{vZ[n]}, s{sDZ}, v{vZ[n]}' for n in range(8)] + out
            for c in range(4):
                for T in range(2):
                    for hf in range(2):
                        out.append(f'ds_read_b64_tr_b16 {v(fr + 8*c + 4*T + 2*hf, 2)}, v{vZ[4*T+c]} offset:{slot*8192 + hf*1024}')
            return out
        def acc(pp, T, u): return ACC + 32*(pp & 1) + 4*(4*T + u)
        def mf(sg):
            pp, ga, pi = sg >> 2, (sg >> 1) & 1, sg & 1; fr = FR[sg & 1]; out = []
            for c in range(4):
                kp = 4*ga + c
                for T, u in ([(T, u) for u in range(4) for T in range(2)] if self.o['uout'] else [(T, u) for T in range(2) for u in range(4)]):
                    if True:
                        out.append(mfma(v(acc(pp, T, u), 4), v(fr + 8*c + 4*T, 4), a(32*kp + 8*u + 4*pi, 4),
                                        (v(BQ + 4*u, 4) if T == 0 and u < 2 else '0') if (sg & 3) == 0 and c == 0 else None))
            return out
        def red_write(pp):
            return [I(f'ds_write_b128 v{vRd[(u & 2) + T - 1]}, {v(acc(pp, T, u), 4)} offset:{((u & 1) ^ T)*1024}', tok=f'rw{pp}') for T in range(2) for u in range(4) if (u & 2) + T and not (self.o['halfred'] and pp < 2 and u & 1)]
        def red_read():
            return [f'ds_read_b128 {v(RECV + 8*y + 4*T, 4)}, v{vExR} offset:{y*2048 + T*1024}' for y in range(3) for T in range(2)]
        def epi(pp, pk=False):
            own = acc(pp, 0, 0); out = []
            if pk:
                for y in range(3):
                    for x in range(0, 8, 2): out.append(f'v_pk_add_f32 {v(own+x, 2)}, {v(own+x, 2)}, {v(RECV+8*y+x, 2)}')
                for x in range(0, 8, 2): out.append(f'v_pk_mul_f32 {v(own+x, 2)}, {v(own+x, 2)}, {v(Z1+8*pp+x, 2)}')
            else:
                for y in range(3):
                    for x in range(8): out.append(f'v_add_f32 v{own+x}, v{own+x}, v{RECV+8*y+x}')
                for x in range(8): out.append(f'v_mul_f32 v{own+x}, v{own+x}, v{Z1+8*pp+x}')
            for x in range(4): out.append(f'v_cvt_pk_bf16_f32 v{TMP+4+x}, v{own+2*x}, v{own+2*x+1}')
            if pp:
                for x in range(4): out.append(f'v_min_u32 v{TMP+4+x}, -2, v{TMP+4+x}')
            out += [f'v_permlane16_swap_b32 v{TMP+4}, v{TMP+6}', f'v_permlane16_swap_b32 v{TMP+5}, v{TMP+7}']
            out.append(I(f'buffer_store_dwordx4 {v(TMP+4, 4)}, v{vHs}, {srd(SWS)}, s{sT1} offen sc1', tok=f'hst{pp}'))
            return out
        def haddr(pp):
            return [f's_mul_i32 s{sT1}, s{sI}, 96', f's_add_u32 s{sT1}, s{sT1}, s{sJ}', f's_lshl_b32 s{sT1}, s{sT1}, 10', f's_add_u32 s{sT1}, s{sT1}, {hx(HBUF + pp*8192)}']
        def clear():
            return [f'v_mov_b32 v{POLL+4+x}, -1' for x in range(4)] + haddr(2) + \
                   [I(f'buffer_store_dwordx4 {v(POLL+4, 4)}, v{vHs}, {srd(SWS)}, s{sT1} offen sc1', tok='hst0')]
        def flagc(pp):
            return [f's_lshl_b32 s{sT1}, s{sKH}, 3', f's_add_u32 s{sT1}, s{sT1}, s{sJ}', f's_lshl_b32 s{sT1}, s{sT1}, 7', f's_add_u32 s{sT1}, s{sT1}, {pp*2048}', f's_add_u32 s{sT1}, s{sT1}, s{sFC}', self.flag_store([f'hst{pp}', 'clr'], sT1)]
        p = []
        t1s = self.t1_store(); pre3 = self.p3_pre()
        if self.o['t1stag']:
            sites, src = self.o['t1stag']
            p += [f's_and_b32 s{sSTG}, s{dict(i=sI, j=sJ, w=sW)[src]}, {len(sites) - 1}']
        p += [x for x, at in zip(t1s, self.o['t1at']) if at < 0]
        p += reads(0)
        for sg in range(12):
            pp = sg >> 2
            p += [Mark('waitds', None), Mark('free', f'Zf{sg}')] + self.stamp(f'@2 blk{sg}')
            m = mf(sg)
            if sg == 11 and self.o['lastord']:
                own = {v(acc(2, 0, 0), 4), v(acc(2, 0, 1), 4)}
                dst = lambda x: x.split()[1].rstrip(',')
                order = [v(acc(2, T, u), 4) for T in range(2) for u in range(4) if (u & 2) + T]
                head = [x for x in m[:16] if dst(x) not in own]
                rest = [x for x in m[16:] if dst(x) not in own]
                rest.sort(key=lambda x: order.index(dst(x)))
                m = head + rest + [x for x in m if dst(x) in own]
            rd = reads(sg+1) if sg < 11 else []
            if sg in (4, 8):
                w = red_write(pp-1)
                st = [x for x, at in zip(t1s, self.o['t1at']) if at == sg]
                w = [x for pair in zip(w, st + [None]*6) for x in pair if x is not None]
                blk = m[:2] + sprinkle(m[2:17], w) + slot(m[17:20], (rd[:4], 0, 1))
                blk += [Mark('waitds', [f'rw{pp-1}']), 's_barrier']
                blk += slot(m[20:], (red_read() + rd[4:], 0, 2))
                pass
            elif sg in (5, 9):
                e = haddr(pp-1) + epi(pp-1)
                blk = slot(m, (rd, 12, 1), (e[:self.o['esplit']], 0, 2))
                carry = e[self.o['esplit']:]
                if sg == 9: blk = blk[:10] + self.ldC(0) + blk[10:]
                if sg == self.o['ftat']: blk = blk + [self.flag_store(['t1st'], sFB)]
                if sg == 9 and self.o['tearly']:
                    blk = blk[:self.o['tpat'][0]] + self.ldT() + blk[self.o['tpat'][0]:] + [self.poll(self.ldT(), [f'v{POLL+1}']), Mark('free', 'flagT')]
            else:
                ex = []
                if sg in (6, 10): ex = carry
                if self.o['gshadow'] and sg in (0, 1, 2, 3, 6, 10): ex = ex + self.gelu_s(Z1 + 4*(0, 1, 2, 3, 6, 10).index(sg), 4, POLL + 4)
                if sg == 7: ex = pre3[:len(pre3)//2]
                if sg == 11: ex = pre3[len(pre3)//2:]
                blk = slot(m, (rd, self.o['rdat'], 1), (ex, 0, 2))
                if sg < 4:
                    st = [x for x, at in zip(t1s, self.o['t1at']) if at == sg]
                    if self.o['t1stag']:
                        sites, src = self.o['t1stag']; st = []
                        if sg in sites:
                            for x in t1s:
                                l = self.lab('stag')
                                st.append(G(Mark('waitregs', x.r), f's_cmp_eq_u32 s{sSTG}, {sites.index(sg)}', f's_cbranch_scc0 {l}', Mark('raw', [x.text]), f'{l}:'))
                    if sg == self.o['clrat']: st = [G(self.clears(TMP + 4))] + st
                    blk = sprinkle(blk, [G(x) if isinstance(x, list) else x for x in st])
                if sg == self.o['ftat']: blk = blk + [self.flag_store(['t1st'] + (['Z8'] if self.o['t1stag'] else []), sFB)]
                if sg == 6: blk = blk + flagc(pp-1) + ([G(self.codepf(2))] if self.o['codepf2'] else [])
                if sg == 10: blk = blk[:12] + [self.poll(self.ldC(0), [f'v{POLL}']), Mark('free', 'flagC0')] + blk[12:30] + ([] if self.o['tearly'] else self.ldT()) + blk[30:]
                if sg == 11 and self.o['lastord']:
                    w = red_write(2)
                    blk = slot(m[:18], (ex, 0, 2)) + sprinkle(m[18:], [[]] + w) if False else slot(m[:18], (ex, 0, 2)) + [x for k in range(14) for x in [m[18+k]] + ([w[k//2]] if k % 2 == 1 and k//2 < 6 else [])]
                if sg in (7, 11): blk = blk[:4] + ['s_barrier'] + blk[4:]
            for pos in sorted(self.o['xbar'].get(sg, ()), reverse=True):
                idx = [n for n, x in enumerate(norm(blk)) if isinstance(x, Ins) and x.kind == 'mfma'][pos]
                blk = norm(blk); blk = blk[:idx] + [Ins('s_barrier')] + blk[idx:]
            p += blk
        p += self.stamp('p2 mfma done')
        e = epi(2, True)
        p += [Mark('free', 'flagC1')] + ([] if self.o['lastord'] else red_write(2)) + haddr(2) + ([] if self.o['tearly'] else [self.poll(self.ldT(), [f'v{POLL+1}']), Mark('free', 'flagT')]) + [Mark('waitds', None), 's_barrier'] + red_read() + e[:-1] + [Mark('flush', 'h1'), e[-1]]
        p += self.stamp('h2 stored')
        return p

    def ldC(self, pp):
        return [f'buffer_load_dword v{POLL}, v{vS[0]}, {srd(SWS)}, s{sFC} offen offset:{pp*2048} sc1']

    def ldT(self):
        return [f'buffer_load_dword v{POLL+1}, v{vS[1]}, {srd(SWS)}, s{sT3} offen sc1']

    def poll_addr(self):
        return [f'v_lshlrev_b32 v{vS[0]}, 7, v{vC}']

    def p3_pre(self):
        t0, t1, t2 = TMP, TMP + 1, TMP + 2
        p = [f's_sub_u32 s{sT2}, 7, s{sJ}', f's_min_u32 s{sT2}, s{sT2}, s{sJ}', f's_lshl_b32 s{sT2}, s{sT2}, 1', f's_and_b32 s{sT3}, s{sI}, 24',
             f's_add_u32 s{sT3}, s{sT3}, s{sT2}', f's_lshl_b32 s{sT3}, s{sT3}, 10', f's_add_u32 s{sT3}, s{sT3}, {FLAGT}']
        p += [f'v_add_u32 v{vX[1]}, 65536, v{vLin}', f'v_add_u32 v{vW[0]}, 131072, v{vLin}']
        p += [f'v_lshrrev_b32 v{t0}, 1, v{vQ}', f'v_bfe_u32 v{t1}, v{vL}, 2, 2', f'v_lshl_add_u32 v{t0}, v{t0}, 3, v{t1}', f'v_mul_u32_u24 v{t0}, 320, v{t0}',
              f'v_and_b32 v{t1}, 3, v{vL}', f'v_lshl_add_u32 v{t0}, v{t1}, 4, v{t0}', f'v_and_b32 v{t1}, 1, v{vQ}', f'v_lshl_add_u32 v{t0}, v{t1}, 3, v{t0}',
              f's_mul_i32 s{sT2}, s{sKH}, 160', f's_add_u32 s{sT2}, s{sT2}, {L_W0 if self.o["tearly"] else LC}', f'v_add_u32 v{vW[1]}, s{sT2}, v{t0}',
              f'v_bfe_u32 v{t1}, v{vL}, 1, 1', f'v_mul_u32_u24 v{t1}, {10240-160}, v{t1}', f'v_add_u32 v{vW[2]}, v{vW[1]}, v{t1}']
        sw, sr = vGa, vGt
        go = [vH[0], vH[1], vH[2]]
        p += [f's_mul_i32 s{sT2}, s{sW}, 2560', f's_add_u32 s{sT2}, s{sT2}, {L_W0 + (20480 if self.o["tearly"] else 0)}', f'v_add_u32 v{sr}, s{sT2}, v{vLin}',
              f'v_mul_u32_u24 v{t0}, 160, v{vC}', f'v_lshl_add_u32 v{t0}, v{vQ}, 3, v{t0}', f'v_add_u32 v{sw}, s{sT2}, v{t0}', f's_mov_b32 s{sT2}, 81920']
        for n in range(3):
            p += [f'v_add_u32 v{t0}, {64*n}, v{vL}', f'v_mul_u32_u24 v{t1}, 6554, v{t0}', f'v_lshrrev_b32 v{t1}, 16, v{t1}',
                  f'v_mul_u32_u24 v{t2}, 10, v{t1}', f'v_sub_u32 v{t0}, v{t0}, v{t2}', f'v_lshlrev_b32 v{t0}, 4, v{t0}', f'v_mad_u32_u24 v{go[n]}, v{t1}, s{sT2}, v{t0}']
        p += [f's_lshl_b32 s{sT4}, s{sWH}, 5', f's_add_u32 s{sT4}, s{sT4}, s{sKH}', f's_lshl_b32 s{sT4}, s{sT4}, 5', f's_add_u32 s{sT4}, s{sT4}, s{sI}',
              f's_mul_i32 s{sT4}, s{sT4}, 1280', f's_mul_i32 s{sT2}, s{sJ}, 160', f's_add_u32 s{sT4}, s{sT4}, s{sT2}']
        return p

    def phase3(self):
        accB, accA, accC = ACC, ACC + 20, ACC + 40
        o = self.o
        lo, hi, hi2, ta = vLin, vX[1], vW[0], vW[1]
        sw, sr = vGa, vGt
        go = [vH[0], vH[1], vH[2]]
        WR, TR_, PR = 64, 144, FR[0]
        def wreg(kk, t): return a(WR + 20*(kk & 3) + 4*t, 4)
        def rd(kk):
            out = []
            if kk > 23: return out
            for t in range(5):
                la = self.l_w(kk*5 + t)
                out.append(f'ds_read_b128 {wreg(kk, t)}, v{(lo, hi, hi2)[la >> 16]} offset:{la & 65535}')
            return out
        def ready(kk): return Mark('waitregs', [x for t in range(5) for x in regs_of(wreg(kk, t))])
        def mf(kk):
            d = accB if kk < 16 else accC
            return [mfma(v(d + 4*t, 4), wreg(kk, t), self.hreg(kk), '0' if kk in (0, 16) else None) for t in range(5)]
        p = [Mark('need', ['O0', 'O1', 'h0']), Mark('waitds', None), 's_barrier', Mark('free', 'Cfree')]
        p += self.stamp('O01 ok')
        p += rd(0) + rd(1)
        p.append(f'v_sub_f32 v{vBias}, 1.0, v{vGate}')
        mx = TMP
        def reload(n):
            rl = []
            for k in range(8):
                if k % 4 == 0: rl.append(f's_add_u32 s{sT2}, s{sHB}, {(8*n+k)*1024}')
                rl.append(f'buffer_load_dwordx4 {self.hreg(8*n+k)}, v{vLin}, {srd(SWS)}, s{sT2} offen offset:{(k%4)*1024} sc1')
            return rl
        def maxes(kk, first):
            r = regs_of(self.hreg(kk))
            return [f'v_max3_u32 v{mx}, {r[0]}, {r[1]}, {r[2]}' if first else f'v_max3_u32 v{mx}, v{mx}, {r[0]}, {r[1]}',
                    f'v_max_u32 v{mx}, v{mx}, {r[3]}' if first else f'v_max3_u32 v{mx}, v{mx}, {r[2]}, {r[3]}']
        allmax = [x for kk in range(8, 16) for x in maxes(kk, kk == 8)]
        trd = [f'ds_read_b64_tr_b16 {a(TR_ + 20*k + 4*t + 2*hf, 2)}, v{vW[2] if t == 2 else ta} offset:{k*5120 + hf*1280 + t*64 + (10240-160 if t > 2 else 0)}'
               for k in range(2) for t in range(5) for hf in range(2)]
        b2 = o['bar2at']; nt = -(-20 // (16 - b2))
        for kk in range(16):
            if kk % 2 == 0: p += self.stamp(f'@3 kk{kk}')
            if kk == 8:
                c1, o1 = self.lab('chk'), self.lab('ok')
                p.append(G(f'{c1}:', f'v_cmp_eq_u32 vcc, -1, v{mx}', f's_cbranch_vccz {o1}',
                           Mark('raw', [f's_cmp_eq_u32 s{sTO}, 0', f's_cbranch_scc1 {o1}', f's_sub_u32 s{sTO}, s{sTO}, 1'] + reload(1) + ['s_waitcnt vmcnt(0)'] + allmax + [f's_branch {c1}']),
                           f'{o1}:'))
            if kk == b2: p += [Mark('need', ['O2', 'T']), 's_barrier'] + self.stamp('@3 O2,T')
            if kk == o['h2at']: p.append(Mark('free', 'flagC2'))
            ex = allmax[4*(kk-4):4*(kk-3)] if 4 <= kk < 8 else []
            if kk >= b2: ex = trd[nt*(kk-b2):nt*(kk-b2+1)]
            p += [ready(kk)] + slot(mf(kk), (rd(kk+2), 0, 1), (ex, 0, 1), keep=0)
        p += self.stamp('@3 k16')
        p += [Mark('free', 'flagC2'), Mark('waitds', None)]
        mA = [mfma(v(accA + 4*t, 4), a(TR_ + 20*k + 4*t, 4), v(CF + 4*k, 4), '0' if k == 0 else None) for k in range(2) for t in range(5)]
        p += slot(mA, ([f'v_mul_f32 v{PR+x}, v{vBias}, v{accB+x}' for x in range(20)], 2, 2), keep=0)
        p.append(Mark('flush', 'h2'))
        p += self.stamp('@3 prepoll')
        again, retry, done = self.lab('again'), self.lab('retry'), self.lab('done')
        fin = [f'v_fma_f32 v{FR[1]+x}, v{vGate}, v{accA+x}, v{PR+x}' for x in range(20)]
        q = [f'{again}:']
        for kk in range(16, 24):
            ex = fin[3*(kk-16):3*(kk-15)] + maxes(kk, kk == 16)
            if o['chkmid'] and kk == 20: q += [f'v_cmp_eq_u32 vcc, -1, v{mx}', f's_cbranch_vccnz {retry}']
            q += [ready(kk)] + slot(mf(kk), (rd(kk+2), 0, 1), (ex, 0, 1 if kk < 22 else 2), keep=0)
        q += [f'v_cmp_eq_u32 vcc, -1, v{mx}', f's_cbranch_vccz {done}']
        allmax2 = [x for kk in range(16, 24) for x in maxes(kk, kk == 16)]
        q.append(Mark('raw', [f'{retry}:', 's_waitcnt vmcnt(0) lgkmcnt(0)', 's_nop 7', f's_cmp_eq_u32 s{sTO}, 0', f's_cbranch_scc1 {done}', f's_sub_u32 s{sTO}, s{sTO}, 1'] + reload(2) +
                      ['s_waitcnt vmcnt(0)'] + allmax2 + [f'v_cmp_eq_u32 vcc, -1, v{mx}', 's_nop 0', f's_cbranch_vccnz {retry}'] + rd(16) + rd(17) +
                      ['s_waitcnt lgkmcnt(0)', f's_branch {again}', f'{done}:', 's_nop 5']))
        p.append(G(q))
        p += self.stamp('h2 mfma done')
        for t in range(5):
            for x in (0, 2): p.append(f'v_pk_fma_f32 {v(accB+4*t+x, 2)}, {v(accC+4*t+x, 2)}, {v(vBias, 2)}, {v(FR[1]+4*t+x, 2)} op_sel_hi:[1,0,1]')
            if o['errscale']:
                p += [f'v_mul_f32 v{accB+4*t+x}, {hx(f2u(1.0 + o["errscale"]))}, v{accB+4*t+x}' for x in range(4)]
            p += [f'v_cvt_pk_bf16_f32 v{FR[0]+2*t}, v{accB+4*t}, v{accB+4*t+1}', f'v_cvt_pk_bf16_f32 v{FR[0]+2*t+1}, v{accB+4*t+2}, v{accB+4*t+3}',
                  f'ds_write_b64 v{sw}, {v(FR[0]+2*t, 2)} offset:{32*t}']
        p.append(Mark('waitds', None))
        for n in range(3): p.append(f'ds_read_b128 {v(FR[1]+4*n, 4)}, v{sr} offset:{1024*n}')
        for n in range(2): p.append(f'buffer_store_dwordx4 {v(FR[1]+4*n, 4)}, v{go[n]}, {srd(SOUT)}, s{sT4} offen{o["outfl"]}')
        p.append(G('s_mov_b32 exec_hi, 0', f'buffer_store_dwordx4 {v(FR[1]+8, 4)}, v{go[2]}, {srd(SOUT)}, s{sT4} offen{o["outfl"]}', 's_mov_b64 exec, -1'))
        return p

    def dump(self, name, reg, n):
        if self.o['dbg'] != name: return []
        p = [f's_lshl_b32 s{sT1}, s{sI}, 3', f's_add_u32 s{sT1}, s{sT1}, s{sJ}', f's_lshl_b32 s{sT1}, s{sT1}, 2', f's_add_u32 s{sT1}, s{sT1}, s{sW}',
             f's_mul_i32 s{sT1}, s{sT1}, {n*256}', f's_add_u32 s{sT1}, s{sT1}, {hx(DBGB)}']
        for x in range(0, n, 4):
            p += [f'buffer_store_dwordx4 {v(reg+x, 4)}, v{vLin}, {srd(SWS)}, s{sT1} offen', f's_add_u32 s{sT1}, s{sT1}, 1024']
        return [G(p)]

    def build(self):
        o = self.o
        c = []
        c += self.setup1()
        su = norm(self.setup2() + self.tag())
        c += su[:o['pre']]
        c += self.gemm('z2', late=su[o['pre']:])
        c += self.stamp('z2 gemm done')
        c += self.gelu(Z2, None, ACC)
        c += self.dump('z2', Z2, 24)
        c += self.stats_publish()
        c += self.stamp('stats published')
        if o['clrat'] == -1: c += self.clears()
        if o['cp3']: c.append(G(self.codepf(3, o['cp3'])))
        c += self.gemm('z1')
        c += self.stamp('z1 gemm done')
        c += self.normalize_publish()
        if o['cp4']: c.append(G(self.codepf(4, o['cp4'])))
        c += self.dump('z2n', Z2, 24)
        c += [f's_mul_i32 s{sT1}, s{sKH}, 6144', f's_add_u32 s{sT1}, s{sT1}, 2048'] + [f'v_add_u32 v{vRx[k]}, s{sT1}, v{vRb[k]}' for k in range(2)]
        c += self.flagB_addr()
        c += self.gate()
        gA = self.gemm('A', self.stepB_pre())
        c += gA[:o['fbat']] + [self.flag_store(['z2st', 'relst'], sFB)] + self.stamp('flagB stored') + gA[o['fbat']:]
        c += self.stamp('stepA done')
        c += [G(self.codepf(1))] if o['codepf2'] else []
        ldB = [f'buffer_load_dword v{POLL}, v{vGt}, {srd(SWS)}, s{sT3} offen sc1']
        c += [f's_mul_i32 s{sLZ}, s{sW}, 24576'] + ldB + self.stepB(self.poll(ldB, [f'v{POLL}']))
        c += self.stamp('T1 stored')
        c += self.z_addr()
        c += [f's_lshl_b32 s{sT1}, s{sW}, 3', f's_add_u32 s{sT1}, s{sT1}, s{sJ}', f's_lshl_b32 s{sT1}, s{sT1}, 5', f's_add_u32 s{sT1}, s{sT1}, s{sI}',
              f's_lshl_b32 s{sT1}, s{sT1}, 5', f's_add_u32 s{sFB}, s{sT1}, {FLAGT}']
        c.append(Mark('flush', 'Pc31'))
        c += [Mark('waitds', None), 's_barrier', Mark('free', 'flagB')]
        c += self.stamp('flagB ok')
        c += [f'v_mov_b32 v{BQ+x}, v{vBias if x < 4 else vBias1}' for x in range(8)] + self.poll_addr() + [f'v_lshlrev_b32 v{vS[1]}, 5, v{vL}']
        if not o['gshadow']: c += self.gelu(Z1, None, ACC + 32)
        c += self.dump('z1', Z1, 24)
        c += self.stamp('z1 gelu done')
        def epoch():
            e = self.lab('ep')
            c.append(G(f's_or_b32 s{sT1}, s{sI}, s{sJ}', f's_or_b32 s{sT1}, s{sT1}, s{sW}', f's_cmp_eq_u32 s{sT1}, 0', f's_cbranch_scc0 {e}',
                       Mark('raw', [f'v_mov_b32 v{vT}, 0', 's_mov_b64 exec, 1', f'buffer_store_dword v{vTag}, v{vT}, {srd(SWS)}, 0 offen sc1', 's_mov_b64 exec, -1']), f'{e}:'))
        if o['epearly']: epoch()
        c += self.phase2()
        c += self.phase3()
        if not o['epearly']: epoch()
        if o['stamps']:
            c += [G('s_waitcnt vmcnt(0)')] + self.stamp('end')
            st = [f's_lshl_b32 s{sT1}, s{sI}, 3', f's_add_u32 s{sT1}, s{sT1}, s{sJ}', f's_lshl_b32 s{sT1}, s{sT1}, 2', f's_add_u32 s{sT1}, s{sT1}, s{sW}',
                  f's_lshl_b32 s{sT1}, s{sT1}, 7', f's_add_u32 s{sT1}, s{sT1}, {hx(STAMP)}', f'v_mov_b32 v{vT}, 0', 's_mov_b64 exec, 1']
            for n in range(0, 20, 4):
                for x in range(4): st.append(f'v_mov_b32 v{TMP+x}, s{STAMP0+n+x}' if n + x < self.nstamp else f'v_mov_b32 v{TMP+x}, 0')
                st += [f'buffer_store_dwordx4 {v(TMP, 4)}, v{vT}, {srd(SWS)}, s{sT1} offen offset:{4*n}', 's_nop 1']
            c.append(G(st))
        if o['dbgst']:
            e = self.lab('dbg')
            st = ['s_mov_b64 exec, -1', f's_or_b32 s{sT1}, s{sI}, s{sJ}', f's_or_b32 s{sT1}, s{sT1}, s{sW}', f's_cmp_eq_u32 s{sT1}, 0', f's_cbranch_scc0 {e}',
                  f's_load_dwordx2 s[{SGATE}:{SGATE+1}], s[0:1], 96', 's_waitcnt lgkmcnt(0)', f's_mov_b32 s{SGATE+2}, 256', f'v_mov_b32 v{vT}, 0', 's_mov_b64 exec, 1']
            for n in range(0, 16, 4):
                for x in range(4): st += [f's_sub_u32 s{sT1}, s{STAMP0+n+x}, s{STAMP0}', f'v_mov_b32 v{TMP+x}, s{sT1}'] if n + x < self.nstamp else [f'v_mov_b32 v{TMP+x}, 0']
                st += [f'buffer_store_dwordx4 {v(TMP, 4)}, v{vT}, {srd(SGATE)}, 0 offen offset:{4*n}', 's_nop 1']
            c.append(G(Mark('raw', st), f'{e}:'))
        if o['skew']:
            op = 'max' if o['skew'] == 'max' else 'min'
            st = [f's_mov_b32 s{sT1}, {hx(STAMP+0x30000)}', 's_mov_b64 exec, -1', f'buffer_load_dwordx4 {v(TMP,4)}, v{vLin}, {srd(SWS)}, s{sT1} offen sc1', 's_waitcnt vmcnt(0)']
            for x in range(4): st.append(f'v_subrev_u32 v{TMP+x}, s{STAMP0}, v{TMP+x}')
            st += [f'v_{op}_i32 v{TMP}, v{TMP}, v{TMP+1}', f'v_{op}_i32 v{TMP+2}, v{TMP+2}, v{TMP+3}', f'v_{op}_i32 v{TMP}, v{TMP}, v{TMP+2}', 's_nop 1', f's_mov_b32 s{sT2}, 0']
            for l in range(64): st += [f'v_readlane_b32 s{sT1}, v{TMP}, {l}', 's_nop 0', f's_{op}_i32 s{sT2}, s{sT2}, s{sT1}']
            st += [f's_abs_i32 s{sT2}, s{sT2}', f's_add_u32 s{STAMP0+1}, s{STAMP0}, s{sT2}']
            c.append(G(Mark('raw', st)))
        if o['amp']:
            na, nb, k = o['amp']; e, l = self.lab('amp'), self.lab('spin')
            ia, ib = self.stamp_names.index(na), self.stamp_names.index(nb)
            c.append(G(Mark('raw', [f's_or_b32 s{sT1}, s{sI}, s{sJ}', f's_or_b32 s{sT1}, s{sT1}, s{sW}', f's_cmp_eq_u32 s{sT1}, 0', f's_cbranch_scc0 {e}',
                   f's_sub_u32 s{sT1}, s{STAMP0+ib}, s{STAMP0+ia}', f's_mul_i32 s{sT1}, s{sT1}, {k}', f's_min_u32 s{sT1}, s{sT1}, 100000',
                   f'{l}:', 's_memrealtime s[62:63]', 's_waitcnt lgkmcnt(0)', f's_sub_u32 s{sT2}, s62, s{STAMP0+self.nstamp-1}', f's_cmp_lt_u32 s{sT2}, s{sT1}', f's_cbranch_scc1 {l}']), f'{e}:'))
        self.log = []
        if o['pure']:
            self.nstamp = 1; self.stamp_names = ['entry']
            st = self.stream(); cc = norm(self.setup1())
            cc = [x for x in cc if not (isinstance(x, Mark) and x.kind in ('flush', 'emit'))]
            flat = []
            for x in cc: flat += x.arg if isinstance(x, Mark) and x.kind == 'group' else [x]
            nf = o['purefirst']
            first = [it for b in st[:nf] for it in b.items if isinstance(it, Ins)]
            for x in norm(self.setup2()): flat += x.arg if isinstance(x, Mark) and x.kind == 'group' else [x]
            cut = max(n for n, x in enumerate(flat) if isinstance(x, Ins) and x.text.startswith(f's_lshl_b32 s{sLW3}')) + 1
            items = flat[:cut] + first + ([Ins('s_waitcnt vmcnt(0)'), Ins(o['clk'] + ' s[90:91]'), Ins('s_waitcnt lgkmcnt(0)'), Ins('s_mov_b32 s2, s90')] if nf > 10 else []) + flat[cut:] + [Ins(f's_mul_i32 s{sLZ}, s{sW}, 24576')]
            last = None; k = 0
            for b in st[nf:]:
                grp = b.tok[0] if b.tok[0] != 'S' else ('S' if int(b.tok[1:]) < 5 else 'W')
                if grp != last and grp in 'WPZO' and f'to {grp}' not in self.stamp_names:
                    for x in self.stamp(f'to {grp}'): items += x.arg
                last = grp
                for it in b.items:
                    if isinstance(it, Ins) and it.kind != 'ds':
                        items.append(it)
                        if it.kind == 'vm':
                            k += 1; items.append(Ins(f's_waitcnt vmcnt({o["pure"]})'))
            tail = [Ins('s_waitcnt vmcnt(0)')]
            for x in self.stamp('end'): tail += x.arg
            stt = [f's_lshl_b32 s{sT1}, s{sI}, 3', f's_add_u32 s{sT1}, s{sT1}, s{sJ}', f's_lshl_b32 s{sT1}, s{sT1}, 2', f's_add_u32 s{sT1}, s{sT1}, s{sW}',
                   f's_lshl_b32 s{sT1}, s{sT1}, 7', f's_add_u32 s{sT1}, s{sT1}, {hx(STAMP)}', f'v_mov_b32 v{vT}, 0', 's_mov_b64 exec, 1']
            for n in range(0, 8, 4):
                for x in range(4): stt.append(f'v_mov_b32 v{TMP+x}, s{STAMP0+n+x if (n + x != 1 or nf <= 10) else 2}' if n + x < self.nstamp else f'v_mov_b32 v{TMP+x}, 0')
                stt += [f'buffer_store_dwordx4 {v(TMP, 4)}, v{vT}, {srd(SWS)}, s{sT1} offen offset:{4*n}', 's_nop 1']
            items = [x for x in items if isinstance(x, Ins)] + tail + norm(stt)
            self.lines = finalize(items)
            return self.lines
        items = merge(c, self.stream(), window=o['window'], lat=o['lat'], log=self.log, overdue=o['overdue'])
        if o['nocomp']:
            items = [it for it in items if not (isinstance(it, Ins) and any(it.op.startswith(x) for x in o['nocomp']))]
        if o['trace']:
            na, nb, step, reg = o['trace']; out = []; on = False; k = 0; cnt = 0
            def point():
                nonlocal k
                r = []
                if k: r.append(I(f'v_writelane_b32 v{reg + (k-1)//64}, s{44 + 2*((k-1) % 4)}, {(k-1) % 64}'))
                r += [Mark('anchor', f'T{k}'), I(f's_memtime s[{44 + 2*(k % 4)}:{45 + 2*(k % 4)}]', tok='trace')]
                k += 1
                return r
            for it in items:
                if isinstance(it, Mark) and it.kind == 'anchor':
                    if it.arg == na: on = True; out += point(); cnt = 0
                    if it.arg == nb and on:
                        on = False; out += point(); out.append(I('s_waitcnt lgkmcnt(0)')); out += point()[:1]
                        out += norm([f's_lshl_b32 s52, s{sI}, 3', f's_add_u32 s52, s52, s{sJ}', f's_lshl_b32 s52, s52, 2', f's_add_u32 s52, s52, s{sW}',
                                     's_lshl_b32 s52, s52, 10', f's_add_u32 s52, s52, {hx(DBGB)}', f'buffer_store_dwordx4 {v(reg, 4)}, v{vLin}, {srd(SWS)}, s52 offen', 's_nop 1'])
                out.append(it)
                if on and isinstance(it, Ins) and it.kind != 'label' and (not o['nocomp'] or it.kind == 'vm'):
                    cnt += 1
                    if cnt >= step and k < 254: out += point(); cnt = 0
            items = out; self.ntrace = k - 1
        lines = finalize(items)
        self.lines = lines
        return lines

    def text(self):
        lines = self.build()
        if self.o['B'] is not None:
            ob = dict(self.o); ob.update(self.o['B']); ob['two'] = True; ob['B'] = None
            lb = Gen(**ob).build()
            k = lines.index('; @@ split'); assert lb[:k] == lines[:k]
            import re as _re
            ren = lambda l: _re.sub(r'\b(L_(?!end\b|code_end\b)\w+)\b', lambda m: m.group(1) + '_B', l)
            lines = lines[:k] + [f's_bitcmp1_b32 s2, {self.o["gbit"]}', 's_cbranch_scc1 L_second', 'L_first:'] + lines[k:] + \
                    ['s_endpgm', '.p2align 7', 'L_second:'] + [ren(l) for l in lb[k:]]
        head = open('gated_mix__spectral_fnet__mixer_gmlp__prompt.s.ref').read().split('; Override launch geometry')[0]
        body = '\n'.join(('' if l.endswith(':') or l.startswith('.') else '    ') + l for l in lines if not l.startswith('; @@'))
        return f'''{head};
; One persistent launch, 256 workgroups (one per CU) of 4 waves; straight-line code emitted by my generator script.
; Workgroup (i, j): rows t = 32*m + i (m = 0..63), column block j of 8.
;   phase 1  z2, z1 = gelu(x w_in) tiles, gate, and the hidden-dimension DFT of the tile's rows (MFMA, bf16 in / f32 acc).
;            LayerNorm statistics are exchanged between the 8 column blocks (tagged 16-byte records in d_ws).
;            The sequence DFT (constant DFT matrices) is factored 2048 = 64 x 32: the radix-64 stage with its twiddles
;            runs on the workgroup's own rows, the radix-32 stage in phase 3; the hidden DFT uses the conjugate symmetry
;   phase 2  g = w_sp z2n + b with the 64 x 2048 slice of w_sp resident in AGPRs, z2n streamed through LDS; h = z1 * g.
;   phase 3  out = gate * y + (1 - gate) * (h w_out).
; Hand-offs go through d_ws with write-through (sc1) stores and sc1 loads.  Flags carry a tag derived from an epoch word
; that every launch reads on entry and advances on exit; the last two h blocks are recognised by overwriting a marker that
; this launch wrote first.  Every wait is bounded.  Workgroup numbering is used for L2 locality only.
; @launch grid=(256,1,1) block=(256,1,1) lds={LDS_BYTES}
.amdgcn_target "amdgcn-amd-amdhsa--gfx950"
.text
.globl {KNAME}
.p2align 8
.type {KNAME},@function
{KNAME}:
{body}
L_end:
    s_endpgm
L_code_end:
{'.set CODE_BYTES, L_code_end - L_pc' if self.o['codepf'] else ''}
{'.set CODE_DELTA, L_second - L_first' if self.o['B'] is not None else ''}
.section .rodata,"a"
.p2align 6
.amdhsa_kernel {KNAME}
  .amdhsa_next_free_vgpr 512
  .amdhsa_next_free_sgpr 102
  .amdhsa_accum_offset 256
  .amdhsa_group_segment_fixed_size 0
  .amdhsa_kernarg_size 112
  .amdhsa_user_sgpr_count 2
  .amdhsa_user_sgpr_kernarg_segment_ptr 1
  .amdhsa_system_sgpr_workgroup_id_x 1
  .amdhsa_float_denorm_mode_32 3
.end_amdhsa_kernel
'''


if __name__ == '__main__':
    kw = {}
    out = 'gated_mix__spectral_fnet__mixer_gmlp__prompt.s'
    for x in sys.argv[1:]:
        k, val = x.split('=', 1)
        if k == 'out': out = val
        else: kw[k] = eval(val)
    g = Gen(**kw)
    open(out, 'w').write(g.text())
    for e in g.log: print(e)
```

```python
import sys, struct, math
from dsl import *

KNAME = 'gated_mix__spectral_fnet__mixer_gmlp__prompt_kernel'

DEFAULT = dict(stamps=False, rot=True, window=90, lat=600, codepf=True, dbg=None, pk=True, amp=None, gk='z2', bdel=0, slim=True, hgen=None, shift=0, al8=0, tgrp=(), two=False, B=None, gbit=3, epearly=False, t1stag=None, errscale=0, kst=0, xwide=False, purefirst=10, mc2=0, jitter=0, pure=0, lastord=False, xbar={}, tlb=(), tfine=None, relat=5, relpos=7, halfred=False, early=0, cpos=1, cp3=0, cp4=0, coff=256, bar2at=13, chkmid=True, clrat=-1, uout=True, hzero=True, t1at=(3, 3, 3, 3, 3), tailord='mix', rdat=8, gshadow=True, nocomp=(), codepf2=2048, o2pre=2, o0at=(), pre=450, drop=(), outfl='', cold=[30]*5 + [1200] + [150]*6, tparts=(), hpos=5, statat=6, trace=None, not1=False, nb=4, overdue=30, esplit=45, touch=1800, htouch=False, fbat=60, h2at=13, smask=(1, 2, 0), pcost=(150, 60, 100, 60), pcut=(5, 6, 7, 9, 11), wcost=90, sset=None, zcost=64, probe2=None, probe=None, clk='s_memrealtime', skew=None, dbgst=False)


def f2u(x):
    return struct.unpack('<I', struct.pack('<f', x))[0]


def hx(x):
    return hex(x & 0xffffffff)


EPOCH = 0
FLAGB = 0x8000
FLAGT = 0x10000
STAT = 0x20000
FLAGC = 0xC0000
STAMP = 0x60000
WBUF = 0x100000
Z2B = 0x200000
HBUF = 0x500000
T1B = 0x800000
DBGB = 0xE00000
WS_SIZE = 0x2000000
OOB = 0x40000000

LA = 0
LB = 73728
LC = 139264
NPS = 6
L_REL = LB + 57344
L_GATE = LB + 61440
L_ZT = 12288
L_W0 = 98304
LDS_BYTES = 163840
L_W = [LB, None, None]

SX, SWIN, SWSP, SH, SWS, SOUT, SWO, SGATE, SBSP, SCODE = 4, 8, 12, 16, 20, 24, 28, 32, 36, 40
sW, sI, sJ, sKH, sTAG, sTO = 64, 65, 66, 67, 68, 69
sKX = [70, 71, 72, 73, 74]
sWB2, sWB1, sT0, sT1, sT2 = 75, 76, 77, 78, 79
sLX, sLW, sLH, sLS = 80, 81, 82, 83
sXB = [84, 85]
sSP = [86, 87, 88, 89]
sZB, sHB = 90, 91
sC1 = 92
sWH = 94
sT3, sT4 = 95, 96
sFC = 97
sWBUF = 98
sT1S = 99
sREL = 101
sMK = 3
sDX = 61
sDZ = 59
sSTG = 58
sTC = 60
sFB = 2
sLZ = sREL
sLW3 = 100
STAMP0 = 44


def srd(b): return f's[{b}:{b+3}]'


vT = 0; vL = 1
vX = [2, 3]; vW = [4, 5, 6]; vH = [7, 8, 9]; vS = [10, 11]
vLin = 12; vRb = [13, 14]; vRx = [15, 16]; vRs = [17, 18]; vTe, vTo = 19, 20
vGa, vGt = 21, 22; vExW, vExR = 23, 24; vRd = [25, 26, 27]
vBias, vGate, vZs, vTag = 28, 29, 30, 31
vZ = list(range(32, 40))
TMP = 40
POLL = 48
CF = 56
ACC = 64
FR = [128, 160]
Z2 = 192; Z1 = 216
CB = 240
vC0 = 248
vSgn = 250
vQ, vC = 251, 252
vAl, vBe = 253, 254
vL4 = 255
AX = 96
vRp = [ACC + 48, ACC + 49]
vGb, vGu = ACC + 50, ACC + 51
GACC = ACC + 52
vMx = ACC + 56
vHb = [ACC + 40, ACC + 41, ACC + 42]
vHw = ACC + 43
AH = 36
BQ = CB
vHt = ACC + 62
vGo = [ACC + 57 + x for x in range(5)]
vBias1 = vExW
vHs = vL4
H_BASE = [24576, 36864, 49152, 61440, 0]


def v(n, k=1): return f'v{n}' if k == 1 else f'v[{n}:{n+k-1}]'
def a(n, k=1): return f'a{n}' if k == 1 else f'a[{n}:{n+k-1}]'
def vr(n, k): return [f'v{x}' for x in range(n, n + k)]


def mfma(d, A, B, c=None):
    return f'v_mfma_f32_16x16x32_bf16 {d}, {A}, {B}, {d if c is None else c}'


class Gen:
    def __init__(self, **kw):
        self.o = dict(DEFAULT); self.o.update(kw)
        if self.o['B'] is not None: self.o['two'] = True
        self.nlab = 0; self.nstamp = 0; self.stamp_names = []

    def lab(self, s):
        self.nlab += 1
        return f'L_{s}_{self.nlab}'

    def stamp(self, name):
        if self.o['trace']: return [Mark('anchor', name)]
        if self.o['jitter']:
            if name == 'start':
                return [G('s_memtime s[46:47]', 's_waitcnt lgkmcnt(0)', f's_mul_i32 s45, s2, 97', f's_add_u32 s45, s45, s{sW}', 's_mul_i32 s45, s45, 0x9e3779b1', 's_xor_b32 s45, s45, s46')]
            l = self.lab('jit')
            return [G('s_mul_i32 s45, s45, 1664525', 's_add_u32 s45, s45, 1013904223', 's_lshr_b32 s46, s45, 28', 's_cmp_lt_u32 s46, 13', f's_cbranch_scc1 {l}',
                      f's_sleep {self.o["jitter"]}', f'{l}:')]
        if not self.o['stamps']: return []
        ss = self.o['sset']
        if name != 'end' and ((ss is None and name.startswith('@')) or (ss is not None and not any(name.startswith(x) for x in ss))): return []
        n = self.nstamp; self.nstamp += 1; self.stamp_names.append(name)
        assert n < 14
        return [G(self.o['clk'] + ' s[62:63]', 's_waitcnt lgkmcnt(0)', f's_mov_b32 s{STAMP0+n}, s62')]

    def setup1(self):
        o = self.o
        p = []
        A = p.append
        if o['stamps']: A(f"{o['clk']} s[{sC1}:{sC1+1}]")
        A('s_cmp_ge_u32 s2, 256'); A('s_cbranch_scc1 L_end')
        A(f's_load_dwordx2 s[{SX}:{SX+1}], s[0:1], 0')
        A('s_load_dwordx16 s[48:63], s[0:1], 48')
        A('s_load_dwordx4 s[44:47], s[0:1], 24')
        def cp1():
            A(f's_getpc_b64 s[{SCODE}:{SCODE+1}]'); A('L_pc:'); A(f's_mov_b32 s{SCODE+2}, CODE_BYTES'); A(f's_mov_b32 s{SCODE+3}, 0x20000')
            A('v_lshrrev_b32 v50, 3, v0'); A('v_lshlrev_b32 v50, 7, v50')
            if o['two']:
                A(f's_bitcmp1_b32 s2, {o["gbit"]}'); A(f's_cselect_b32 s{sT2}, CODE_DELTA, 0')
                A(I(f'buffer_load_dword v{POLL+2}, v50, {srd(SCODE)}, s{sT2} offen offset:{o["coff"] + 384}', tok='touch'))
                A('v_and_b32 v50, 0x380, v50')
            A(I(f'buffer_load_dword v{POLL}, v50, {srd(SCODE)}, 0 offen offset:{o["coff"]}'))
        def cp2():
            if o['two']:
                assert o['gbit'] == 3
                A('v_lshrrev_b32 v51, 4, v0'); A('v_lshlrev_b32 v51, 7, v51'); A(f's_lshr_b32 s{sT1}, s2, 4'); A(f's_lshl_b32 s{sT1}, s{sT1}, 11'); A(f's_add_u32 s{sT1}, s{sT1}, {4096+o["coff"]}')
                A(f's_bitcmp1_b32 s2, 3'); A(f's_cselect_b32 s{sT2}, CODE_DELTA, 0'); A(f's_add_u32 s{sT1}, s{sT1}, s{sT2}')
            else:
                A('v_lshrrev_b32 v51, 5, v0'); A('v_lshlrev_b32 v51, 7, v51'); A(f's_lshr_b32 s{sT1}, s2, 3'); A(f's_lshl_b32 s{sT1}, s{sT1}, 10'); A(f's_add_u32 s{sT1}, s{sT1}, {4096+o["coff"]}')
            A(I(f'buffer_load_dword v{POLL+1}, v51, {srd(SCODE)}, s{sT1} offen'))
        if o['codepf'] and o['cpos'] < 2: cp1()
        if o['codepf'] and o['cpos'] < 1: cp2()
        t0, t1, t2 = TMP, TMP + 1, TMP + 2
        A('v_lshrrev_b32 v2, 6, v0')
        A(f'v_and_b32 v{vL}, 63, v0')
        A(f'v_readfirstlane_b32 s{sW}, v2')
        A(f's_bfe_u32 s{sI}, s2, 0x20001'); A(f's_lshl_b32 s{sI}, s{sI}, 3')
        A(f's_bfe_u32 s{sT3}, s2, 0x30003'); A(f's_add_u32 s{sI}, s{sI}, s{sT3}')
        A(f's_lshr_b32 s{sT4}, s2, 6')
        A(f's_and_b32 s{sKH}, s{sW}, 1'); A(f's_lshr_b32 s{sWH}, s{sW}, 1')
        A(f'v_lshrrev_b32 v{vQ}, 4, v{vL}')
        A(f'v_and_b32 v{t0}, 7, v{vL}'); A(f'v_xor_b32 v{t0}, v{t0}, v{vQ}'); A(f'v_lshlrev_b32 v{t0}, 4, v{t0}')
        A(f'v_lshrrev_b32 v{t1}, 3, v{vL}')
        A(f's_mov_b32 s{sT1}, 81920')
        A(f'v_mad_u32_u24 v{vX[0]}, v{t1}, s{sT1}, v{t0}')
        A(f'v_xor_b32 v{vX[1]}, 64, v{vX[0]}'); A(f'v_add_u32 v{vX[1]}, {8*81920-1024}, v{vX[1]}')
        if o['xwide']:
            A(f'v_and_b32 v{t2}, 15, v{vL}'); A(f'v_lshlrev_b32 v{t2}, 4, v{t2}'); A(f'v_mad_u32_u24 v{vX[0]}, v{vQ}, s{sT1}, v{t2}'); A(f'v_add_u32 v{vX[1]}, {4*81920-1024}, v{vX[0]}')
        if o['rot']:
            ri, mi, rj, mj = o['rot'] if isinstance(o['rot'], tuple) else (0, 1, 0, 2)
            if ri: A(f's_lshr_b32 s{sT3}, s{sT3}, {ri}')
            if mi != 1: A(f's_mul_i32 s{sT3}, s{sT3}, {mi}')
            A(f's_lshr_b32 s{sT2}, s{sT4}, {rj}'); A(f's_mul_i32 s{sT2}, s{sT2}, {mj}'); A(f's_add_u32 s{sT3}, s{sT3}, s{sT2}')
            A(f's_mul_i32 s{sT2}, s{sT3}, 52'); A(f's_lshr_b32 s{sT2}, s{sT2}, 8'); A(f's_mul_i32 s{sT2}, s{sT2}, 5')
            A(f's_sub_u32 s{sT3}, s{sT3}, s{sT2}'); A(f's_lshl_b32 s{sKX[0]}, s{sT3}, 7')
        else:
            A(f's_mov_b32 s{sKX[0]}, 0')
        A(f's_mul_i32 s{sT1}, s{sI}, 1280'); A(f's_mul_i32 s{sT2}, s{sWH}, {32*40960}'); A(f's_add_u32 s{sT1}, s{sT1}, s{sT2}')
        A(f's_mul_i32 s{sT2}, s{sKH}, {40960+640}'); A(f's_add_u32 s{sXB[0]}, s{sT1}, s{sT2}')
        A(f's_mul_i32 s{sT2}, s{sKH}, {40960-640}'); A(f's_sub_u32 s{sT1}, s{sT1}, s{sT2}'); A(f's_add_u32 s{sXB[1]}, s{sT1}, 40960')
        if o['xwide']:
            A(f's_mul_i32 s{sT2}, s{sKH}, 640'); A(f's_sub_u32 s{sXB[0]}, s{sXB[0]}, s{sT2}'); A(f's_add_u32 s{sXB[1]}, s{sXB[0]}, {8*81920}')
        A(f's_lshl_b32 s{sLX}, s{sW}, 12'); A(f's_add_u32 s{sLX}, s{sLX}, {LB}')
        A(f's_mov_b32 s{SX+2}, {2048*1280}'); A(f's_mov_b32 s{SX+3}, 0x20000')
        A(f'v_lshl_add_u32 v{vS[0]}, v{t1}, 18, v{t0}')
        A(f's_and_b32 s{sJ}, s2, 1'); A(f's_lshl_b32 s{sJ}, s{sJ}, 2'); A(f's_add_u32 s{sJ}, s{sJ}, s{sT4}')
        if o['early']:
            A(f'v_lshlrev_b32 v{vLin}, 4, v{vL}'); A(f'v_mul_u32_u24 v{t0}, 5462, v{vL}'); A(f's_movk_i32 s{sT1}, 2880')
            A(f'v_add_u32 v{t1}, {64*5462}, v{t0}'); A(f'v_add_u32 v{t2}, {128*5462}, v{t0}')
            for x, t in enumerate((t0, t1, t2)):
                A(f'v_lshrrev_b32 v{t}, 16, v{t}'); A(f'v_mad_u32_u24 v{vW[x]}, v{t}, s{sT1}, v{vLin}')
            A(f'v_and_b32 v{t0}, 32, v{vL}'); A(f'v_xor_b32 v{vW[1]}, v{vW[1]}, v{t0}'); A(f'v_xor_b32 v{vW[2]}, 32, v{vW[2]}')
            A(f's_mul_i32 s{sT1}, s{sKH}, {320*3072}'); A(f's_mul_i32 s{sT2}, s{sWH}, {32*3072}'); A(f's_add_u32 s{sT1}, s{sT1}, s{sT2}')
            A(f's_mul_i32 s{sT2}, s{sJ}, 192'); A(f's_add_u32 s{sWB1}, s{sT1}, s{sT2}'); A(f's_add_u32 s{sWB2}, s{sWB1}, 1536')
            A(f's_mul_i32 s{sT1}, s{sKH}, 12288'); A(f's_mul_i32 s{sT2}, s{sWH}, 6144'); A(f's_add_u32 s{sLW}, s{sT1}, s{sT2}')
            A(f's_mov_b32 s{SWIN+2}, {640*3072}'); A(f's_mov_b32 s{SWIN+3}, 0x20000')
        if o['kst'] == 1: A(f"{o['clk']} s[90:91]")
        A('s_waitcnt lgkmcnt(0)')
        if o['kst'] == 2: A(f"{o['clk']} s[90:91]"); A('s_waitcnt lgkmcnt(0)')
        if o['kst']: A(f's_sub_u32 s{sWBUF}, s90, s{sC1}')
        if o['early']: A(f's_mov_b64 s[{SWIN}:{SWIN+1}], s[48:49]')
        head = [G(p), Mark('free', 'goX'), Mark('flush', 'X0')]
        if o['early']: head += [Mark('free', 'goW'), Mark('emit', o['early'])]
        p = []
        A = p.append
        if o['clrat'] == -3:
            A(f'v_and_b32 v{vC}, 15, v{vL}')
            A(f'v_and_b32 v{t0}, 1, v{vQ}'); A(f'v_xor_b32 v{t0}, s{sW}, v{t0}'); A(f'v_mul_u32_u24 v{t0}, 24576, v{t0}')
            A(f'v_lshrrev_b32 v{t1}, 1, v{vQ}'); A(f'v_lshl_add_u32 v{t0}, v{t1}, 8, v{t0}'); A(f'v_lshl_add_u32 v{t0}, v{vC}, 4, v{t0}')
            A(f's_lshl_b32 s{sT1}, s{sKH}, 9'); A(f'v_add_u32 v{vHs}, s{sT1}, v{t0}')
            A(f's_mov_b64 s[{SWS}:{SWS+1}], s[62:63]'); A(f's_mov_b32 s{SWS+2}, {WS_SIZE}'); A(f's_mov_b32 s{SWS+3}, 0x20000')
            p += self.clears()
        if o['codepf'] and o['cpos'] >= 2: cp1()
        if o['codepf'] and o['cpos'] >= 1: cp2()
        if not o['early']:
            A(f'v_lshlrev_b32 v{vLin}, 4, v{vL}'); A(f'v_mul_u32_u24 v{t0}, 5462, v{vL}'); A(f's_movk_i32 s{sT1}, 2880')
            A(f'v_add_u32 v{t1}, {64*5462}, v{t0}'); A(f'v_add_u32 v{t2}, {128*5462}, v{t0}')
            for x, t in enumerate((t0, t1, t2)):
                A(f'v_lshrrev_b32 v{t}, 16, v{t}'); A(f'v_mad_u32_u24 v{vW[x]}, v{t}, s{sT1}, v{vLin}')
            A(f'v_and_b32 v{t0}, 32, v{vL}'); A(f'v_xor_b32 v{vW[1]}, v{vW[1]}, v{t0}'); A(f'v_xor_b32 v{vW[2]}, 32, v{vW[2]}')
            A(f's_mul_i32 s{sT1}, s{sKH}, {320*3072}'); A(f's_mul_i32 s{sT2}, s{sWH}, {32*3072}'); A(f's_add_u32 s{sT1}, s{sT1}, s{sT2}')
            A(f's_mul_i32 s{sT2}, s{sJ}, 192'); A(f's_add_u32 s{sWB1}, s{sT1}, s{sT2}'); A(f's_add_u32 s{sWB2}, s{sWB1}, 1536')
            A(f's_mul_i32 s{sT1}, s{sKH}, 12288'); A(f's_mul_i32 s{sT2}, s{sWH}, 6144'); A(f's_add_u32 s{sLW}, s{sT1}, s{sT2}')
        A(f's_mov_b64 s[{SWIN}:{SWIN+1}], s[48:49]'); A(f's_mov_b32 s{SWIN+2}, {640*3072}'); A(f's_mov_b32 s{SWIN+3}, 0x20000')
        for n in range(1, 5):
            A(f's_add_u32 s{sKX[n]}, s{sKX[n-1]}, 128'); A(f's_cmp_ge_u32 s{sKX[n]}, 640'); A(f's_cselect_b32 s{sKX[n]}, 0, s{sKX[n]}')
        A(f'v_and_b32 v{vC}, 15, v{vL}')
        if o['tparts'] or o['tgrp'] or o['tfine'] or not o['slim']:
            A(f'v_lshlrev_b32 v{t0}, 18, v{vC}'); A(f'v_lshl_add_u32 v{vZ[1]}, v{vQ}, 7, v{t0}')
            A(f's_lshl_b32 s{sT1}, s{sWH}, 5'); A(f's_add_u32 s{sT1}, s{sT1}, s{sKH}'); A(f's_lshl_b32 s{sT1}, s{sT1}, 5'); A(f's_add_u32 s{sT1}, s{sT1}, s{sI}')
            A(f's_lshl_b32 s{sT1}, s{sT1}, 2'); A(f's_and_b32 s{sT2}, s{sJ}, 3'); A(f's_add_u32 s{sT1}, s{sT1}, s{sT2}'); A(f's_lshl_b32 s{sT1}, s{sT1}, 1')
            A(f's_lshr_b32 s{sT2}, s{sJ}, 2'); A(f's_add_u32 s{sT1}, s{sT1}, s{sT2}'); A(f's_lshl_b32 s{sTC}, s{sT1}, 9')
        A(f's_mov_b64 s[{SWSP}:{SWSP+1}], s[50:51]'); A(f's_mov_b32 s{SWSP+2}, {2048*4096}'); A(f's_mov_b32 s{SWSP+3}, 0x20000')
        A(f'v_xor_b32 v{vS[1]}, 64, v{vS[0]}'); A(f'v_add_u32 v{vS[1]}, {8*262144-1024}, v{vS[1]}')
        A(f's_mul_i32 s{sLH}, s{sW}, 3072')
        A(f's_mul_i32 s{sLS}, s{sW}, {NPS*2048}'); A(f's_add_u32 s{sLS}, s{sLS}, {LB + 8192}')
        A(f's_lshl_b32 s{sLW3}, s{sW}, 10')
        if o['probe2']:
            fl, n = o['probe2']
            st = [f's_load_dwordx2 s[{SCODE}:{SCODE+1}], s[0:1], 8', 's_waitcnt lgkmcnt(0)', f's_mov_b32 s{SCODE+2}, {2048*4096}', f's_mov_b32 s{SCODE+3}, 0x20000',
                  f's_lshl_b32 s{sT1}, s2, 2', f's_add_u32 s{sT1}, s{sT1}, s{sW}', f's_lshl_b32 s{sT1}, s{sT1}, 13',
                  f's_memrealtime s[{sHB-1}:{sHB}]', 's_waitcnt lgkmcnt(0)', f's_mov_b32 s{sT2}, s{sHB-1}']
            for x in range(n):
                st += [f'buffer_load_dwordx4 {v(ACC+4*x,4)}, v{vLin}, {srd(SCODE)}, s{sT1} offen{fl}', f's_add_u32 s{sT1}, s{sT1}, 1024']
            st += ['s_waitcnt vmcnt(0)', 's_barrier', f's_memrealtime s[{sHB-1}:{sHB}]', 's_waitcnt lgkmcnt(0)', f's_sub_u32 s{sWBUF}, s{sHB-1}, s{sT2}']
            p.append(Mark('raw', st))
        if o['probe']:
            off, stride, first = o['probe']; e = self.lab('probe')
            st = [f's_mov_b32 s{sFC}, 0', f's_or_b32 s{sT1}, s{sI}, s{sJ}', f's_or_b32 s{sT1}, s{sT1}, s{sW}', f's_cmp_eq_u32 s{sT1}, 0', f's_cbranch_scc0 {e}',
                  f's_load_dwordx2 s[{SCODE}:{SCODE+1}], s[0:1], {off}', 's_waitcnt lgkmcnt(0)', f's_mov_b32 s{SCODE+2}, {17*stride+first+4096}', f's_mov_b32 s{SCODE+3}, 0x20000', f'v_mov_b32 v{TMP}, 0',
                  f's_mov_b32 s{sT1}, {first}', f'buffer_load_dword v{TMP+1}, v{TMP}, {srd(SCODE)}, s{sT1} offen', 's_waitcnt vmcnt(0)',
                  f's_memrealtime s[{sHB-1}:{sHB}]', 's_waitcnt lgkmcnt(0)', f's_mov_b32 s{sT2}, s{sHB-1}']
            for n in range(16):
                st += [f's_add_u32 s{sT1}, s{sT1}, {stride}', f'buffer_load_dword v{TMP+1}, v{TMP}, {srd(SCODE)}, s{sT1} offen', 's_waitcnt vmcnt(0)']
            st += [f's_memrealtime s[{sHB-1}:{sHB}]', 's_waitcnt lgkmcnt(0)', f's_sub_u32 s{sFC}, s{sHB-1}, s{sT2}']
            p.append(Mark('raw', st)); p.append(f'{e}:'); p.append(f's_mov_b32 s{sWBUF}, s{sFC}')
        return head + [G(p), Mark('anchor', 'split'), Mark('free', 'go')]

    def setup2(self):
        o = self.o
        p = []
        A = p.append
        for b, src, n in ((SBSP, 52, 4096), (SWO, 54, 768*1280), (SGATE, 56, 1280), (SOUT, 58, 2048*1280), (SWS, 62, WS_SIZE)):
            A(f's_mov_b64 s[{b}:{b+1}], s[{src}:{src+1}]'); A(f's_mov_b32 s{b+2}, {n}'); A(f's_mov_b32 s{b+3}, 0x20000')
        A(G(f's_cmp_eq_u32 s{sWH}, 0', f's_cselect_b64 s[{SH}:{SH+1}], s[44:45], s[46:47]'))
        A(f's_mov_b32 s{SH+2}, {640*1280}'); A(f's_mov_b32 s{SH+3}, 0x20000')
        A(Mark('free', 'goG'))
        if o['stamps']:
            self.nstamp = 1; self.stamp_names = ['entry']
            A(f's_mov_b32 s{STAMP0}, s{sC1}')
            if o['probe'] or o['probe2'] or o['kst']:
                self.nstamp = 2; self.stamp_names = ['entry', 'probe']
                A(f's_add_u32 s{STAMP0+1}, s{sC1}, s{sWBUF}')
            if o['skew']:
                A(f'v_mov_b32 v{TMP}, s{sC1}'); A(f's_lshl_b32 s{sT1}, s2, 2'); A(f's_add_u32 s{sT1}, s{sT1}, {hx(STAMP+0x30000)}'); A(f'v_mov_b32 v{TMP+1}, 0')
                A(f'buffer_store_dword v{TMP}, v{TMP+1}, {srd(SWS)}, s{sT1} offen sc1')
        p += self.stamp('start')
        t0, t1, t2, t3 = TMP, TMP + 1, TMP + 2, TMP + 3
        A(f'v_mov_b32 v{t3}, 0')
        A(I(f'buffer_load_dword v{vTag}, v{t3}, {srd(SWS)}, 0 offen sc1'))
        A(f's_lshl_b32 s{sT1}, s{sWH}, 5'); A(f's_add_u32 s{sT1}, s{sT1}, s{sKH}'); A(f's_lshl_b32 s{sT1}, s{sT1}, 5'); A(f's_add_u32 s{sT1}, s{sT1}, s{sI}')
        A(f's_lshl_b32 s{sT1}, s{sT1}, 1')
        A(f'v_lshlrev_b32 v{t2}, 7, v{vC}')
        A(I(f'buffer_load_ushort v{vBias}, v{t2}, {srd(SBSP)}, s{sT1} offen'))
        A(f's_xor_b32 s{sT1}, s{sT1}, 64')
        A(I(f'buffer_load_ushort v{vBias1}, v{t2}, {srd(SBSP)}, s{sT1} offen'))
        if o['tlb']:
            A(f'v_and_b32 v{t0}, 7, v{vL}'); A(f'v_lshlrev_b32 v{t0}, 21, v{t0}')
            for b in o['tlb']:
                A(I(f'buffer_load_dword v{POLL+2}, v{t0}, {srd(b)}, 0 offen', tok='touch'))
        A(f'v_lshrrev_b32 v{t0}, 1, v{vC}'); A(f'v_xor_b32 v{t0}, v{t0}, v{vQ}'); A(f'v_lshlrev_b32 v{t0}, 4, v{t0}')
        A(f'v_lshl_add_u32 v{vRb[0]}, v{vC}, 7, v{t0}'); A(f'v_xor_b32 v{vRb[1]}, 64, v{vRb[0]}')
        A(f's_xor_b32 s{sT1}, s{sLX}, 4096')
        for k in range(2):
            A(f'v_add_u32 v{vRx[k]}, s{sLX}, v{vRb[k]}'); A(f'v_add_u32 v{vRp[k]}, s{sT1}, v{vRb[k]}'); A(f'v_add_u32 v{vRs[k]}, s{sLS}, v{vRb[k]}')
        A(f'v_bfe_u32 v{t0}, v{vL}, 2, 2'); A(f'v_lshl_add_u32 v{t0}, v{vQ}, 3, v{t0}'); A(f'v_mul_u32_u24 v{t0}, 192, v{t0}')
        A(f'v_and_b32 v{t1}, 3, v{vL}'); A(f'v_lshl_add_u32 v{t0}, v{t1}, 3, v{t0}')
        A(f'v_xor_b32 v{t1}, s{sKH}, v{vQ}'); A(f'v_and_b32 v{t1}, 1, v{t1}'); A(f'v_lshl_add_u32 v{t0}, v{t1}, 5, v{t0}')
        A(f's_mul_i32 s{sT1}, s{sKH}, 12288'); A(f'v_add_u32 v{vTe}, s{sT1}, v{t0}'); A(f's_sub_u32 s{sT1}, 12288, s{sT1}'); A(f'v_add_u32 v{vTo}, s{sT1}, v{t0}')
        A(f's_mul_i32 s{sT1}, s{sKH}, 640'); A(f's_add_u32 s{sT2}, s{sT1}, {L_GATE}'); A(f'v_lshl_add_u32 v{vGa}, v{vQ}, 4, s{sT2}')
        A(f's_sub_u32 s{sT2}, {L_GATE + 640}, s{sT1}'); A(f'v_lshl_add_u32 v{vGb}, v{vQ}, 4, s{sT2}')
        if o['clrat'] != -3:
            A(f'v_and_b32 v{t0}, 1, v{vQ}'); A(f'v_xor_b32 v{t0}, s{sW}, v{t0}'); A(f'v_mul_u32_u24 v{t0}, 24576, v{t0}')
            A(f'v_lshrrev_b32 v{t1}, 1, v{vQ}'); A(f'v_lshl_add_u32 v{t0}, v{t1}, 8, v{t0}'); A(f'v_lshl_add_u32 v{t0}, v{vC}, 4, v{t0}')
            A(f's_lshl_b32 s{sT1}, s{sKH}, 9'); A(f'v_add_u32 v{vHs}, s{sT1}, v{t0}')
        A(f's_lshl_b32 s{sT1}, s{sI}, 2'); A(f's_add_u32 s{sT1}, s{sT1}, s{sW}')
        A(f's_mul_i32 s{sT2}, s{sT1}, 205'); A(f's_lshr_b32 s{sT2}, s{sT2}, 10')
        A(f's_mul_i32 s{sT3}, s{sT2}, 5'); A(f's_sub_u32 s{sT3}, s{sT1}, s{sT3}')
        A(f's_and_b32 s{sT4}, s{sT2}, 7'); A(f's_mul_i32 s{sT4}, s{sT4}, 3'); A(f's_lshr_b32 s{sT2}, s{sT2}, 3'); A(f's_add_u32 s{sT2}, s{sT2}, s{sT4}')
        A(f's_mul_i32 s{sT2}, s{sT2}, {32*1280}'); A(f's_lshl_b32 s{sT3}, s{sT3}, 5'); A(f's_add_u32 s{sT2}, s{sT2}, s{sT3}')
        A(f's_mul_i32 s{sT3}, s{sJ}, 160'); A(f's_add_u32 s{sT2}, s{sT2}, s{sT3}')
        A(f's_mul_i32 s{sT3}, s{sJ}, 120'); A(f's_add_u32 s{sT3}, s{sT3}, s{sT1}'); A(f's_lshl_b32 s{sT3}, s{sT3}, 10'); A(f's_add_u32 s{sT3}, s{sT3}, {hx(WBUF)}')
        A(G(f's_cmp_lt_u32 s{sT1}, 120', f's_cselect_b32 s{sREL}, s{sT2}, {hx(OOB)}', f's_cselect_b32 s{sFC}, s{sT3}, {hx(OOB)}'))
        A(f'v_lshrrev_b32 v{t0}, 1, v{vL}'); A(f'v_mul_u32_u24 v{t0}, 1280, v{t0}'); A(f'v_and_b32 v{t1}, 1, v{vL}'); A(f'v_lshl_add_u32 v{vZ[0]}, v{t1}, 4, v{t0}')
        A(Mark('free', 'go2'))
        A(f's_mul_i32 s{sT1}, s{sW}, 6144'); A(f's_add_u32 s{sT1}, s{sT1}, {LC}'); A(f'v_add_u32 v{vExR}, s{sT1}, v{vLin}')
        for u in range(1, 4):
            A(f's_xor_b32 s{sT1}, s{sW}, {u}'); A(f's_mul_i32 s{sT1}, s{sT1}, 6144')
            A(f's_add_u32 s{sT1}, s{sT1}, {LC + (u-1)*2048}'); A(f'v_add_u32 v{vRd[u-1]}, s{sT1}, v{vLin}')
        A(f's_lshl_b32 s{sT1}, s{sW}, 9'); A(f's_add_u32 s{sT1}, s{sT1}, {LC}'); A(f'v_lshl_add_u32 v{vMx}, v{vL}, 3, s{sT1}')
        if not o['hgen']:
            A(f's_mul_i32 s{sT1}, s{sKH}, 24'); A(f's_mul_i32 s{sT2}, s{sJ}, {40*1280}')
            for y in range(3):
                A(f'v_lshrrev_b32 v{t0}, 3, v{vL}'); A(f'v_add_u32 v{t0}, s{sT1}, v{t0}')
                if y: A(f'v_add_u32 v{t0}, {8*y}, v{t0}')
                A(f'v_lshrrev_b32 v{t1}, 1, v{t0}'); A(f'v_xor_b32 v{t1}, v{t1}, v{vL}'); A(f'v_and_b32 v{t1}, 7, v{t1}')
                if o['hzero'] and y == 2:
                    A(f'v_cmp_lt_u32 vcc, 40, v{t0}'); A(f'v_mov_b32 v{t3}, 0x8000'); A(f'v_cndmask_b32 v{t0}, v{t0}, v{t3}, vcc')
                else:
                    A(f'v_min_u32 v{t0}, 40, v{t0}')
                A(f'v_mul_u32_u24 v{t0}, 1280, v{t0}'); A(f'v_lshl_add_u32 v{t0}, v{t1}, 4, v{t0}')
                A(f'v_add_u32 v{vH[y]}, s{sT2}, v{t0}')
                if y: A(f'v_subrev_u32 v{vH[y]}, {1024*y}, v{vH[y]}')
        else:
            A(f's_mul_i32 s{sT1}, s{sKH}, 24'); A(f's_mul_i32 s{sT2}, s{sJ}, 40')
            A(f'v_cvt_f32_u32 v{t3}, s{sWH}'); A(f'v_mul_f32 v{t3}, 0x3e800000, v{t3}')
            for y in range(3):
                A(f'v_lshrrev_b32 v{t0}, 3, v{vL}'); A(f'v_add_u32 v{t0}, s{sT1}, v{t0}')
                if y: A(f'v_add_u32 v{t0}, {8*y}, v{t0}')
                A(f'v_lshrrev_b32 v{t1}, 1, v{t0}'); A(f'v_xor_b32 v{t1}, v{t1}, v{vL}'); A(f'v_and_b32 v{t1}, 7, v{t1}'); A(f'v_lshlrev_b32 v{t1}, 3, v{t1}')
                A(f'v_add_u32 v{t0}, s{sT2}, v{t0}'); A(f'v_cvt_f32_u32 v{t0}, v{t0}'); A(f'v_mul_f32 v{vH[y]}, {hx(f2u(1/640))}, v{t0}')
                A(f'v_cvt_f32_u32 v{t1}, v{t1}'); A(f'v_fma_f32 v{vHb[y]}, v{vH[y]}, v{t1}, v{t3}')
            A(f'v_add_u32 v{vHw}, s{sLH}, v{vLin}')
        if o['htouch'] or not o['slim']:
            A(f'v_and_b32 v{t0}, 31, v{vL}'); A(f'v_min_u32 v{t0}, 20, v{t0}'); A(f's_mul_i32 s{sT1}, s{sKH}, 20'); A(f'v_add_u32 v{t0}, s{sT1}, v{t0}')
            A(f'v_mul_u32_u24 v{t0}, 1280, v{t0}'); A(f'v_add_u32 v{vHt}, s{sT2}, v{t0}')
        mg, mc, mp = o['smask']
        A(f's_mov_b32 s{sMK}, 0')
        if mg: A(f's_lshr_b32 s{sT1}, s{sJ}, 2'); A(f's_lshl_b32 s{sMK}, s{sT1}, 3')
        if mc == 1: A(f's_and_b32 s{sT1}, s{sJ}, 1'); A(f's_lshl_b32 s{sT1}, s{sT1}, 2'); A(f's_or_b32 s{sMK}, s{sMK}, s{sT1}')
        if mc == 2: A(f's_and_b32 s{sT1}, s{sJ}, 3'); A(f's_lshl_b32 s{sT1}, s{sT1}, 1'); A(f's_or_b32 s{sMK}, s{sMK}, s{sT1}')
        if mp: A(f's_and_b32 s{sT1}, s{sI}, 1'); A(f's_or_b32 s{sMK}, s{sMK}, s{sT1}')
        A(f's_and_b32 s{sT1}, s{sMK}, 1'); A(f's_lshl_b32 s{sT1}, s{sT1}, 6')
        for k in range(2): A(f'v_xor_b32 v{vRs[k]}, s{sT1}, v{vRs[k]}')
        A(f's_lshr_b32 s{sT3}, s{sMK}, 1'); A(f's_lshl_b32 s{sT3}, s{sT3}, 7')
        if o['slim']:
            A(f's_lshl_b32 s{sT1}, s{sWH}, 5'); A(f's_add_u32 s{sT1}, s{sT1}, s{sKH}'); A(f's_lshl_b32 s{sT1}, s{sT1}, 5'); A(f's_add_u32 s{sT1}, s{sT1}, s{sI}')
            A(f's_lshl_b32 s{sT1}, s{sT1}, 12'); A(f's_add_u32 s{sT1}, s{sT1}, s{sLW3}'); A(f's_or_b32 s{sSP[0]}, s{sT1}, s{sT3}')
            for u in range(1, 4): A(f's_xor_b32 s{sSP[u]}, s{sSP[0]}, {hx(((u >> 1) << 22) | ((u & 1) << 17))}')
        else:
            for u in range(4):
                A(f's_xor_b32 s{sT1}, s{sW}, {u}'); A(f's_and_b32 s{sT2}, s{sT1}, 1'); A(f's_bfe_u32 s{sT1}, s{sT1}, 0x10001')
                A(f's_lshl_b32 s{sT1}, s{sT1}, 5'); A(f's_add_u32 s{sT1}, s{sT1}, s{sT2}'); A(f's_lshl_b32 s{sT1}, s{sT1}, 5'); A(f's_add_u32 s{sT1}, s{sT1}, s{sI}')
                A(f's_lshl_b32 s{sT1}, s{sT1}, 12'); A(f's_add_u32 s{sT1}, s{sT1}, s{sLW3}'); A(f's_or_b32 s{sSP[u]}, s{sT1}, s{sT3}')
        A(Mark('free', 'go3'))
        A(f's_bfe_u32 s{sDX}, s{sMK}, 0x20001'); A(f's_andn2_b32 s{sDX}, s{sDX}, {o["mc2"]}'); A(f's_lshl_b32 s{sDZ}, s{sDX}, 4'); A(f's_lshl_b32 s{sDX}, s{sDX}, 7')
        A(f's_mul_i32 s{sT1}, s{sJ}, 12'); A(f's_lshl_b32 s{sT2}, s{sWH}, 1'); A(f's_add_u32 s{sT1}, s{sT1}, s{sT2}')
        A(f's_and_b32 s{sT2}, s{sMK}, 1'); A(f's_add_u32 s{sT1}, s{sT1}, s{sT2}'); A(f's_lshl_b32 s{sT1}, s{sT1}, 15')
        A(f's_lshl_b32 s{sT2}, s{sKH}, 14'); A(f's_add_u32 s{sT1}, s{sT1}, s{sT2}')
        A(f's_lshr_b32 s{sT2}, s{sMK}, 3'); A(f's_lshl_b32 s{sT2}, s{sT2}, 13'); A(f's_add_u32 s{sT1}, s{sT1}, s{sT2}'); A(f's_add_u32 s{sZB}, s{sT1}, {hx(Z2B)}')
        A(f's_lshl_b32 s{sT1}, s{sI}, 2'); A(f's_add_u32 s{sT1}, s{sT1}, s{sW}'); A(f's_mul_i32 s{sT1}, s{sT1}, 24576'); A(f's_add_u32 s{sHB}, s{sT1}, {hx(HBUF)}')
        A(f's_mul_i32 s{sT1}, s{sJ}, 122880'); A(f's_add_u32 s{sT1}, s{sT1}, s{sLW3}'); A(f's_add_u32 s{sWBUF}, s{sT1}, {hx(WBUF)}')
        A(f's_lshl_b32 s{sT1}, s{sI}, 3'); A(f's_add_u32 s{sT1}, s{sT1}, s{sJ}'); A(f's_mul_i32 s{sT1}, s{sT1}, 20480')
        A(f's_mul_i32 s{sT2}, s{sW}, 5120'); A(f's_add_u32 s{sT1}, s{sT1}, s{sT2}'); A(f's_add_u32 s{sT1S}, s{sT1}, {hx(T1B)}')
        A(f'v_lshrrev_b32 v{t1}, 1, v{vQ}'); A(f's_lshl_b32 s{sT1}, s{sKH}, 1'); A(f'v_add_u32 v{t3}, s{sT1}, v{t1}')
        A(f'v_and_b32 v{t1}, 3, v{vL}'); A(f'v_lshl_or_b32 v{t0}, v{t3}, 2, v{t1}')
        A(f's_and_b32 s{sT1}, s{sI}, 11'); A(f'v_xor_b32 v{t0}, s{sT1}, v{t0}'); A(f'v_lshlrev_b32 v{t0}, 4, v{t0}')
        A(f'v_lshrrev_b32 v{t1}, 2, v{vC}'); A(f'v_lshl_add_u32 v{t0}, v{t1}, 13, v{t0}')
        A(f'v_and_b32 v{t1}, 1, v{vQ}'); A(f'v_xor_b32 v{t1}, s{sW}, v{t1}'); A(f'v_lshl_add_u32 v{t0}, v{t1}, 15, v{t0}')
        A(f's_lshl_b32 s{sT1}, s{sI}, 8'); A(f'v_add_u32 v{vZs}, s{sT1}, v{t0}')
        c0 = -2.0 * math.sqrt(2.0 / math.pi) * math.log2(math.e)
        A(f's_mov_b32 s{sC1}, {hx(f2u(c0*0.044715))}'); A(f's_mov_b32 s{sC1+1}, s{sC1}')
        A(f'v_mov_b32 v{vC0}, {hx(f2u(c0))}'); A(f'v_mov_b32 v{vC0+1}, v{vC0}')
        A(f's_mov_b32 s{sTO}, 200000')
        A(f'v_and_b32 v{t0}, 1, v{vC}'); A(f'v_lshlrev_b32 v{t0}, 31, v{t0}'); A(f'v_or_b32 v{t0}, 1.0, v{t0}')
        A(G(f's_cmp_eq_u32 s{sKH}, 0', 's_cselect_b64 vcc, -1, 0',
            f'v_cndmask_b32 v{vAl}, v{t0}, 1.0, vcc', f'v_cndmask_b32 v{vBe}, 1.0, v{t0}, vcc'))
        def pat(dst, Rreg):
            A(f'v_lshrrev_b32 v{t1}, 1, v{Rreg}'); A(f'v_xor_b32 v{t1}, v{t1}, v{vQ}'); A(f'v_and_b32 v{t1}, 7, v{t1}'); A(f'v_lshlrev_b32 v{t1}, 4, v{t1}')
            A(f'v_lshl_add_u32 v{dst}, v{Rreg}, 7, v{t1}'); A(f'v_xor_b32 v{dst+1}, 64, v{dst}')
        A(f'v_sub_u32 v{t0}, 16, v{vC}'); pat(vZ[4], t0)
        A(f'v_add_u32 v{t0}, 32, v{vC}'); A(f'v_sub_u32 v{t2}, 48, v{vC}')
        A(f'v_cmp_gt_u32 vcc, 8, v{vC}'); A(f'v_mov_b32 v{t1}, 0x80008000'); A(f'v_cndmask_b32 v{t0}, v{t2}, v{t0}, vcc'); A(f'v_cndmask_b32 v{vZ[7]}, v{t1}, 0, vcc')
        pat(vZ[2], t0)
        A(f's_mul_i32 s{sT1}, s{sJ}, 20480'); A(f's_sub_u32 s{sT1}, {15*10240 - 81920}, s{sT1}')
        if o['slim']:
            A(f's_mov_b32 s{sT2}, {81920 - 320}'); A(f'v_mul_u32_u24 v{t0}, 3277, v{vL}')
            for n in range(5):
                if n: A(f'v_add_u32 v{t0}, {64*3277}, v{t0}')
                A(f'v_lshrrev_b32 v{t1}, 16, v{t0}'); A(f'v_mad_u32_u24 v{t2}, v{t1}, s{sT2}, v{vLin}')
                A(f'v_bfe_i32 v{t1}, v{t0}, 16, 1'); A(f'v_and_b32 v{t1}, s{sT1}, v{t1}'); A(f'v_add_u32 v{vGo[n]}, v{t1}, v{t2}')
        else:
            A(f's_mov_b32 s{sT2}, 81920')
            for n in range(5):
                A(f'v_add_u32 v{t0}, {64*n}, v{vL}'); A(f'v_mul_u32_u24 v{t1}, 3277, v{t0}'); A(f'v_lshrrev_b32 v{t1}, 16, v{t1}')
                A(f'v_mul_u32_u24 v{t2}, 20, v{t1}'); A(f'v_sub_u32 v{t0}, v{t0}, v{t2}'); A(f'v_lshlrev_b32 v{t0}, 4, v{t0}')
                A(f'v_mad_u32_u24 v{t0}, v{t1}, s{sT2}, v{t0}'); A(f'v_and_b32 v{t1}, 1, v{t1}'); A(f'v_mul_lo_u32 v{t1}, v{t1}, s{sT1}'); A(f'v_add_u32 v{vGo[n]}, v{t0}, v{t1}')
        A(f'v_lshrrev_b32 v{t1}, 3, v{vC}'); A(f'v_mul_u32_u24 v{t1}, 24, v{t1}'); A(f's_lshl_b32 s{sT1}, s{sW}, 3'); A(f'v_add3_u32 v{t0}, s{sT1}, v{vC}, v{t1}')
        A(f'v_and_b32 v{t1}, 1, v{vQ}'); A(f'v_lshlrev_b32 v{t1}, 4, v{t1}'); A(f'v_lshrrev_b32 v{t2}, 1, v{vQ}'); A(f'v_add_u32 v{t1}, v{t1}, v{t2}')
        A(f'v_lshlrev_b32 v{t1}, 5, v{t1}'); A(f'v_add_u32 v{t1}, s{sI}, v{t1}')
        A(f'v_mul_u32_u24 v{t1}, v{t0}, v{t1}'); A(f'v_lshlrev_b32 v{t2}, 6, v{t0}')
        A(f'v_and_b32 v{vSgn}, 1, v{t0}'); A(f'v_mul_u32_u24 v{vSgn}, 0x8000, v{vSgn}'); A(f'v_lshl_or_b32 v{vSgn}, v{vSgn}, 16, v{vSgn}')
        cs, sn = ACC, ACC + 8
        if o['slim']:
            A(f'v_cvt_f32_u32 v{t1}, v{t1}'); A(f'v_cvt_f32_u32 v{t2}, v{t2}'); A(f'v_mul_f32 v{cs}, {hx(f2u(1/2048))}, v{t1}'); A(f'v_mul_f32 v{t2}, {hx(f2u(1/2048))}, v{t2}')
            for x in range(1, 8): A(f'v_add_f32 v{cs+x}, v{cs+x-1}, v{t2}')
            for x in range(8): A(f'v_sin_f32 v{sn+x}, v{cs+x}'); A(f'v_cos_f32 v{cs+x}, v{cs+x}')
        else:
            for x in range(8):
                A(f'v_and_b32 v{t3}, 0x7ff, v{t1}'); A(f'v_cvt_f32_u32 v{t3}, v{t3}'); A(f'v_mul_f32 v{t3}, {hx(f2u(1/2048))}, v{t3}')
                A(f'v_cos_f32 v{cs+x}, v{t3}'); A(f'v_sin_f32 v{sn+x}, v{t3}')
                if x < 7: A(f'v_add_u32 v{t1}, v{t1}, v{t2}')
        for x in range(4):
            A(f'v_cvt_pk_bf16_f32 v{CB+x}, v{cs+2*x}, v{cs+2*x+1}'); A(f'v_cvt_pk_bf16_f32 v{CB+4+x}, v{sn+2*x}, v{sn+2*x+1}')
        A(f's_lshl_b32 s{sT1}, s{sWH}, 4'); A(f'v_add_u32 v{t0}, s{sT1}, v{vC}')
        A(f'v_lshrrev_b32 v{t1}, 1, v{vQ}'); A(f'v_lshlrev_b32 v{t1}, 3, v{t1}'); A(f'v_mul_u32_u24 v{t1}, v{t0}, v{t1}')
        A(f'v_and_b32 v{t2}, 1, v{vQ}'); A(f'v_mul_u32_u24 v{t2}, 24, v{t2}'); A(f'v_add_u32 v{t1}, v{t1}, v{t2}')
        if o['slim']:
            A(f'v_cvt_f32_u32 v{t1}, v{t1}'); A(f'v_cvt_f32_u32 v{t2}, v{t0}'); A(f'v_mul_f32 v{cs}, {hx(f2u(1/32))}, v{t1}'); A(f'v_mul_f32 v{t2}, {hx(f2u(1/32))}, v{t2}')
            for x in range(1, 8): A(f'v_add_f32 v{cs+x}, v{cs+x-1}, v{t2}')
            for x in range(8): A(f'v_cos_f32 v{cs+x}, v{cs+x}')
        else:
            for x in range(8):
                A(f'v_and_b32 v{t3}, 31, v{t1}'); A(f'v_cvt_f32_u32 v{t3}, v{t3}'); A(f'v_mul_f32 v{t3}, {hx(f2u(1/32))}, v{t3}')
                A(f'v_cos_f32 v{cs+x}, v{t3}')
                if x < 7: A(f'v_add_u32 v{t1}, v{t1}, v{t0}')
        A(f'v_and_b32 v{t0}, 1, v{t0}'); A(f'v_mul_u32_u24 v{t0}, 0x8000, v{t0}'); A(f'v_lshl_or_b32 v{t0}, v{t0}, 16, v{t0}')
        for x in range(4):
            A(f'v_cvt_pk_bf16_f32 v{CF+x}, v{cs+2*x}, v{cs+2*x+1}')
        for x in range(4):
            A(f'v_xor_b32 v{CF+4+x}, v{CF+x}, v{t0}')
        return p

    def hgen(self, n):
        R, C, d = ACC + 24, ACC + 32, ACC + 44
        p = [f'v_cvt_f32_u32 v{d}, s{sKX[n]}', f'v_mul_f32 v{d}, 0.5, v{d}']
        for y in range(3):
            p.append(f'v_fma_f32 v{R}, v{vH[y]}, v{d}, v{vHb[y]}')
            for x in range(1, 8): p.append(f'v_add_f32 v{R+x}, v{R+x-1}, v{vH[y]}')
            for x in range(8): p.append(f'v_cos_f32 v{R+x}, v{R+x}')
            for x in range(4): p.append(f'v_cvt_pk_bf16_f32 v{C+x}, v{R+2*x}, v{R+2*x+1}')
            for x in range(4): p.append(f'v_accvgpr_write_b32 a{AH + 12*n + 4*y + x}, v{C+x}')
        p.append(Mark('free', f'Hg{n}'))
        return p

    def tag(self):
        return [f'v_readfirstlane_b32 s{sTAG}, v{vTag}', f's_mul_i32 s{sTAG}, s{sTAG}, 0x9e3779b1', f's_add_u32 s{sTAG}, s{sTAG}, 0x7f4a7c15',
                f'v_mov_b32 v{vTag}, s{sTAG}', f'v_lshlrev_b32 v{vBias}, 16, v{vBias}', f'v_lshlrev_b32 v{vBias1}, 16, v{vBias1}', Mark('waitregs', [f'v{POLL}', f'v{POLL+1}'])]

    def stream(self):
        o = self.o
        S = []
        def wstage(n):
            slot = n % 3; kp = n % 5; tok = f'S{n}'
            need = ['goW' if n == 0 and o['early'] else 'go'] if n < 3 else [f'W{n-3}']
            base = sWB2 if n < 5 else sWB1
            xs, ws = [], []
            if n < 5:
                xn, xt = (['goX'], 'X0') if n == 0 else (need, tok)
                for u in range(2):
                    xs.append(Bundle([f's_add_u32 m0, s{sLX}, {slot*16384 + u*2048}', f's_add_u32 s{sT0}, s{sXB[u]}, s{sKX[kp]}'] + ([f's_add_u32 s{sT0}, s{sT0}, s{sKX[kp]}'] if o['xwide'] else []) + [
                                      I(f'buffer_load_dwordx4 v{vX[0]}, {srd(SX)}, s{sT0} offen lds', tok=xt)], 68, xn, xt))
                    xs.append(Bundle([I(f'buffer_load_dwordx4 v{vX[1]}, {srd(SX)}, s{sT0} offen offset:1024 lds', tok=xt)], 68, xn, xt))
            for g in range(2):
                for x in range(3):
                    pre = []
                    if x == 0:
                        pre = [f's_mul_i32 s{sT0}, s{sKX[kp]}, 1536', f's_add_u32 m0, s{sLW}, {slot*24576 + g*3072}', f's_add_u32 s{sT0}, s{sT0}, s{base}']
                        if g: pre.append(f's_add_u32 s{sT0}, s{sT0}, {16*3072}')
                    ws.append(Bundle(pre + [I(f'buffer_load_dwordx4 v{vW[x]}, {srd(SWIN)}, s{sT0} offen offset:{1024*x} lds', tok=tok)], o['wcost'], need, tok))
            return xs + ws
        def hstage(n):
            out = []
            if o['hgen']:
                for y in range(3):
                    out.append(Bundle([I(f'ds_write_b128 v{vHw}, {a(AH + 12*n + 4*y, 4)} offset:{H_BASE[n] + 1024*y}', tok=f'Hd{n}')] + ([Mark('free', f'Hw{n}')] if y == 2 else []),
                                      10, [f'W{7 + n//2}', f'Hg{n}'], f'H{n}'))
                return out
            for y in range(3):
                pre = [f's_add_u32 m0, s{sLH}, {H_BASE[n]}'] if y == 0 else []
                out.append(Bundle(pre + [I(f'buffer_load_dwordx4 v{vH[y]}, {srd(SH)}, s{sKX[n]} offen offset:{1024*y} lds', tok=f'H{n}')], 62, [f'W{7 + n//2}'], f'H{n}'))
            return out
        for n in range(8):
            S += wstage(n)
            if n == o['relpos']:
                S.append(Bundle([f's_add_u32 m0, s{sLW3}, {L_REL}',
                                 I(f'buffer_load_dwordx4 v{vZ[0]}, {srd(SWO)}, s{sREL} offen lds', tok='rel')], 68, ['go2'], 'rel'))
            if n == o['hpos']:
                if o['htouch']:
                    S.append(Bundle([I(f'buffer_load_dword v{POLL+3}, v{vHt}, {srd(SH)}, s{sKX[0]} offen', tok='htouch')], 100, ['go3'], 'htouch'))
            for tp, tc, grp, ngrp in o['tgrp']:
                if tp == n:
                    l = self.lab('tg')
                    S.append(Bundle([f's_and_b32 s{sT0}, s{sI}, {ngrp - 1}', f's_cmp_eq_u32 s{sT0}, {grp}', f's_cbranch_scc0 {l}',
                                     Mark('raw', [f'buffer_load_dword v{POLL+2}, v{vZ[1]}, {srd(SWSP)}, s{sTC} offen']), f'{l}:'], tc, ['go'], 'touch'))
            for part, (tp, tc) in enumerate(o['tparts']):
                if tp == n:
                    nl = 64 // len(o['tparts']); mask = ((1 << nl) - 1) << (nl * part)
                    S.append(Bundle([f's_mov_b32 exec_lo, {hx(mask)}', f's_mov_b32 exec_hi, {hx(mask >> 32)}',
                                     I(f'buffer_load_dword v{POLL+2}, v{vZ[1]}, {srd(SWSP)}, s{sTC} offen', tok='touch'), 's_mov_b64 exec, -1'], tc, ['go'], 'touch'))
            if n == (4 if o['gk'] == 'z1' else 0):
                S.append(Bundle([f's_mul_i32 s{sT0}, s{sW}, 320', f's_add_u32 m0, s{sT0}, {L_GATE}', 's_mov_b64 exec, 0xfffff',
                                 I(f'buffer_load_dwordx4 v{vLin}, {srd(SGATE)}, s{sT0} offen lds', tok='gate'), 's_mov_b64 exec, -1'], 30, ['go2' if o['gk'] == 'z1' else 'goG'], 'gate'))
        if o['tfine']:
            first, every, nparts, tc = o['tfine']
            pos = max(n for n, b in enumerate(S) if b.tok == f'S{first}') + 1
            nl = 64 // nparts
            for part in range(nparts):
                mask = ((1 << nl) - 1) << (nl * part)
                while pos < len(S) and not S[pos].items[0].text.startswith('s_') and False: pos += 1
                S.insert(min(pos, len(S)), Bundle([f's_mov_b32 exec_lo, {hx(mask)}', f's_mov_b32 exec_hi, {hx(mask >> 32)}',
                         I(f'buffer_load_dword v{POLL+2}, v{vZ[1]}, {srd(SWSP)}, s{sTC} offen', tok='touch'), 's_mov_b64 exec, -1'], tc, ['go'], 'touch'))
                pos += every + 1
        NB = o['nb']
        def consume(n):
            kp, u = n >> 2, n & 3; slot = n % NPS
            need = [f'XA{(8*n - AX)//16}'] if 8*n >= AX else []
            if o['hgen']: need += [f'Hw{k}' for k in range(5) if 8*n < AH + 12*k + 12 and 8*n + 8 > AH + 12*k]
            return Bundle([Mark('need', [f'P{n}'])] +
                          [I(f'ds_read_b128 {a(32*kp + 8*u + 4*k, 4)}, v{vRs[k]} offset:{slot*2048}', tok=f'Pr{n}') for k in range(2)], 0, need, f'Pc{n}')
        def punit(n):
            kp, u = n >> 2, n & 3; slot = n % NPS; tok = f'P{n}'; out = []
            pc = o['pcost'][n // 8]
            pre = [Mark('waitds', [f'Pr{n-NPS}'])] if n >= NPS else []
            out.append(Bundle(pre + [f's_add_u32 m0, s{sLS}, {slot*2048}', f's_xor_b32 s{sT0}, s{sSP[u]}, {128*kp}'] + ([f's_xor_b32 s{sT0}, s{sT0}, s{sDX}'] if kp >= 4 and o['mc2'] != 3 else []) + [
                                     I(f'buffer_load_dwordx4 v{vS[0]}, {srd(SWSP)}, s{sT0} offen lds', tok=tok)], pc, ['Xdead'], tok))
            out.append(Bundle([I(f'buffer_load_dwordx4 v{vS[1]}, {srd(SWSP)}, s{sT0} offen offset:1024 lds', tok=tok)], pc, ['Xdead'], tok))
            if n >= NB: out.append(consume(n - NB))
            return out
        cuts = dict(zip(o['pcut'], ('S8', 'S9', 'Ha', 'Hb', 'Hc')))
        assert len(cuts) == 5
        for n in range(32):
            what = cuts.get(n)
            if what == 'S8': S += wstage(8)
            if what == 'S9': S += wstage(9)
            if what == 'Ha': S += hstage(0) + hstage(1)
            if what == 'Hb': S += hstage(2) + hstage(3)
            if what == 'Hc': S += hstage(4)
            S += punit(n)
        tailc = [consume(n) for n in range(32 - NB, 32)]
        for sg in range(12):
            p, ga, pi = sg >> 2, (sg >> 1) & 1, sg & 1; slot = sg % 3; tok = f'Z{sg}'
            need = ['flagB0' if sg == 0 else 'flagB'] + ([f'Zf{sg-3}'] if sg >= 3 else [])
            for x in range(8):
                pre = []
                if x == 0:
                    pre += [f's_add_u32 m0, s{sLZ}, {slot*8192}', f's_xor_b32 s{sT0}, s{sZB}, {pi*32768 + ga*8192}']
                    if p: pre.append(f's_add_u32 s{sT0}, s{sT0}, {p*131072}')
                if x == 4:
                    pre += [f's_add_u32 m0, s{sLZ}, {slot*8192 + 4096}', f's_add_u32 s{sT0}, s{sT0}, 4096']
                S.append(Bundle(pre + [I(f'buffer_load_dwordx4 v{vLin}, {srd(SWS)}, s{sT0} offen offset:{(x%4)*1024} sc1 lds', tok=tok)], o['zcost'], need, tok))
                if sg == 0 and x % 2 == 1 and tailc: S.append(tailc.pop(0))
            if sg == 0: S += tailc
        def wpart(n):
            out = []
            for x in range(10):
                xx = 10*n + x
                if n == 0: m0, need = f's_add_u32 m0, s{sLW3}, {L_W0 + x*4096}', ['flagB']
                else: m0, need = f's_add_u32 m0, s{sLZ}, {(xx-10)*1024}', [f'Zf{9 + (xx-10)//8}']
                out.append(Bundle([m0, f's_add_u32 s{sT0}, s{sWBUF}, {xx*4096}',
                                   I(f'buffer_load_dwordx4 v{vLin}, {srd(SWS)}, s{sT0} offen sc1 lds', tok=f'O{n}')], o['zcost'], need, f'O{n}'))
            return out
        def hpart(n):
            out = []
            for k in range(8):
                kk = 8*n + k
                pre = [f's_add_u32 s{sT0}, s{sHB}, {kk*1024}'] if k % 4 == 0 else []
                out.append(Bundle(pre + [I(f'buffer_load_dwordx4 {self.hreg(kk)}, v{vLin}, {srd(SWS)}, s{sT0} offen offset:{(k%4)*1024} sc1', tok=f'h{n}')],
                                  o['zcost'], [f'flagC{n}'], f'h{n}'))
            return out
        tpart = [Bundle([f's_mul_i32 s{sT0}, s{sW}, 5120', f's_add_u32 m0, s{sT0}, {LC + x*1024}', f's_add_u32 s{sT0}, s{sT1S}, {x*1024}',
                         I(f'buffer_load_dwordx4 v{vLin}, {srd(SWS)}, s{sT0} offen sc1 lds', tok='T')], o['zcost'], ['Cfree', 'flagT'], 'T') for x in range(5)]
        w0 = wpart(0)
        for k, (zs, cnt) in enumerate(o['o0at']):
            pos = max(n for n, b in enumerate(S) if b.tok == f'Z{zs}') + 1
            for b in w0[:cnt]: b.need = set(b.need) | {f'Zf{zs-3}'}
            S[pos:pos] = w0[:cnt]; w0 = w0[cnt:]
        parts = {'h1': hpart(1), 'T': tpart, 'O2': wpart(2)[o['o2pre']:]}
        S += w0 + wpart(1) + hpart(0) + wpart(2)[:o['o2pre']]
        if o['tailord'] == 'mix':
            S += parts['h1']; a_, b_ = parts['T'], parts['O2']
            while a_ or b_:
                S += b_[:1] + a_[:1]; a_, b_ = a_[1:], b_[1:]
        else:
            for x in o['tailord'].split(','): S += parts[x]
        S += hpart(2)
        for b in S:
            if b.tok and any(b.tok.startswith(x) for x in o['drop']):
                b.items = [it for it in b.items if not (isinstance(it, Ins) and it.kind == 'vm')]; b.cost = 0
        for b, cst in zip(S, o['cold']): b.cost = cst
        return S

    def hreg(self, kk):
        if kk < 8: return a(32*(kk >> 2) + 8*(kk & 3), 4)
        if kk < 16: return v([FR[0]+20, FR[0]+24, FR[0]+28, FR[1]+20, FR[1]+24, FR[1]+28, CB, CB+4][kk-8], 4)
        return v(Z2 + 4*(kk - 16), 4)

    def l_w(self, n):
        x, w = n >> 2, n & 3
        return L_W0 + n*1024 if n < 40 else w*24576 + (x - 10)*1024

    def codepf(self, part, off=None):
        if not self.o['codepf2']: return []
        return [f's_getpc_b64 s[{SCODE}:{SCODE+1}]', f'L_cq{part}:', f's_mov_b32 s{SCODE+2}, L_code_end - L_cq{part}', f's_mov_b32 s{SCODE+3}, 0x20000',
                f's_and_b32 s{sT1}, s{sI}, {6 if self.o["two"] else 7}', f's_lshl_b32 s{sT1}, s{sT1}, {1 if self.o["two"] else 2}', f's_add_u32 s{sT1}, s{sT1}, s{sW}', f's_lshl_b32 s{sT1}, s{sT1}, {9 if self.o["two"] else 8}', f's_add_u32 s{sT1}, s{sT1}, {off or self.o["codepf2"]}',
                f'v_and_b32 v{vT}, {384 if self.o["two"] else 128}, v{vLin}', f'buffer_load_dword v{POLL+3}, v{vT}, {srd(SCODE)}, s{sT1} offen']

    def poll(self, load, regs, mask=None, pre=(), wait=None):
        chk, ok = self.lab('chk'), self.lab('ok')
        p = [Mark('waitregs', wait or regs), f'{chk}:'] + list(pre)
        p.append(f'v_cmp_ne_u32 vcc, s{sTAG}, {regs[0]}')
        for r in regs[1:]:
            p += [f'v_cmp_ne_u32 s[{sT3+1}:{sT3+2}], s{sTAG}, {r}'.replace(f's[{sT3+1}:{sT3+2}]', 's[62:63]'), 's_or_b64 vcc, vcc, s[62:63]']
        if mask is not None: p.append(f's_and_b64 vcc, vcc, {mask}')
        p.append(f's_cbranch_vccz {ok}')
        p.append(Mark('raw', [f's_cmp_eq_u32 s{sTO}, 0', f's_cbranch_scc1 {ok}', f's_sub_u32 s{sTO}, s{sTO}, 1'] + load +
                      ['s_waitcnt vmcnt(0)', f's_branch {chk}']))
        p.append(f'{ok}:')
        return G(p)

    def flag_store(self, toks, soff):
        return G(Mark('need', toks), f'v_mov_b32 v{vT}, 0', 's_mov_b64 exec, 1',
                 f'buffer_store_dword v{vTag}, v{vT}, {srd(SWS)}, s{soff} offen sc1', 's_mov_b64 exec, -1')

    def gemm(self, kind, extra=(), late=(), nlate=4):
        st0 = {'z2': 0, 'z1': 5, 'A': 0}[kind]
        def tok(n): return f'H{n}' if kind == 'A' else f'S{st0+n}'
        def xr(ks, hh, s): return a(AX + 16*ks + 8*hh + 4*s, 4)
        def reads(ks):
            n, k = ks >> 1, ks & 1; fr = FR[ks & 1]; out = []
            if kind == 'A':
                pre = [f'v_subrev_u32 v{vRx[k]}, 2048, v{vRx[k]}'] if n == 4 else []
                return pre + [f'ds_read_b128 {v(fr+4*T, 4)}, v{vRx[k]} offset:{H_BASE[n] - (2048 if n < 4 else 0) + T*2048}' for T in range(3)]
            slot = (st0 + n) % 3
            if kind == self.o['gk'] and k == 0: out += [f'v_add_u32 v{vGt}, s{sKX[n]}, v{vGa}', f'v_add_u32 v{vGu}, s{sKX[n]}, v{vGb}']
            for hh in range(2):
                if kind == 'z2':
                    for s in range(2):
                        out.append(f'ds_read_b128 {xr(ks, hh, s)}, v{(vRx, vRp)[hh][k]} offset:{slot*16384 + (s ^ hh)*2048}')
                for pp in range(3):
                    for hf in range(2):
                        out.append(f'ds_read_b64_tr_b16 {v(fr+12*hh+4*pp+2*hf, 2)}, v{(vTe, vTo)[hh]} offset:{slot*24576 + k*6144 + hf*768 + 64*pp}')
                if kind == self.o['gk']:
                    out.append(f'ds_read_b128 {v(fr+24+4*hh, 4)}, v{(vGt, vGu)[hh]} offset:{64*k}')
            return out
        def mf(ks):
            fr = FR[ks & 1]; out = []
            if kind == 'A':
                for T in range(3):
                    for hh in range(2):
                        for s in range(2):
                            out.append(mfma(v(ACC + 24*hh + 8*T + 4*s, 4), xr(ks, hh, s), v(fr+4*T, 4), '0' if ks == 0 else None))
                return out
            Z = Z2 if kind == 'z2' else Z1
            for hh in range(2):
                c = '0' if ks == 0 and hh == 0 else None
                for pp in range(3):
                    for s in range(2):
                        out.append(mfma(v(Z + 8*pp + 4*s, 4), v(fr+12*hh+4*pp, 4), xr(ks, hh, s), c))
                if kind == self.o['gk']: out.append(mfma(v(GACC, 4), v(fr+24+4*hh, 4), xr(ks, hh, 0), c))
            return out
        p = []
        if kind == 'A':
            p += [Mark('need', ['H0', 'H1'])] + ([Mark('waitds', ['Hd0', 'Hd1'])] if self.o['hgen'] else []) + ['s_barrier']
        else:
            p += [Mark('need', [tok(0)] + (['X0'] if kind == 'z2' else []) + (['gate'] if kind == self.o['gk'] else [])), 's_barrier']
        if kind == 'z2': p += self.stamp('S0 landed')
        p += reads(0)
        extra = norm(extra); per_blk = -(-len(extra) // 10)
        for ks in range(10):
            n, k = ks >> 1, ks & 1
            if k == 1: p += self.stamp(f'@1{kind} n{n}')
            if k == 1 and kind != 'A':
                if late and n < nlate:
                    h = -(-len(late) // nlate); p += late[n*h:(n+1)*h]
                bar = [Mark('waitds', None)]
                if n < 4: bar += [Mark('need', [tok(n+1)])]
                bar += ['s_barrier', Mark('free', f'W{st0+n}')]
                if n == 4 and kind == 'z2': bar.append(Mark('free', 'Xdead'))
                if not self.o['bdel']: p += bar; bar = None
            if kind == 'A' and ks == 3: p += [Mark('need', ['H2', 'H3', 'H4'])] + ([Mark('waitds', ['Hd2', 'Hd3', 'Hd4'])] if self.o['hgen'] else []) + ['s_barrier']
            fill = reads(ks+1) if ks < 9 else []
            m = mf(ks)
            ex = []
            if kind == 'z1' and ks == self.o['relat']: ex = self.relayout1()
            if kind == 'z1' and ks == self.o['relat'] + 2: ex = self.relayout2()
            if kind == 'z1' and ks == self.o['statat']: ex = ex + self.stat_loads()
            if extra: ex = ex + extra[ks*per_blk:(ks+1)*per_blk]
            if k == 1 and kind != 'A' and self.o['bdel']:
                bd = self.o['bdel']
                p += slot(m[:bd], (ex[:2*bd] if not any(isinstance(x, Mark) for x in norm(ex)) else [], 0, 2)) + bar
                ex2 = ex[2*bd:] if not any(isinstance(x, Mark) for x in norm(ex)) else ex
                p += slot(m[bd:], (fill, 0, 2), (ex2, 0, 2))
            else:
                p += slot(m, (fill, 0, 2 if len(fill) >= len(m) else 1), (ex, 0, 2))
            if kind == 'A': p.append(Mark('free', f'XA{ks}'))
        return p

    def relayout1(self):
        t0, t1 = TMP, TMP + 1
        return [f'v_bfe_u32 v{t0}, v{vL}, 2, 2', f'v_lshl_add_u32 v{t0}, v{vQ}, 3, v{t0}', f'v_lshlrev_b32 v{t0}, 5, v{t0}',
                f'v_and_b32 v{t1}, 3, v{vL}', f'v_lshl_add_u32 v{t0}, v{t1}, 3, v{t0}',
                f's_add_u32 s{sT1}, s{sLW3}, {L_REL}', f'v_add_u32 v{t0}, s{sT1}, v{t0}', Mark('need', ['rel']),
                f'ds_read_b64_tr_b16 {v(TMP+4, 2)}, v{t0}', f'ds_read_b64_tr_b16 {v(TMP+6, 2)}, v{t0} offset:128']

    def relayout2(self):
        return [I(f'buffer_store_dwordx4 {v(TMP+4, 4)}, v{vLin}, {srd(SWS)}, s{sFC} offen sc1', tok='relst'),
                f's_lshl_b32 s{sT1}, s{sI}, 1', f's_add_u32 s{sT1}, s{sT1}, s{sWH}', f's_lshl_b32 s{sT1}, s{sT1}, 12', f's_add_u32 s{sFC}, s{sT1}, {FLAGC}']

    def gelu(self, z, recv, tmp):
        p = []
        if self.o['pk']:
            for T in range(0, 24, 4):
                if recv is not None:
                    for x in (T, T + 2): p.append(f'v_pk_add_f32 {v(z+x, 2)}, {v(z+x, 2)}, {v(recv+x, 2)}')
                for x in (T, T + 2): p.append(f'v_pk_mul_f32 {v(tmp+x, 2)}, {v(z+x, 2)}, {v(z+x, 2)}')
                for x in (T, T + 2): p.append(f'v_pk_fma_f32 {v(tmp+x, 2)}, {v(tmp+x, 2)}, s[{sC1}:{sC1+1}], {v(vC0, 2)}')
                for x in (T, T + 2): p.append(f'v_pk_mul_f32 {v(tmp+x, 2)}, {v(tmp+x, 2)}, {v(z+x, 2)}')
                for x in range(T, T + 4): p.append(f'v_exp_f32 v{tmp+x}, v{tmp+x}')
                for x in (T, T + 2): p.append(f'v_pk_add_f32 {v(tmp+x, 2)}, {v(tmp+x, 2)}, 1.0 op_sel_hi:[1,0]')
                for x in range(T, T + 4): p.append(f'v_rcp_f32 v{tmp+x}, v{tmp+x}')
                for x in (T, T + 2): p.append(f'v_pk_mul_f32 {v(z+x, 2)}, {v(z+x, 2)}, {v(tmp+x, 2)}')
        else:
            for T in range(0, 24, 4):
                R = range(T, T + 4)
                for x in R: p.append(f'v_add_f32 v{z+x}, v{z+x}, v{recv+x}')
                for x in R: p.append(f'v_mul_f32 v{tmp+x}, v{z+x}, v{z+x}')
                for x in R: p.append(f'v_fma_f32 v{tmp+x}, v{tmp+x}, s{sC1}, v{vC0}')
                for x in R: p.append(f'v_mul_f32 v{tmp+x}, v{tmp+x}, v{z+x}')
                for x in R: p.append(f'v_exp_f32 v{tmp+x}, v{tmp+x}')
                for x in R: p.append(f'v_add_f32 v{tmp+x}, 1.0, v{tmp+x}')
                for x in R: p.append(f'v_rcp_f32 v{tmp+x}, v{tmp+x}')
                for x in R: p.append(f'v_mul_f32 v{z+x}, v{z+x}, v{tmp+x}')
        return p

    def gelu_s(self, z, n, tmp):
        p = []
        for T in range(0, n, 4):
            R = range(4)
            for x in R: p.append(f'v_mul_f32 v{tmp+x}, v{z+T+x}, v{z+T+x}')
            for x in R: p.append(f'v_fma_f32 v{tmp+x}, v{tmp+x}, s{sC1}, v{vC0}')
            for x in R: p.append(f'v_mul_f32 v{tmp+x}, v{tmp+x}, v{z+T+x}')
            for x in R: p.append(f'v_exp_f32 v{tmp+x}, v{tmp+x}')
            for x in R: p.append(f'v_add_f32 v{tmp+x}, 1.0, v{tmp+x}')
            for x in R: p.append(f'v_rcp_f32 v{tmp+x}, v{tmp+x}')
            for x in R: p.append(f'v_mul_f32 v{z+T+x}, v{z+T+x}, v{tmp+x}')
        return p

    def allred_q(self, x, t):
        return [f'v_mov_b32 v{t}, v{x}', f'v_permlane32_swap_b32 v{t}, v{x}', f'v_add_f32 v{x}, v{x}, v{t}',
                f'v_mov_b32 v{t}, v{x}', f'v_permlane16_swap_b32 v{t}, v{x}', f'v_add_f32 v{x}, v{x}, v{t}']

    def stats_publish(self):
        S = [TMP, TMP + 4]
        p = []
        for s in (1, 0):
            sm, sq = S[s], S[s] + 2; z = [Z2 + 8*pp + 4*s + x for pp in range(3) for x in (0, 2)]
            p += [f'v_pk_add_f32 {v(sm, 2)}, {v(z[0], 2)}, {v(z[1], 2)}', f'v_pk_mul_f32 {v(sq, 2)}, {v(z[0], 2)}, {v(z[0], 2)}',
                  f'v_pk_fma_f32 {v(sq, 2)}, {v(z[1], 2)}, {v(z[1], 2)}, {v(sq, 2)}']
            for r in z[2:]:
                p += [f'v_pk_add_f32 {v(sm, 2)}, {v(sm, 2)}, {v(r, 2)}', f'v_pk_fma_f32 {v(sq, 2)}, {v(r, 2)}, {v(r, 2)}, {v(sq, 2)}']
            if s == 1:
                p += [f'v_add_f32 v{sm}, v{sm}, v{sm+1}', f'v_add_f32 v{sm+1}, v{sq}, v{sq+1}', f'ds_write_b64 v{vMx}, {v(sm, 2)}', f'v_xor_b32 v{vMx}, 512, v{vMx}']
            else:
                p += [f'v_add_f32 v{sm}, v{sm}, v{sm+1}', f'v_add_f32 v{sq}, v{sq}, v{sq+1}']
        p += [f's_lshl_b32 s{sT1}, s{sI}, 2', f's_add_u32 s{sT1}, s{sT1}, s{sW}', f's_lshl_b32 s{sT1}, s{sT1}, 11', f's_add_u32 s{sT3}, s{sT1}, {STAT}',
              f's_lshl_b32 s{sT1}, s{sJ}, 8', f's_add_u32 s{sT1}, s{sT1}, s{sT3}', f's_xor_b32 s{sT4}, s{sT3}, 2048']
        s, q = TMP, TMP + 2
        p += [Mark('waitds', None), 's_barrier', f'ds_read_b64 {v(TMP+4, 2)}, v{vMx}', f'v_mov_b32 v{s+1}, s{sTAG}', f'v_mov_b32 v{q+1}, s{sTAG}',
              f'v_add_f32 v{s}, v{s}, v{TMP+4}', f'v_add_f32 v{q}, v{q}, v{TMP+5}']
        r1, r2 = self.allred_q(s, TMP + 4), self.allred_q(q, TMP + 5)
        for x, y in zip(r1, r2): p += [x, y]
        p.append(G('s_mov_b64 exec, 0xffff', f'buffer_store_dwordx4 {v(TMP, 4)}, v{vLin}, {srd(SWS)}, s{sT1} offen sc1', 's_mov_b64 exec, -1'))
        return p

    def clears(self, R=POLL + 4):
        p = []; A = p.append
        for x in range(4): A(f'v_mov_b32 v{R+x}, -1')
        A(f's_mul_i32 s{sT1}, s{sI}, 96'); A(f's_add_u32 s{sT1}, s{sT1}, s{sJ}'); A(f's_lshl_b32 s{sT1}, s{sT1}, 10'); A(f's_add_u32 s{sT1}, s{sT1}, {hx(HBUF + 8192)}')
        A(I(f'buffer_store_dwordx4 {v(R, 4)}, v{vHs}, {srd(SWS)}, s{sT1} offen sc1', tok='clr'))
        A(f's_add_u32 s{sT1}, s{sT1}, 8192')
        A(I(f'buffer_store_dwordx4 {v(R, 4)}, v{vHs}, {srd(SWS)}, s{sT1} offen sc1', tok='clr'))
        return p

    def stat_loads(self):
        return [f'buffer_load_dwordx4 {v(ACC + 8*s + 4*x, 4)}, v{vLin}, {srd(SWS)}, s{(sT3, sT4)[s]} offen offset:{1024*x} sc1' for s in range(2) for x in range(2)]

    def normalize_publish(self):
        t = TMP + 6
        chk = [f'v_xor_b32 v{t}, s{sTAG}, v{ACC+1}']
        T = [ACC + 1 + 2*x for x in range(8)]
        pre = [f'v_min3_u32 v{t}, v{T[0]}, v{T[1]}, v{T[2]}', f'v_max3_u32 v{t+1}, v{T[0]}, v{T[1]}, v{T[2]}',
               f'v_min3_u32 v{t}, v{t}, v{T[3]}, v{T[4]}', f'v_max3_u32 v{t+1}, v{t+1}, v{T[3]}, v{T[4]}',
               f'v_min3_u32 v{t}, v{t}, v{T[5]}, v{T[6]}', f'v_max3_u32 v{t+1}, v{t+1}, v{T[5]}, v{T[6]}',
               f'v_min_u32 v{t}, v{t}, v{T[7]}', f'v_max_u32 v{t+1}, v{t+1}, v{T[7]}']
        p = [self.poll(self.stat_loads(), [f'v{t}', f'v{t+1}'], pre=pre, wait=[f'v{x}' for x in T])]
        p += self.stamp('stats ok')
        inv = hx(f2u(1 / 768))
        R = [TMP, TMP + 2, TMP + 4, TMP + 6]
        for s in range(2):
            p += [f'v_add_f32 v{R[2*s]}, v{ACC+8*s}, v{ACC+8*s+4}', f'v_add_f32 v{R[2*s+1]}, v{ACC+8*s+2}, v{ACC+8*s+6}']
        for x in zip(*[self.allred_q(r, r + 1) for r in R]): p += list(x)
        for op in range(7):
            for s in range(2):
                m, q = R[2*s], R[2*s+1]
                p.append([f'v_mul_f32 v{m}, {inv}, v{m}', f'v_mul_f32 v{q}, {inv}, v{q}', f'v_fma_f32 v{q}, -v{m}, v{m}, v{q}', f'v_max_f32 v{q}, 0, v{q}',
                          f'v_add_f32 v{q}, {hx(f2u(1e-5))}, v{q}', f'v_rsq_f32 v{q}, v{q}', f'v_mul_f32 v{m}, -v{m}, v{q}'][op])
        p += [f's_mul_i32 s{sT1}, s{sJ}, {12*32768}', f's_add_u32 s{sT1}, s{sT1}, {hx(Z2B)}']
        for pp in range(3):
            b = Z2 + 8*pp; d = FR[1] + 4*pp
            for x in range(0, 8, 2):
                s = x >> 2
                p.append(f'v_pk_fma_f32 {v(b+x, 2)}, {v(b+x, 2)}, {v(R[2*s+1], 2)}, {v(R[2*s], 2)} op_sel_hi:[1,0,0]')
            for x in range(4): p.append(f'v_cvt_pk_bf16_f32 v{d+x}, v{b+2*x}, v{b+2*x+1}')
            p += [f'v_permlane16_swap_b32 v{d}, v{d+2}', f'v_permlane16_swap_b32 v{d+1}, v{d+3}']
            p.append(I(f'buffer_store_dwordx4 {v(d, 4)}, v{vZs}, {srd(SWS)}, s{sT1} offen sc1', tok='z2st'))
            if pp < 2: p.append(f's_add_u32 s{sT1}, s{sT1}, 131072')
        return p

    def flagB_addr(self):
        return [f's_lshl_b32 s{sT3}, s{sJ}, 2', f's_add_u32 s{sT3}, s{sT3}, s{sW}', f's_lshl_b32 s{sT3}, s{sT3}, 10', f's_add_u32 s{sT3}, s{sT3}, {FLAGB}',
                f's_lshl_b32 s{sT1}, s{sI}, 5', f's_add_u32 s{sFB}, s{sT1}, s{sT3}']

    def gate(self):
        return [f'v_mul_f32 v{vGate}, {hx(f2u(-math.log2(math.e)))}, v{GACC}', f'v_exp_f32 v{vGate}, v{vGate}',
                f'v_add_f32 v{vGate}, 1.0, v{vGate}', f'v_rcp_f32 v{vGate}, v{vGate}']

    def stepB_pre(self):
        t0, t1, t2 = TMP, TMP + 1, TMP + 2
        ad = []
        A = ad.append
        A(f'v_and_b32 v{t0}, 1, v{vQ}'); A(f'v_xor_b32 v{t0}, s{sW}, v{t0}'); A(f'v_lshrrev_b32 v{t1}, 1, v{vQ}'); A(f'v_lshl_add_u32 v{t0}, v{t0}, 1, v{t1}')
        A(f'v_lshrrev_b32 v{t1}, 1, v{vC}'); A(f'v_xor_b32 v{t0}, v{t0}, v{t1}'); A(f'v_lshlrev_b32 v{t0}, 4, v{t0}')
        A(f'v_lshl_add_u32 v{t0}, v{vC}, 7, v{t0}'); A(f's_mul_i32 s{sT1}, s{sKH}, 6144'); A(f'v_add_u32 v{vGa}, s{sT1}, v{t0}')
        cos, sin, nsin, ncos = self.cvar()
        for x in range(4):
            A(f'v_xor_b32 v{cos[1]+x}, v{vSgn}, v{cos[0]+x}'); A(f'v_xor_b32 v{sin[1]+x}, v{vSgn}, v{sin[0]+x}')
            A(f'v_xor_b32 v{nsin[0]+x}, 0x80008000, v{sin[0]+x}'); A(f'v_xor_b32 v{ncos[0]+x}, 0x80008000, v{cos[0]+x}')
        for x in range(4): A(f'v_xor_b32 v{nsin[1]+x}, 0x80008000, v{sin[1]+x}'); A(f'v_xor_b32 v{ncos[1]+x}, 0x80008000, v{cos[1]+x}')
        sw, sw2 = vTe, vZ[6]
        A(f's_mul_i32 s{sT4}, s{sW}, 5248'); A(f's_add_u32 s{sT4}, s{sT4}, {LC}')
        A(f'v_and_b32 v{t0}, 7, v{vC}'); A(f'v_mul_u32_u24 v{t0}, 656, v{t0}'); A(f'v_lshrrev_b32 v{t1}, 3, v{vC}'); A(f'v_mul_u32_u24 v{t1}, 160, v{t1}')
        A(f'v_lshl_add_u32 v{t0}, v{vQ}, 4, v{t0}'); A(f'v_add3_u32 v{sw}, s{sT4}, v{t0}, v{t1}')
        A(f'v_lshrrev_b32 v{t1}, 1, v{vQ}'); A(f'v_mul_u32_u24 v{t1}, 160, v{t1}'); A(f'v_add_u32 v{sw2}, v{sw}, v{t1}')
        go, sr = self.t1regs()
        A(f'v_mul_u32_u24 v{t0}, 1639, v{vL}'); A(f'v_add_u32 v{t2}, s{sT4}, v{vLin}')
        for n in range(5):
            if n: A(f'v_add_u32 v{t0}, {64*1639}, v{t0}')
            A(f'v_lshrrev_b32 v{t1}, 16, v{t0}'); A(f'v_lshl_add_u32 v{sr[n]}, v{t1}, 4, v{t2}')
        A(f's_mul_i32 s{sT1}, s{sW}, {8*163840}'); A(f's_mul_i32 s{sT2}, s{sI}, 320'); A(f's_add_u32 s{sT1}, s{sT1}, s{sT2}')
        A(f's_mul_i32 s{sT2}, s{sJ}, 10240'); A(f's_add_u32 s{sT1}, s{sT1}, s{sT2}'); A(f's_add_u32 s{sT4}, s{sT1}, {hx(T1B)}')
        if self.o['slim']: A(f's_add_u32 s{sTC}, s{sT4}, 4096')
        A(f'v_and_b32 v{vGt}, 31, v{vL}'); A(f'v_lshlrev_b32 v{vGt}, 5, v{vGt}')
        return ad

    def t1regs(self):
        return vGo, [vRp[0], vRp[1], vGb, vGu, vMx]

    def cvar(self):
        return [CB, FR[0] + 16], [CB + 4, FR[0] + 20], [FR[0] + 24, FR[0] + 28], [FR[1] + 16, FR[1] + 20]

    def stepB(self, pollB):
        sw = vTe
        go, sr = self.t1regs()
        cos, sin, nsin, ncos = self.cvar()
        p = []
        for T in range(3):
            b = ACC + 8*T; d = Z2 + 4*T
            for x in range(0, 8, 2): p.append(f'v_pk_mul_f32 {v(b+x, 2)}, {v(b+x, 2)}, {v(vAl-1, 2)} op_sel:[0,1] op_sel_hi:[1,1]')
            for x in range(0, 8, 2): p.append(f'v_pk_fma_f32 {v(b+x, 2)}, {v(b+24+x, 2)}, {v(vBe, 2)}, {v(b+x, 2)} op_sel_hi:[1,0,1]')
            for x in range(4): p.append(f'v_cvt_pk_bf16_f32 v{d+x}, v{b+2*x}, v{b+2*x+1}')
            p += [f'v_permlane16_swap_b32 v{d}, v{d+2}', f'v_permlane16_swap_b32 v{d+1}, v{d+3}', f'ds_write_b128 v{vGa}, {v(d, 4)} offset:{L_ZT + T*2048}']
        p += self.stamp('@B ztw') + [pollB, Mark('waitds', None), 's_barrier', Mark('free', 'flagB0')] + self.stamp('@B bar')
        def rd(t):
            fr = FR[t & 1]; out = []
            for k in range(2):
                if t < 2: ar, o = vRb[k], L_ZT + t*2048
                elif t == 2: ar, o = vZ[2+k], L_ZT
                else: ar, o = vZ[4+k], L_ZT + (4-t)*2048
                out += [f'ds_read_b128 {v(fr+8*k, 4)}, v{ar} offset:{o}', f'ds_read_b128 {v(fr+8*k+4, 4)}, v{ar} offset:{o + 48*128}']
            return out
        def mf(t):
            fr = FR[t & 1]; re, im = v(ACC+8*t, 4), v(ACC+8*t+4, 4); out = []
            for k in range(2):
                zr, zi = v(fr+8*k, 4), v(fr+8*k+4, 4)
                out += [mfma(re, zr, v(cos[k], 4), '0' if k == 0 else None), mfma(im, zr, v(nsin[k], 4), '0' if k == 0 else None)]
            for k in range(2):
                zr, zi = v(fr+8*k, 4), v(fr+8*k+4, 4)
                out += [mfma(re, zi, v((sin if t < 3 else nsin)[k], 4)), mfma(im, zi, v((cos if t < 3 else ncos)[k], 4))]
            return out
        def pack(t):
            b = ACC + 8*t; d = Z2 + 4*t
            return [f'v_cvt_pk_bf16_f32 v{d+x}, v{b+2*x}, v{b+2*x+1}' for x in range(4)] + \
                   [f'ds_write_b128 v{vZ[6] if t == 2 else sw}, {v(d, 4)} offset:{64*t + (160 if t > 2 else 0)}']
        p += rd(0)
        for t in range(5):
            m = mf(t)
            if t == 2:
                flip = [f'v_xor_b32 v{FR[0]+8*k+4+x}, v{vZ[7]}, v{FR[0]+8*k+4+x}' for k in range(2) for x in range(4)]
                p += slot(m[:4], (flip, 0, 2), keep=0) + slot(m[4:], (rd(3), 0, 1), (pack(1), 0, 2), keep=0)
            else:
                p += slot(m, (rd(t+1) if t < 4 else [], 0, 1), (pack(t-1) if t else [], 3, 2))
        p += self.stamp('@B mf') + pack(4)
        p.append(Mark('waitds', None))
        for n in range(5): p.append(f'ds_read_b128 {v(Z2+4*n, 4)}, v{sr[n]} offset:{1024*n}')
        return p

    def t1_store(self):
        go, sr = self.t1regs(); sl = self.o['slim']
        return [I(f'buffer_store_dwordx4 {v(Z2+4*n, 4)}, v{go[n]}, {srd(SWS)}, s{sT4 if n < 4 or not sl else sTC} offen offset:{1024*(n % 4) if sl else 0} sc1', tok='t1st') for n in range(5 - int(self.o['not1']))]

    def z_addr(self):
        t0, t1, t2 = TMP, TMP + 1, TMP + 2
        p = [f'v_bfe_u32 v{t2}, v{vL}, 2, 2', f'v_lshl_add_u32 v{t0}, v{vQ}, 3, v{t2}', f'v_lshlrev_b32 v{t0}, 8, v{t0}',
             f'v_and_b32 v{t1}, 1, v{vQ}', f'v_lshl_add_u32 v{t0}, v{t1}, 7, v{t0}',
             f'v_bfe_u32 v{t1}, v{vL}, 1, 1', f'v_lshl_add_u32 v{t0}, v{t1}, 6, v{t0}',
             f'v_lshl_add_u32 v{t0}, v{t2}, 4, v{t0}', f'v_and_b32 v{t1}, 1, v{vL}', f'v_lshl_add_u32 v{t0}, v{t1}, 3, v{t0}',
             f's_bfe_u32 s{sT1}, s{sMK}, 0x20001', f's_lshl_b32 s{sT1}, s{sT1}, 4', f's_lshl_b32 s{sT2}, s{sKH}, 7', f's_or_b32 s{sT1}, s{sT1}, s{sT2}', f'v_xor_b32 v{t0}, s{sT1}, v{t0}',
             f'v_add_u32 v{vZ[0]}, s{sLZ}, v{t0}']
        for n in range(1, 8):
            T, c = n >> 2, n & 3
            p.append(f'v_xor_b32 v{vZ[n]}, {T*128 + c*16}, v{vZ[0]}')
        return p

    def phase2(self):
        RECV = Z2
        def reads(sg):
            fr = FR[sg & 1]; slot = sg % 3; out = [Mark('need', [f'Z{sg}'])]
            if sg in (2, 4, 6, 8, 10) and self.o['mc2'] != 3:
                out = [f'v_xor_b32 v{vZ[n]}, s{sDZ}, v{vZ[n]}' for n in range(8)] + out
            for c in range(4):
                for T in range(2):
                    for hf in range(2):
                        out.append(f'ds_read_b64_tr_b16 {v(fr + 8*c + 4*T + 2*hf, 2)}, v{vZ[4*T+c]} offset:{slot*8192 + hf*1024}')
            return out
        def acc(pp, T, u): return ACC + 32*(pp & 1) + 4*(4*T + u)
        def mf(sg):
            pp, ga, pi = sg >> 2, (sg >> 1) & 1, sg & 1; fr = FR[sg & 1]; out = []
            for c in range(4):
                kp = 4*ga + c
                for T, u in ([(T, u) for u in range(4) for T in range(2)] if self.o['uout'] else [(T, u) for T in range(2) for u in range(4)]):
                    if True:
                        out.append(mfma(v(acc(pp, T, u), 4), v(fr + 8*c + 4*T, 4), a(32*kp + 8*u + 4*pi, 4),
                                        (v(BQ + 4*u, 4) if T == 0 and u < 2 else '0') if (sg & 3) == 0 and c == 0 else None))
            return out
        def red_write(pp):
            return [I(f'ds_write_b128 v{vRd[(u & 2) + T - 1]}, {v(acc(pp, T, u), 4)} offset:{((u & 1) ^ T)*1024}', tok=f'rw{pp}') for T in range(2) for u in range(4) if (u & 2) + T and not (self.o['halfred'] and pp < 2 and u & 1)]
        def red_read():
            return [f'ds_read_b128 {v(RECV + 8*y + 4*T, 4)}, v{vExR} offset:{y*2048 + T*1024}' for y in range(3) for T in range(2)]
        def epi(pp, pk=False):
            own = acc(pp, 0, 0); out = []
            if pk:
                for y in range(3):
                    for x in range(0, 8, 2): out.append(f'v_pk_add_f32 {v(own+x, 2)}, {v(own+x, 2)}, {v(RECV+8*y+x, 2)}')
                for x in range(0, 8, 2): out.append(f'v_pk_mul_f32 {v(own+x, 2)}, {v(own+x, 2)}, {v(Z1+8*pp+x, 2)}')
            else:
                for y in range(3):
                    for x in range(8): out.append(f'v_add_f32 v{own+x}, v{own+x}, v{RECV+8*y+x}')
                for x in range(8): out.append(f'v_mul_f32 v{own+x}, v{own+x}, v{Z1+8*pp+x}')
            for x in range(4): out.append(f'v_cvt_pk_bf16_f32 v{TMP+4+x}, v{own+2*x}, v{own+2*x+1}')
            if pp:
                for x in range(4): out.append(f'v_min_u32 v{TMP+4+x}, -2, v{TMP+4+x}')
            out += [f'v_permlane16_swap_b32 v{TMP+4}, v{TMP+6}', f'v_permlane16_swap_b32 v{TMP+5}, v{TMP+7}']
            out.append(I(f'buffer_store_dwordx4 {v(TMP+4, 4)}, v{vHs}, {srd(SWS)}, s{sT1} offen sc1', tok=f'hst{pp}'))
            return out
        def haddr(pp):
            return [f's_mul_i32 s{sT1}, s{sI}, 96', f's_add_u32 s{sT1}, s{sT1}, s{sJ}', f's_lshl_b32 s{sT1}, s{sT1}, 10', f's_add_u32 s{sT1}, s{sT1}, {hx(HBUF + pp*8192)}']
        def clear():
            return [f'v_mov_b32 v{POLL+4+x}, -1' for x in range(4)] + haddr(2) + \
                   [I(f'buffer_store_dwordx4 {v(POLL+4, 4)}, v{vHs}, {srd(SWS)}, s{sT1} offen sc1', tok='hst0')]
        def flagc(pp):
            return [f's_lshl_b32 s{sT1}, s{sKH}, 3', f's_add_u32 s{sT1}, s{sT1}, s{sJ}', f's_lshl_b32 s{sT1}, s{sT1}, 7', f's_add_u32 s{sT1}, s{sT1}, {pp*2048}', f's_add_u32 s{sT1}, s{sT1}, s{sFC}', self.flag_store([f'hst{pp}', 'clr'], sT1)]
        p = []
        t1s = self.t1_store(); pre3 = self.p3_pre()
        if self.o['t1stag']:
            sites, src = self.o['t1stag']
            p += [f's_and_b32 s{sSTG}, s{dict(i=sI, j=sJ, w=sW)[src]}, {len(sites) - 1}']
        p += [x for x, at in zip(t1s, self.o['t1at']) if at < 0]
        p += reads(0)
        for sg in range(12):
            pp = sg >> 2
            p += [Mark('waitds', None), Mark('free', f'Zf{sg}')] + self.stamp(f'@2 blk{sg}')
            m = mf(sg)
            if sg == 11 and self.o['lastord']:
                own = {v(acc(2, 0, 0), 4), v(acc(2, 0, 1), 4)}
                dst = lambda x: x.split()[1].rstrip(',')
                order = [v(acc(2, T, u), 4) for T in range(2) for u in range(4) if (u & 2) + T]
                head = [x for x in m[:16] if dst(x) not in own]
                rest = [x for x in m[16:] if dst(x) not in own]
                rest.sort(key=lambda x: order.index(dst(x)))
                m = head + rest + [x for x in m if dst(x) in own]
            rd = reads(sg+1) if sg < 11 else []
            if sg in (4, 8):
                w = red_write(pp-1)
                st = [x for x, at in zip(t1s, self.o['t1at']) if at == sg]
                w = [x for pair in zip(w, st + [None]*6) for x in pair if x is not None]
                blk = m[:2] + sprinkle(m[2:17], w) + slot(m[17:20], (rd[:4], 0, 1))
                blk += [Mark('waitds', [f'rw{pp-1}']), 's_barrier']
                blk += slot(m[20:], (red_read() + rd[4:], 0, 2))
                pass
            elif sg in (5, 9):
                e = haddr(pp-1) + epi(pp-1)
                blk = slot(m, (rd, 12, 1), (e[:self.o['esplit']], 0, 2))
                carry = e[self.o['esplit']:]
                if sg == 9: blk = blk[:10] + self.ldC(0) + blk[10:]
            else:
                ex = []
                if sg in (6, 10): ex = carry
                if self.o['gshadow'] and sg in (0, 1, 2, 3, 6, 10): ex = ex + self.gelu_s(Z1 + 4*(0, 1, 2, 3, 6, 10).index(sg), 4, POLL + 4)
                if sg == 7: ex = pre3[:len(pre3)//2]
                if sg == 11: ex = pre3[len(pre3)//2:]
                blk = slot(m, (rd, self.o['rdat'], 1), (ex, 0, 2))
                if sg < 4:
                    st = [x for x, at in zip(t1s, self.o['t1at']) if at == sg]
                    if self.o['t1stag']:
                        sites, src = self.o['t1stag']; st = []
                        if sg in sites:
                            for x in t1s:
                                l = self.lab('stag')
                                st.append(G(Mark('waitregs', x.r), f's_cmp_eq_u32 s{sSTG}, {sites.index(sg)}', f's_cbranch_scc0 {l}', Mark('raw', [x.text]), f'{l}:'))
                    if sg == self.o['clrat']: st = [G(self.clears(TMP + 4))] + st
                    blk = sprinkle(blk, [G(x) if isinstance(x, list) else x for x in st])
                if sg == 7: blk = blk + [self.flag_store(['t1st', 'Z8'], sFB)]
                if sg == 6: blk = blk + flagc(pp-1) + ([G(self.codepf(2))] if self.o['codepf2'] else [])
                if sg == 10: blk = blk[:12] + [self.poll(self.ldC(0), [f'v{POLL}']), Mark('free', 'flagC0')] + blk[12:30] + self.ldT() + blk[30:]
                if sg == 11 and self.o['lastord']:
                    w = red_write(2)
                    blk = slot(m[:18], (ex, 0, 2)) + sprinkle(m[18:], [[]] + w) if False else slot(m[:18], (ex, 0, 2)) + [x for k in range(14) for x in [m[18+k]] + ([w[k//2]] if k % 2 == 1 and k//2 < 6 else [])]
                if sg in (7, 11): blk = blk[:4] + ['s_barrier'] + blk[4:]
            for pos in sorted(self.o['xbar'].get(sg, ()), reverse=True):
                idx = [n for n, x in enumerate(norm(blk)) if isinstance(x, Ins) and x.kind == 'mfma'][pos]
                blk = norm(blk); blk = blk[:idx] + [Ins('s_barrier')] + blk[idx:]
            p += blk
        p += self.stamp('p2 mfma done')
        e = epi(2, True)
        p += [Mark('free', 'flagC1')] + ([] if self.o['lastord'] else red_write(2)) + haddr(2) + [self.poll(self.ldT(), [f'v{POLL+1}']), Mark('free', 'flagT'), Mark('waitds', None), 's_barrier'] + red_read() + e[:-1] + [Mark('flush', 'h1'), e[-1]]
        p += self.stamp('h2 stored')
        return p

    def ldC(self, pp):
        return [f'buffer_load_dword v{POLL}, v{vS[0]}, {srd(SWS)}, s{sFC} offen offset:{pp*2048} sc1']

    def ldT(self):
        return [f'buffer_load_dword v{POLL+1}, v{vS[1]}, {srd(SWS)}, s{sT3} offen sc1']

    def poll_addr(self):
        return [f'v_lshlrev_b32 v{vS[0]}, 7, v{vC}']

    def p3_pre(self):
        t0, t1, t2 = TMP, TMP + 1, TMP + 2
        p = [f's_sub_u32 s{sT2}, 7, s{sJ}', f's_min_u32 s{sT2}, s{sT2}, s{sJ}', f's_lshl_b32 s{sT2}, s{sT2}, 1', f's_and_b32 s{sT3}, s{sI}, 24',
             f's_add_u32 s{sT3}, s{sT3}, s{sT2}', f's_lshl_b32 s{sT3}, s{sT3}, 10', f's_add_u32 s{sT3}, s{sT3}, {FLAGT}']
        p += [f'v_add_u32 v{vX[1]}, 65536, v{vLin}', f'v_add_u32 v{vW[0]}, 131072, v{vLin}']
        p += [f'v_lshrrev_b32 v{t0}, 1, v{vQ}', f'v_bfe_u32 v{t1}, v{vL}, 2, 2', f'v_lshl_add_u32 v{t0}, v{t0}, 3, v{t1}', f'v_mul_u32_u24 v{t0}, 320, v{t0}',
              f'v_and_b32 v{t1}, 3, v{vL}', f'v_lshl_add_u32 v{t0}, v{t1}, 4, v{t0}', f'v_and_b32 v{t1}, 1, v{vQ}', f'v_lshl_add_u32 v{t0}, v{t1}, 3, v{t0}',
              f's_mul_i32 s{sT2}, s{sKH}, 160', f's_add_u32 s{sT2}, s{sT2}, {LC}', f'v_add_u32 v{vW[1]}, s{sT2}, v{t0}',
              f'v_bfe_u32 v{t1}, v{vL}, 1, 1', f'v_mul_u32_u24 v{t1}, {10240-160}, v{t1}', f'v_add_u32 v{vW[2]}, v{vW[1]}, v{t1}']
        sw, sr = vGa, vGt
        go = [vH[0], vH[1], vH[2]]
        p += [f's_mul_i32 s{sT2}, s{sW}, 2560', f's_add_u32 s{sT2}, s{sT2}, {L_W0}', f'v_add_u32 v{sr}, s{sT2}, v{vLin}',
              f'v_mul_u32_u24 v{t0}, 160, v{vC}', f'v_lshl_add_u32 v{t0}, v{vQ}, 3, v{t0}', f'v_add_u32 v{sw}, s{sT2}, v{t0}']
        p += [f's_mov_b32 s{sT2}, {81920 - 160}', f'v_mul_u32_u24 v{t0}, 6554, v{vL}']
        for n in range(3):
            if n: p.append(f'v_add_u32 v{t0}, {64*6554}, v{t0}')
            p += [f'v_lshrrev_b32 v{t1}, 16, v{t0}', f'v_mad_u32_u24 v{go[n]}, v{t1}, s{sT2}, v{vLin}']
        p += [f's_lshl_b32 s{sT4}, s{sWH}, 5', f's_add_u32 s{sT4}, s{sT4}, s{sKH}', f's_lshl_b32 s{sT4}, s{sT4}, 5', f's_add_u32 s{sT4}, s{sT4}, s{sI}',
              f's_mul_i32 s{sT4}, s{sT4}, 1280', f's_mul_i32 s{sT2}, s{sJ}, 160', f's_add_u32 s{sT4}, s{sT4}, s{sT2}']
        return p

    def phase3(self):
        accB, accA, accC = ACC, ACC + 20, ACC + 40
        o = self.o
        lo, hi, hi2, ta = vLin, vX[1], vW[0], vW[1]
        sw, sr = vGa, vGt
        go = [vH[0], vH[1], vH[2]]
        WR, TR_, PR = 64, 144, FR[0]
        def wreg(kk, t): return a(WR + 20*(kk & 3) + 4*t, 4)
        def rd(kk):
            out = []
            if kk > 23: return out
            for t in range(5):
                la = self.l_w(kk*5 + t)
                out.append(f'ds_read_b128 {wreg(kk, t)}, v{(lo, hi, hi2)[la >> 16]} offset:{la & 65535}')
            return out
        def ready(kk): return Mark('waitregs', [x for t in range(5) for x in regs_of(wreg(kk, t))])
        def mf(kk):
            d = accB if kk < 16 else accC
            return [mfma(v(d + 4*t, 4), wreg(kk, t), self.hreg(kk), '0' if kk in (0, 16) else None) for t in range(5)]
        p = [Mark('need', ['O0', 'O1', 'h0']), Mark('waitds', None), 's_barrier', Mark('free', 'Cfree')]
        p += self.stamp('O01 ok')
        p += rd(0) + rd(1)
        p.append(f'v_sub_f32 v{vBias}, 1.0, v{vGate}')
        mx = TMP
        def reload(n):
            rl = []
            for k in range(8):
                if k % 4 == 0: rl.append(f's_add_u32 s{sT2}, s{sHB}, {(8*n+k)*1024}')
                rl.append(f'buffer_load_dwordx4 {self.hreg(8*n+k)}, v{vLin}, {srd(SWS)}, s{sT2} offen offset:{(k%4)*1024} sc1')
            return rl
        def maxes(kk, first):
            r = regs_of(self.hreg(kk))
            return [f'v_max3_u32 v{mx}, {r[0]}, {r[1]}, {r[2]}' if first else f'v_max3_u32 v{mx}, v{mx}, {r[0]}, {r[1]}',
                    f'v_max_u32 v{mx}, v{mx}, {r[3]}' if first else f'v_max3_u32 v{mx}, v{mx}, {r[2]}, {r[3]}']
        allmax = [x for kk in range(8, 16) for x in maxes(kk, kk == 8)]
        trd = [f'ds_read_b64_tr_b16 {a(TR_ + 20*k + 4*t + 2*hf, 2)}, v{vW[2] if t == 2 else ta} offset:{k*5120 + hf*1280 + t*64 + (10240-160 if t > 2 else 0)}'
               for k in range(2) for t in range(5) for hf in range(2)]
        b2 = o['bar2at']; nt = -(-20 // (16 - b2))
        for kk in range(16):
            if kk % 2 == 0: p += self.stamp(f'@3 kk{kk}')
            if kk == 8:
                c1, o1 = self.lab('chk'), self.lab('ok')
                p.append(G(f'{c1}:', f'v_cmp_eq_u32 vcc, -1, v{mx}', f's_cbranch_vccz {o1}',
                           Mark('raw', [f's_cmp_eq_u32 s{sTO}, 0', f's_cbranch_scc1 {o1}', f's_sub_u32 s{sTO}, s{sTO}, 1'] + reload(1) + ['s_waitcnt vmcnt(0)'] + allmax + [f's_branch {c1}']),
                           f'{o1}:'))
            if kk == b2: p += [Mark('need', ['O2', 'T']), 's_barrier'] + self.stamp('@3 O2,T')
            if kk == o['h2at']: p.append(Mark('free', 'flagC2'))
            ex = allmax[4*(kk-4):4*(kk-3)] if 4 <= kk < 8 else []
            if kk >= b2: ex = trd[nt*(kk-b2):nt*(kk-b2+1)]
            p += [ready(kk)] + slot(mf(kk), (rd(kk+2), 0, 1), (ex, 0, 1), keep=0)
        p += self.stamp('@3 k16')
        p += [Mark('free', 'flagC2'), Mark('waitds', None)]
        mA = [mfma(v(accA + 4*t, 4), a(TR_ + 20*k + 4*t, 4), v(CF + 4*k, 4), '0' if k == 0 else None) for k in range(2) for t in range(5)]
        p += slot(mA, ([f'v_mul_f32 v{PR+x}, v{vBias}, v{accB+x}' for x in range(20)], 2, 2), keep=0)
        p.append(Mark('flush', 'h2'))
        p += self.stamp('@3 prepoll')
        again, retry, done = self.lab('again'), self.lab('retry'), self.lab('done')
        fin = [f'v_fma_f32 v{FR[1]+x}, v{vGate}, v{accA+x}, v{PR+x}' for x in range(20)]
        q = [f'{again}:']
        for kk in range(16, 24):
            ex = fin[3*(kk-16):3*(kk-15)] + maxes(kk, kk == 16)
            if o['chkmid'] and kk == 20: q += [f'v_cmp_eq_u32 vcc, -1, v{mx}', f's_cbranch_vccnz {retry}']
            q += [ready(kk)] + slot(mf(kk), (rd(kk+2), 0, 1), (ex, 0, 1 if kk < 22 else 2), keep=0)
        q += [f'v_cmp_eq_u32 vcc, -1, v{mx}', f's_cbranch_vccz {done}']
        allmax2 = [x for kk in range(16, 24) for x in maxes(kk, kk == 16)]
        q.append(Mark('raw', [f'{retry}:', 's_waitcnt vmcnt(0) lgkmcnt(0)', 's_nop 7', f's_cmp_eq_u32 s{sTO}, 0', f's_cbranch_scc1 {done}', f's_sub_u32 s{sTO}, s{sTO}, 1'] + reload(2) +
                      ['s_waitcnt vmcnt(0)'] + allmax2 + [f'v_cmp_eq_u32 vcc, -1, v{mx}', 's_nop 0', f's_cbranch_vccnz {retry}'] + rd(16) + rd(17) +
                      ['s_waitcnt lgkmcnt(0)', f's_branch {again}', f'{done}:', 's_nop 5']))
        p.append(G(q))
        p += self.stamp('h2 mfma done')
        for t in range(5):
            for x in (0, 2): p.append(f'v_pk_fma_f32 {v(accB+4*t+x, 2)}, {v(accC+4*t+x, 2)}, {v(vBias, 2)}, {v(FR[1]+4*t+x, 2)} op_sel_hi:[1,0,1]')
            if o['errscale']:
                p += [f'v_mul_f32 v{accB+4*t+x}, {hx(f2u(1.0 + o["errscale"]))}, v{accB+4*t+x}' for x in range(4)]
            p += [f'v_cvt_pk_bf16_f32 v{FR[0]+2*t}, v{accB+4*t}, v{accB+4*t+1}', f'v_cvt_pk_bf16_f32 v{FR[0]+2*t+1}, v{accB+4*t+2}, v{accB+4*t+3}',
                  f'ds_write_b64 v{sw}, {v(FR[0]+2*t, 2)} offset:{32*t}']
        p.append(Mark('waitds', None))
        for n in range(3): p.append(f'ds_read_b128 {v(FR[1]+4*n, 4)}, v{sr} offset:{1024*n}')
        for n in range(2): p.append(f'buffer_store_dwordx4 {v(FR[1]+4*n, 4)}, v{go[n]}, {srd(SOUT)}, s{sT4} offen offset:{1024*n}{o["outfl"]}')
        p.append(G('s_mov_b32 exec_hi, 0', f'buffer_store_dwordx4 {v(FR[1]+8, 4)}, v{go[2]}, {srd(SOUT)}, s{sT4} offen offset:2048{o["outfl"]}', 's_mov_b64 exec, -1'))
        return p

    def dump(self, name, reg, n):
        if self.o['dbg'] != name: return []
        p = [f's_lshl_b32 s{sT1}, s{sI}, 3', f's_add_u32 s{sT1}, s{sT1}, s{sJ}', f's_lshl_b32 s{sT1}, s{sT1}, 2', f's_add_u32 s{sT1}, s{sT1}, s{sW}',
             f's_mul_i32 s{sT1}, s{sT1}, {n*256}', f's_add_u32 s{sT1}, s{sT1}, {hx(DBGB)}']
        for x in range(0, n, 4):
            p += [f'buffer_store_dwordx4 {v(reg+x, 4)}, v{vLin}, {srd(SWS)}, s{sT1} offen', f's_add_u32 s{sT1}, s{sT1}, 1024']
        return [G(p)]

    def build(self):
        o = self.o
        c = []
        c += self.setup1()
        su = self.setup2() + self.tag()
        lz1 = []
        if o['hgen']:
            for n in range(5):
                if n < o['hgen']: su = su + self.hgen(n)
                else: lz1 = lz1 + self.hgen(n)
        su = norm(su)
        c += su[:o['pre']]
        c += self.gemm('z2', late=su[o['pre']:])
        c += self.stamp('z2 gemm done')
        c += self.gelu(Z2, None, ACC)
        c += self.dump('z2', Z2, 24)
        c += self.stats_publish()
        c += self.stamp('stats published')
        if o['clrat'] == -1: c += self.clears()
        if o['cp3']: c.append(G(self.codepf(3, o['cp3'])))
        c += self.gemm('z1', late=norm(lz1), nlate=2)
        c += self.stamp('z1 gemm done')
        c += self.normalize_publish()
        if o['cp4']: c.append(G(self.codepf(4, o['cp4'])))
        c += self.dump('z2n', Z2, 24)
        c += [f's_mul_i32 s{sT1}, s{sKH}, 6144', f's_add_u32 s{sT1}, s{sT1}, 2048'] + [f'v_add_u32 v{vRx[k]}, s{sT1}, v{vRb[k]}' for k in range(2)]
        c += self.flagB_addr()
        c += self.gate()
        gA = self.gemm('A', self.stepB_pre())
        c += gA[:o['fbat']] + [self.flag_store(['z2st', 'relst'], sFB)] + self.stamp('flagB stored') + gA[o['fbat']:]
        c += self.stamp('stepA done')
        c += [G(self.codepf(1))] if o['codepf2'] else []
        ldB = [f'buffer_load_dword v{POLL}, v{vGt}, {srd(SWS)}, s{sT3} offen sc1']
        c += [f's_mul_i32 s{sLZ}, s{sW}, 24576'] + ldB + self.stepB(self.poll(ldB, [f'v{POLL}']))
        c += self.stamp('T1 stored')
        c += self.z_addr()
        c += [f's_lshl_b32 s{sT1}, s{sW}, 3', f's_add_u32 s{sT1}, s{sT1}, s{sJ}', f's_lshl_b32 s{sT1}, s{sT1}, 5', f's_add_u32 s{sT1}, s{sT1}, s{sI}',
              f's_lshl_b32 s{sT1}, s{sT1}, 5', f's_add_u32 s{sFB}, s{sT1}, {FLAGT}']
        c.append(Mark('flush', 'Pc31'))
        c += [Mark('waitds', None), 's_barrier', Mark('free', 'flagB')]
        c += self.stamp('flagB ok')
        c += [f'v_mov_b32 v{BQ+x}, v{vBias if x < 4 else vBias1}' for x in range(8)] + self.poll_addr() + [f'v_lshlrev_b32 v{vS[1]}, 5, v{vL}']
        if not o['gshadow']: c += self.gelu(Z1, None, ACC + 32)
        c += self.dump('z1', Z1, 24)
        c += self.stamp('z1 gelu done')
        def epoch():
            e = self.lab('ep')
            c.append(G(f's_or_b32 s{sT1}, s{sI}, s{sJ}', f's_or_b32 s{sT1}, s{sT1}, s{sW}', f's_cmp_eq_u32 s{sT1}, 0', f's_cbranch_scc0 {e}',
                       Mark('raw', [f'v_mov_b32 v{vT}, 0', 's_mov_b64 exec, 1', f'buffer_store_dword v{vTag}, v{vT}, {srd(SWS)}, 0 offen sc1', 's_mov_b64 exec, -1']), f'{e}:'))
        if o['epearly']: epoch()
        c += self.phase2()
        c += self.phase3()
        if not o['epearly']: epoch()
        if o['stamps']:
            c += [G('s_waitcnt vmcnt(0)')] + self.stamp('end')
            st = [f's_lshl_b32 s{sT1}, s{sI}, 3', f's_add_u32 s{sT1}, s{sT1}, s{sJ}', f's_lshl_b32 s{sT1}, s{sT1}, 2', f's_add_u32 s{sT1}, s{sT1}, s{sW}',
                  f's_lshl_b32 s{sT1}, s{sT1}, 7', f's_add_u32 s{sT1}, s{sT1}, {hx(STAMP)}', f'v_mov_b32 v{vT}, 0', 's_mov_b64 exec, 1']
            for n in range(0, 20, 4):
                for x in range(4): st.append(f'v_mov_b32 v{TMP+x}, s{STAMP0+n+x}' if n + x < self.nstamp else f'v_mov_b32 v{TMP+x}, 0')
                st += [f'buffer_store_dwordx4 {v(TMP, 4)}, v{vT}, {srd(SWS)}, s{sT1} offen offset:{4*n}', 's_nop 1']
            c.append(G(st))
        if o['dbgst']:
            e = self.lab('dbg')
            st = ['s_mov_b64 exec, -1', f's_or_b32 s{sT1}, s{sI}, s{sJ}', f's_or_b32 s{sT1}, s{sT1}, s{sW}', f's_cmp_eq_u32 s{sT1}, 0', f's_cbranch_scc0 {e}',
                  f's_load_dwordx2 s[{SGATE}:{SGATE+1}], s[0:1], 96', 's_waitcnt lgkmcnt(0)', f's_mov_b32 s{SGATE+2}, 256', f'v_mov_b32 v{vT}, 0', 's_mov_b64 exec, 1']
            for n in range(0, 16, 4):
                for x in range(4): st += [f's_sub_u32 s{sT1}, s{STAMP0+n+x}, s{STAMP0}', f'v_mov_b32 v{TMP+x}, s{sT1}'] if n + x < self.nstamp else [f'v_mov_b32 v{TMP+x}, 0']
                st += [f'buffer_store_dwordx4 {v(TMP, 4)}, v{vT}, {srd(SGATE)}, 0 offen offset:{4*n}', 's_nop 1']
            c.append(G(Mark('raw', st), f'{e}:'))
        if o['skew']:
            op = 'max' if o['skew'] == 'max' else 'min'
            st = [f's_mov_b32 s{sT1}, {hx(STAMP+0x30000)}', 's_mov_b64 exec, -1', f'buffer_load_dwordx4 {v(TMP,4)}, v{vLin}, {srd(SWS)}, s{sT1} offen sc1', 's_waitcnt vmcnt(0)']
            for x in range(4): st.append(f'v_subrev_u32 v{TMP+x}, s{STAMP0}, v{TMP+x}')
            st += [f'v_{op}_i32 v{TMP}, v{TMP}, v{TMP+1}', f'v_{op}_i32 v{TMP+2}, v{TMP+2}, v{TMP+3}', f'v_{op}_i32 v{TMP}, v{TMP}, v{TMP+2}', 's_nop 1', f's_mov_b32 s{sT2}, 0']
            for l in range(64): st += [f'v_readlane_b32 s{sT1}, v{TMP}, {l}', 's_nop 0', f's_{op}_i32 s{sT2}, s{sT2}, s{sT1}']
            st += [f's_abs_i32 s{sT2}, s{sT2}', f's_add_u32 s{STAMP0+1}, s{STAMP0}, s{sT2}']
            c.append(G(Mark('raw', st)))
        if o['amp']:
            na, nb, k = o['amp']; e, l = self.lab('amp'), self.lab('spin')
            ia, ib = self.stamp_names.index(na), self.stamp_names.index(nb)
            c.append(G(Mark('raw', [f's_or_b32 s{sT1}, s{sI}, s{sJ}', f's_or_b32 s{sT1}, s{sT1}, s{sW}', f's_cmp_eq_u32 s{sT1}, 0', f's_cbranch_scc0 {e}',
                   f's_sub_u32 s{sT1}, s{STAMP0+ib}, s{STAMP0+ia}', f's_mul_i32 s{sT1}, s{sT1}, {k}', f's_min_u32 s{sT1}, s{sT1}, 100000',
                   f'{l}:', 's_memrealtime s[62:63]', 's_waitcnt lgkmcnt(0)', f's_sub_u32 s{sT2}, s62, s{STAMP0+self.nstamp-1}', f's_cmp_lt_u32 s{sT2}, s{sT1}', f's_cbranch_scc1 {l}']), f'{e}:'))
        self.log = []
        if o['pure']:
            self.nstamp = 1; self.stamp_names = ['entry']
            st = self.stream(); cc = norm(self.setup1())
            cc = [x for x in cc if not (isinstance(x, Mark) and x.kind in ('flush', 'emit'))]
            flat = []
            for x in cc: flat += x.arg if isinstance(x, Mark) and x.kind == 'group' else [x]
            nf = o['purefirst']
            first = [it for b in st[:nf] for it in b.items if isinstance(it, Ins)]
            for x in norm(self.setup2()): flat += x.arg if isinstance(x, Mark) and x.kind == 'group' else [x]
            cut = max(n for n, x in enumerate(flat) if isinstance(x, Ins) and x.text.startswith(f's_lshl_b32 s{sLW3}')) + 1
            items = flat[:cut] + first + ([Ins('s_waitcnt vmcnt(0)'), Ins(o['clk'] + ' s[90:91]'), Ins('s_waitcnt lgkmcnt(0)'), Ins('s_mov_b32 s2, s90')] if nf > 10 else []) + flat[cut:] + [Ins(f's_mul_i32 s{sLZ}, s{sW}, 24576')]
            last = None; k = 0
            for b in st[nf:]:
                grp = b.tok[0] if b.tok[0] != 'S' else ('S' if int(b.tok[1:]) < 5 else 'W')
                if grp != last and grp in 'WPZO' and f'to {grp}' not in self.stamp_names:
                    for x in self.stamp(f'to {grp}'): items += x.arg
                last = grp
                for it in b.items:
                    if isinstance(it, Ins) and it.kind != 'ds':
                        items.append(it)
                        if it.kind == 'vm':
                            k += 1; items.append(Ins(f's_waitcnt vmcnt({o["pure"]})'))
            tail = [Ins('s_waitcnt vmcnt(0)')]
            for x in self.stamp('end'): tail += x.arg
            stt = [f's_lshl_b32 s{sT1}, s{sI}, 3', f's_add_u32 s{sT1}, s{sT1}, s{sJ}', f's_lshl_b32 s{sT1}, s{sT1}, 2', f's_add_u32 s{sT1}, s{sT1}, s{sW}',
                   f's_lshl_b32 s{sT1}, s{sT1}, 7', f's_add_u32 s{sT1}, s{sT1}, {hx(STAMP)}', f'v_mov_b32 v{vT}, 0', 's_mov_b64 exec, 1']
            for n in range(0, 8, 4):
                for x in range(4): stt.append(f'v_mov_b32 v{TMP+x}, s{STAMP0+n+x if (n + x != 1 or nf <= 10) else 2}' if n + x < self.nstamp else f'v_mov_b32 v{TMP+x}, 0')
                stt += [f'buffer_store_dwordx4 {v(TMP, 4)}, v{vT}, {srd(SWS)}, s{sT1} offen offset:{4*n}', 's_nop 1']
            items = [x for x in items if isinstance(x, Ins)] + tail + norm(stt)
            self.lines = finalize(items)
            return self.lines
        items = merge(c, self.stream(), window=o['window'], lat=o['lat'], log=self.log, overdue=o['overdue'])
        if o['nocomp']:
            items = [it for it in items if not (isinstance(it, Ins) and any(it.op.startswith(x) for x in o['nocomp']))]
        if o['trace']:
            na, nb, step, reg = o['trace']; out = []; on = False; k = 0; cnt = 0
            def point():
                nonlocal k
                r = []
                if k: r.append(I(f'v_writelane_b32 v{reg + (k-1)//64}, s{44 + 2*((k-1) % 4)}, {(k-1) % 64}'))
                r += [Mark('anchor', f'T{k}'), I(f's_memtime s[{44 + 2*(k % 4)}:{45 + 2*(k % 4)}]', tok='trace')]
                k += 1
                return r
            for it in items:
                if isinstance(it, Mark) and it.kind == 'anchor':
                    if it.arg == na: on = True; out += point(); cnt = 0
                    if it.arg == nb and on:
                        on = False; out += point(); out.append(I('s_waitcnt lgkmcnt(0)')); out += point()[:1]
                        out += norm([f's_lshl_b32 s52, s{sI}, 3', f's_add_u32 s52, s52, s{sJ}', f's_lshl_b32 s52, s52, 2', f's_add_u32 s52, s52, s{sW}',
                                     's_lshl_b32 s52, s52, 10', f's_add_u32 s52, s52, {hx(DBGB)}', f'buffer_store_dwordx4 {v(reg, 4)}, v{vLin}, {srd(SWS)}, s52 offen', 's_nop 1'])
                out.append(it)
                if on and isinstance(it, Ins) and it.kind != 'label' and (not o['nocomp'] or it.kind == 'vm'):
                    cnt += 1
                    if cnt >= step and k < 254: out += point(); cnt = 0
            items = out; self.ntrace = k - 1
        lines = finalize(items)
        self.lines = lines
        return lines

    def align(self, lines):
        o = self.o
        if o['shift']: lines = lines[:2] + ['s_nop 0'] * o['shift'] + lines[2:]
        if not o['al8']: return lines
        import subprocess, re as _re
        src = '.amdgcn_target "amdgcn-amd-amdhsa--gfx950"\n.text\n.set CODE_BYTES, 4096\nL_end:\nL_code_end:\n' + '\n'.join(l for l in lines if not l.startswith(';')) + '\n'
        open('al.s', 'w').write(src)
        subprocess.run(['clang', '-x', 'assembler', '-target', 'amdgcn-amd-amdhsa', '-mcpu=gfx950', '-c', 'al.s', '-o', 'al.o'], check=True)
        dis = subprocess.run(['llvm-objdump', '-d', '--mcpu=gfx950', 'al.o'], capture_output=True, text=True).stdout
        sizes = [4 * len(m.group(1).split()) for m in _re.finditer(r'// [0-9A-F]+: ((?:[0-9A-F]{8} ?)+)', dis)]
        ins = [n for n, l in enumerate(lines) if not l.endswith(':') and not l.startswith(';') and not l.startswith('.')]
        assert len(ins) == len(sizes), (len(ins), len(sizes))
        out = list(lines); pos = 0; last4 = None; pads = []
        for n, sz in zip(ins, sizes):
            op = lines[n].split()[0]
            if sz == 8 and pos % 8 == 4 and (op.startswith('v_mfma') or o['al8'] > 1):
                if last4 is not None:
                    out[last4] = out[last4].replace(out[last4].split()[0], out[last4].split()[0] + '_e64', 1); pos += 4
                else:
                    pads.append(n); pos += 4
                last4 = None
            if sz == 4 and op.startswith('v_') and op not in ('v_readfirstlane_b32',) and not op.startswith('v_permlane') and not op.startswith('v_cmp') and 'vcc' not in lines[n]:
                last4 = n
            elif sz == 8 and (op.startswith('v_mfma') or o['al8'] > 1): last4 = None
            pos += sz
        for n in reversed(pads): out.insert(n, 's_nop 0')
        self.npad = len(pads)
        return out

    def text(self):
        lines = self.build()
        if self.o['B'] is not None:
            ob = dict(self.o); ob.update(self.o['B']); ob['two'] = True; ob['B'] = None
            lb = Gen(**ob).build()
            k = lines.index('; @@ split'); assert lb[:k] == lines[:k]
            import re as _re
            ren = lambda l: _re.sub(r'\b(L_(?!end\b|code_end\b)\w+)\b', lambda m: m.group(1) + '_B', l)
            lines = lines[:k] + [f's_bitcmp1_b32 s2, {self.o["gbit"]}', 's_cbranch_scc1 L_second', 'L_first:'] + lines[k:] + \
                    ['s_endpgm', '.p2align 7', 'L_second:'] + [ren(l) for l in lb[k:]]
        head = open('gated_mix__spectral_fnet__mixer_gmlp__prompt.s.ref').read().split('; Override launch geometry')[0]
        lines = self.align(lines)
        body = '\n'.join(('' if l.endswith(':') or l.startswith('.') else '    ') + l for l in lines if not l.startswith('; @@'))
        return f'''{head};
; One persistent launch, 256 workgroups (one per CU) of 4 waves; straight-line code emitted by my generator script.
; Workgroup (i, j): rows t = 32*m + i (m = 0..63), column block j of 8.
;   phase 1  z2, z1 = gelu(x w_in) tiles, gate, and the hidden-dimension DFT of the tile's rows (MFMA, bf16 in / f32 acc).
;            LayerNorm statistics are exchanged between the 8 column blocks (tagged 16-byte records in d_ws).
;            The sequence DFT (constant DFT matrices) is factored 2048 = 64 x 32: the radix-64 stage with its twiddles
;            runs on the workgroup's own rows, the radix-32 stage in phase 3; the hidden DFT uses the conjugate symmetry
;   phase 2  g = w_sp z2n + b with the 64 x 2048 slice of w_sp resident in AGPRs, z2n streamed through LDS; h = z1 * g.
;   phase 3  out = gate * y + (1 - gate) * (h w_out).
; Hand-offs go through d_ws with write-through (sc1) stores and sc1 loads.  Flags carry a tag derived from an epoch word
; that every launch reads on entry and advances on exit; the last two h blocks are recognised by overwriting a marker that
; this launch wrote first.  Every wait is bounded.  Workgroup numbering is used for L2 locality only.
; @launch grid=(256,1,1) block=(256,1,1) lds={LDS_BYTES}
.amdgcn_target "amdgcn-amd-amdhsa--gfx950"
.text
.globl {KNAME}
.p2align 8
.type {KNAME},@function
{KNAME}:
{body}
L_end:
    s_endpgm
L_code_end:
{'.set CODE_BYTES, L_code_end - L_pc' if self.o['codepf'] else ''}
{'.set CODE_DELTA, L_second - L_first' if self.o['B'] is not None else ''}
.section .rodata,"a"
.p2align 6
.amdhsa_kernel {KNAME}
  .amdhsa_next_free_vgpr 512
  .amdhsa_next_free_sgpr 102
  .amdhsa_accum_offset 256
  .amdhsa_group_segment_fixed_size 0
  .amdhsa_kernarg_size 112
  .amdhsa_user_sgpr_count 2
  .amdhsa_user_sgpr_kernarg_segment_ptr 1
  .amdhsa_system_sgpr_workgroup_id_x 1
  .amdhsa_float_denorm_mode_32 3
.end_amdhsa_kernel
'''


if __name__ == '__main__':
    kw = {}
    out = 'gated_mix__spectral_fnet__mixer_gmlp__prompt.s'
    for x in sys.argv[1:]:
        k, val = x.split('=', 1)
        if k == 'out': out = val
        else: kw[k] = eval(val)
    g = Gen(**kw)
    open(out, 'w').write(g.text())
    for e in g.log: print(e)
```

```python
import sys
from gen import *
def make(out, mode, grid=256, block=256, wait=False):
    g = Gen(); t = g.text()
    K = KNAME
    t = t.replace('; @launch grid=(256,1,1) block=(256,1,1) lds=163840',
                  f'; @launch kernel=warm_kernel grid=({grid},1,1) block=({block},1,1) lds=0\n; @launch kernel={K} grid=(256,1,1) block=(256,1,1) lds=163840')
    b = []; a = b.append
    a(f's_cmp_ge_u32 s2, {grid}'); a('s_cbranch_scc1 L_wend')
    if mode != 'empty':
        a('s_load_dwordx2 s[4:5], s[0:1], 0'); a('s_load_dwordx4 s[8:11], s[0:1], 48')
        a('s_bfe_u32 s20, s2, 0x20001'); a('s_lshl_b32 s20, s20, 3'); a('s_bfe_u32 s21, s2, 0x30003'); a('s_add_u32 s20, s20, s21')
        a('s_lshr_b32 s22, s2, 6'); a('s_and_b32 s23, s2, 1'); a('s_lshl_b32 s24, s23, 2'); a('s_add_u32 s24, s24, s22')
        a('v_mul_u32_u24 v1, 6554, v0'); a('v_lshrrev_b32 v1, 16, v1'); a('v_mul_u32_u24 v2, 10, v1'); a('v_sub_u32 v2, v0, v2')
        a('v_min_u32 v1, 15, v1'); a('v_mul_u32_u24 v1, 40960, v1'); a('v_lshl_add_u32 v1, v2, 7, v1')
        a('s_mul_i32 s25, s22, 655360'); a('s_mul_i32 s26, s20, 1280'); a('s_add_u32 s25, s25, s26')
        a('v_mul_u32_u24 v3, 10923, v0'); a('v_lshrrev_b32 v3, 16, v3'); a('v_mul_u32_u24 v4, 6, v3'); a('v_sub_u32 v4, v0, v4')
        a('v_min_u32 v3, 19, v3'); a('v_mul_u32_u24 v3, 3072, v3'); a('v_lshl_add_u32 v3, v4, 7, v3')
        a('s_lshr_b32 s27, s2, 3'); a('s_mul_i32 s27, s27, 61440'); a('s_mul_i32 s28, s23, 768'); a('s_add_u32 s27, s27, s28'); a('s_add_u32 s29, s27, 1536')
        a('v_lshrrev_b32 v5, 2, v0'); a('v_lshlrev_b32 v5, 17, v5'); a('v_and_b32 v6, 3, v0'); a('v_lshl_add_u32 v5, v6, 7, v5')
        a('s_lshl_b32 s30, s20, 12'); a('s_lshl_b32 s31, s24, 9'); a('s_add_u32 s30, s30, s31')
        a('s_waitcnt lgkmcnt(0)')
        a('s_mov_b32 s6, 2621440'); a('s_mov_b32 s7, 0x20000')
        a('s_mov_b64 s[12:13], s[8:9]'); a('s_mov_b32 s14, 1966080'); a('s_mov_b32 s15, 0x20000')
        a('s_mov_b64 s[16:17], s[10:11]'); a('s_mov_b32 s18, 8388608'); a('s_mov_b32 s19, 0x20000')
        a('buffer_load_dword v8, v1, s[4:7], s25 offen'); a('buffer_load_dword v9, v3, s[12:15], s29 offen')
        if mode in ('all', 'code'):
            a('s_getpc_b64 s[32:33]'); a('L_wpc:'); a(f's_add_u32 s32, s32, {K} - L_wpc'); a('s_addc_u32 s33, s33, -1'); a('s_mov_b32 s34, 8192'); a('s_mov_b32 s35, 0x20000')
            a('v_and_b32 v7, 63, v0'); a('v_lshlrev_b32 v7, 7, v7'); a('buffer_load_dword v12, v7, s[32:35], 0 offen')
        if mode == 'all':
            a('buffer_load_dword v10, v3, s[12:15], s27 offen'); a('buffer_load_dword v11, v5, s[16:19], s30 offen')
        if wait: a('s_waitcnt vmcnt(0)')
    a('L_wend:')
    wk = '.text\n.globl warm_kernel\n.p2align 8\n.type warm_kernel,@function\nwarm_kernel:\n' + '\n'.join(b) + '\ns_endpgm\n'
    kd = '''.section .rodata,"a"
.p2align 6
.amdhsa_kernel warm_kernel
  .amdhsa_next_free_vgpr 16
  .amdhsa_next_free_sgpr 48
  .amdhsa_accum_offset 16
  .amdhsa_group_segment_fixed_size 0
  .amdhsa_kernarg_size 112
  .amdhsa_user_sgpr_count 2
  .amdhsa_user_sgpr_kernarg_segment_ptr 1
  .amdhsa_system_sgpr_workgroup_id_x 1
.end_amdhsa_kernel
'''
    t = t.replace('.section .rodata,"a"', wk + '.section .rodata,"a"', 1) + kd
    open(out, 'w').write(t)
make('../exp/w_empty1.s', 'empty', 1, 64)
make('../exp/w_empty.s', 'empty')
make('../exp/w_xw.s', 'xw')
make('../exp/w_code.s', 'code')
make('../exp/w_all.s', 'all')
```
